```python
import torch

def _softmax(x, axis=-1):
    return torch.softmax(x, dim=axis)
def _gelu(x):
    return torch.nn.functional.gelu(x, approximate="tanh")
def _silu(x):
    return torch.nn.functional.silu(x)
def _sigmoid(x):
    return torch.sigmoid(x)
def _layernorm(x, axis=-1, eps=1e-5):
    m = x.mean(dim=axis, keepdim=True)
    v = x.var(dim=axis, keepdim=True, unbiased=False)
    return (x - m) / torch.sqrt(v + eps)
def _scatter_add(tgt, idx, src, axis=0):
    return tgt.clone().index_add_(axis, idx, src)
def _segment_sum(src, seg, n):
    out = torch.zeros((n,) + src.shape[1:], dtype=src.dtype)
    return out.index_add_(0, seg, src)
def _pad(x, pw):
    flat = tuple(v for pair in reversed(pw) for v in pair)
    return torch.nn.functional.pad(x, flat)

kernel_name = 'interleave_layers__ssm_conv_h3__glu_gated_geglu__prompt'

def setup_inputs():

    _w = (lambda a: (lambda t: t.to(torch.bfloat16) if t.is_floating_point() else t)(torch.as_tensor(a)))
    def _A_setup():
        B, S, D = 1, 2048, 640
        ks = 4
        return {
            "q": _w((lambda *s: torch.randn(*s, dtype=torch.bfloat16) * 0.05)(B, S, D)),
            "k": _w((lambda *s: torch.randn(*s, dtype=torch.bfloat16) * 0.2)(B, S, D)),
            "v": _w((lambda *s: torch.randn(*s, dtype=torch.bfloat16) * 0.2)(B, S, D)),
            "shift_k": _w((lambda *s: torch.randn(*s, dtype=torch.bfloat16) * 0.2)(D, ks) * 0.5),
            "ssm_k": _w((lambda *s: torch.randn(*s, dtype=torch.bfloat16) * 0.8)(D, S) * (1.0 / S ** 0.5)),
            "ssm_D": _w((lambda *s: torch.randn(*s, dtype=torch.bfloat16) * 0.2)(D)),
        }
    _A_in = _A_setup()

    def _B_setup():
        B, S, Dm, Df = 1, 2048, 640, 1728
        return {
            "x": _w((lambda *s: torch.randn(*s, dtype=torch.bfloat16) * 0.05)(B, S, Dm)),
            "w_gate": _w((lambda *s: torch.randn(*s, dtype=torch.bfloat16) * 0.4)(Dm, Df) * (Dm ** -0.5)),
            "w_up": _w((lambda *s: torch.randn(*s, dtype=torch.bfloat16) * 0.4)(Dm, Df) * (Dm ** -0.5)),
            "w_down": _w((lambda *s: torch.randn(*s, dtype=torch.bfloat16) * 0.4)(Df, Dm) * (Df ** -0.5)),
        }
    _B_in = _B_setup()

    return {
        "A_q": _A_in["q"],
        "A_k": _A_in["k"],
        "A_v": _A_in["v"],
        "A_shift_k": _A_in["shift_k"],
        "A_ssm_k": _A_in["ssm_k"],
        "A_ssm_D": _A_in["ssm_D"],
        "B_x": _B_in["x"],
        "B_w_gate": _B_in["w_gate"],
        "B_w_up": _B_in["w_up"],
        "B_w_down": _B_in["w_down"],
    }

def reference(A_q, A_k, A_v, A_shift_k, A_ssm_k, A_ssm_D, B_x, B_w_gate, B_w_up, B_w_down):
    def _A_ref(q, k, v, shift_k, ssm_k, ssm_D):
        B, S, D = q.shape
        ks = shift_k.shape[-1]
        k_pad = _pad(k, ((0, 0), (ks - 1, 0), (0, 0)))
        k_shift = torch.zeros_like(k)
        for t in range(ks):
            k_shift = k_shift + k_pad[:, t:t + S, :] * shift_k[:, ks - 1 - t][None, None, :]
        kv = k_shift * v
        L = 2 * S
        kv_pad = _pad(kv, ((0, 0), (0, S), (0, 0)))
        kf_pad = _pad(ssm_k, ((0, 0), (0, S)))
        kv_f = (lambda x, axes=(-2,-1): torch.fft.rfft2(x.float(), dim=axes))(kv_pad[:, None, :, :], axes=(1, 2))
        kf_f = (lambda x, axes=(-2,-1): torch.fft.rfft2(x.float(), dim=axes))(kf_pad[:, None, :], axes=(1, 2))
        kf_f = (lambda x, *d: x.permute(*d))(kf_f, 1, 2, 0)
        y_f = kv_f * kf_f[None, :, :, :]
        y = (lambda x, s, axes=(-2,-1): torch.fft.irfft2(x, s=s, dim=axes).to(torch.bfloat16))(y_f, (1, L), axes=(1, 2))[:, 0, :S, :]
        y = y + kv * ssm_D[None, None, :]
        return q * y

    def _B_ref(x, w_gate, w_up, w_down):
        g = torch.einsum("bsd,df->bsf", x, w_gate)
        u = torch.einsum("bsd,df->bsf", x, w_up)
        h = _gelu(g) * u
        return torch.einsum("bsf,fd->bsd", h, w_down)

    x = A_q
    x = x + _A_ref(_layernorm(x, axis=-1), A_k, A_v, A_shift_k, A_ssm_k, A_ssm_D)
    x = x + _B_ref(_layernorm(x, axis=-1), B_w_gate, B_w_up, B_w_down)
    x = x + _A_ref(_layernorm(x, axis=-1), A_k, A_v, A_shift_k, A_ssm_k, A_ssm_D)
    x = x + _B_ref(_layernorm(x, axis=-1), B_w_gate, B_w_up, B_w_down)
    return x
```

```python
import re

_REG = re.compile(r"^-?(?:abs\()?\|?([vas])(?:(\d+)|\[(\d+):(\d+)\])\|?\)?$")

def regs_of(tok):
    tok = tok.strip()
    if tok in ("vcc", "exec"):
        return {(tok, 0)}
    if tok == "m0":
        return {("m0", 0)}
    m = _REG.match(tok)
    if not m:
        return set()
    k = m.group(1)
    if m.group(2) is not None:
        return {(k, int(m.group(2)))}
    return {(k, i) for i in range(int(m.group(3)), int(m.group(4)) + 1)}

TRANS = ("v_exp_f32", "v_log_f32", "v_rcp_f32", "v_rsq_f32", "v_sqrt_f32", "v_sin_f32", "v_cos_f32")

class Ins:
    __slots__ = ("text", "op", "kind", "dst", "src", "passes", "srcc", "dpp", "states", "wide_store", "lds_dma")
    def __init__(self, text):
        self.text = text
        t = text.split(";")[0].strip()
        self.dst = set(); self.src = set(); self.srcc = set()
        self.passes = 0; self.dpp = False; self.states = 1; self.wide_store = set(); self.lds_dma = False
        if not t or t.endswith(":") or t.startswith("."):
            self.op = t; self.kind = "label" if t.endswith(":") else "none"; self.states = 0
            return
        parts = t.split(None, 1)
        op = self.op = parts[0]
        rest = parts[1] if len(parts) > 1 else ""
        rest = re.sub(r"\s+\w+:\[[^\]]*\]", "", rest) if "op_sel" in rest or "neg_" in rest else rest
        if "quad_perm" in rest:
            rest = re.sub(r"quad_perm:\[[^\]]*\]", "quad_perm", rest)
        ops = [x.strip() for x in rest.split(",")] if rest else []
        if ops:
            last = ops[-1].split()
            mods = last[1:]; ops[-1] = last[0] if last else ""
        else:
            mods = []
        R = [regs_of(x) for x in ops]
        if op == "s_nop":
            self.kind = "salu"; self.states = int(ops[0], 0) + 1
        elif op.startswith("v_mfma"):
            self.kind = "mfma"; self.passes = 8 if "32x32" in op else 4
            self.dst = R[0]; self.src = R[1] | R[2] | R[3]; self.srcc = R[3]
        elif op.startswith("v_"):
            self.kind = "valu"
            self.dpp = any(m.startswith(("row_", "quad_perm", "wave_")) for m in mods) or "_dpp" in op
            if op.startswith("v_permlane") and "swap" in op:
                self.dst = R[0] | R[1]; self.src = R[0] | R[1]
            elif op.startswith(("v_add_co", "v_sub_co", "v_addc_co", "v_subb_co")):
                self.dst = R[0] | R[1]; self.src = set().union(*R[2:])
            else:
                self.dst = R[0]; self.src = set().union(*R[1:]) if len(R) > 1 else set()
                if op.startswith(("v_fmac", "v_dot2c", "v_writelane", "v_pk_fmac")) or self.dpp:
                    self.src |= R[0]
                if op.startswith("v_cndmask") and len(R) == 3:
                    self.src |= {("vcc", 0)}
        elif op.startswith("ds_"):
            self.kind = "ds"
            if op.startswith("ds_read") or op.startswith("ds_bpermute") or op.startswith("ds_swizzle"):
                self.dst = R[0]; self.src = set().union(*R[1:])
            else:
                self.src = set().union(*R)
        elif op.startswith("buffer_") or op.startswith("global_"):
            self.kind = "vmem"
            if op in ("buffer_wbl2", "buffer_inv"):
                pass
            elif "lds" in mods:
                self.lds_dma = True; self.src = set().union(*R) | {("m0", 0)}
            elif "_load" in op:
                self.dst = R[0]; self.src = set().union(*R[1:])
            else:
                self.src = set().union(*R)
                if op.endswith(("x3", "x4")):
                    self.wide_store = R[0] if op.startswith("buffer_") else R[1]
        elif op.startswith(("s_load", "s_memtime", "s_memrealtime")):
            self.kind = "smem"; self.dst = R[0]; self.src = set().union(*R[1:]) if len(R) > 1 else set()
        elif op.startswith(("s_branch", "s_cbranch", "s_setpc", "s_swappc", "s_endpgm")):
            self.kind = "branch"
        else:
            self.kind = "salu"
            if op.startswith(("s_cmp", "s_waitcnt", "s_barrier", "s_sleep", "s_setprio")):
                self.src = set().union(*R) if R else set()
            elif R:
                self.dst = R[0]; self.src = set().union(*R[1:]) if len(R) > 1 else set()
                if "saveexec" in op:
                    self.dst = self.dst | {("exec", 0)}

def _vec(s):
    return {r for r in s if r[0] in ("v", "a")}
def _sca(s):
    return {r for r in s if r[0] in ("s", "vcc")}

def required_states(p, c):
    need = 0
    if p.kind == "valu":
        pv = _vec(p.dst); ps = _sca(p.dst)
        if c.kind == "mfma" and pv & c.src: need = max(need, 2)
        if c.kind == "valu":
            if c.dpp and pv & c.src: need = max(need, 2)
            if c.op.startswith("v_permlane") and pv & c.src: need = max(need, 2)
            if c.op.startswith(("v_readlane", "v_readfirstlane")) and pv & c.src: need = max(need, 1)
            if p.op.startswith(TRANS) and pv & c.src: need = max(need, 1)
            if ps & c.src: need = max(need, 4 if c.op.startswith(("v_readlane", "v_writelane")) else 2)
        if c.kind == "vmem" and ps & c.src: need = max(need, 5)
        if c.kind in ("salu", "smem", "branch") and ps & c.src: need = max(need, 1)
    elif p.kind == "mfma":
        big = p.passes + 4
        if c.kind == "mfma":
            if p.dst & (c.src - c.srcc): need = max(need, big)
            if p.dst & c.srcc and not (p.dst == c.srcc and p.passes == c.passes): need = max(need, p.passes + 2)
            if p.dst & c.dst and not (p.dst & c.srcc): need = max(need, p.passes + 2)
        elif c.kind == "valu":
            if p.dst & (c.src | c.dst): need = max(need, big)
            if p.srcc & c.dst: need = max(need, p.passes - 1)
        elif c.kind in ("vmem", "ds"):
            if p.dst & (c.src | c.dst): need = max(need, big)
    elif p.kind == "vmem":
        if p.wide_store and (p.wide_store & c.dst): need = max(need, 2)
    elif p.kind == "salu":
        if ("m0", 0) in p.dst and c.lds_dma: need = max(need, 1)
    return need

class Emit:
    def __init__(self):
        self.ins = []
        self.uid_n = 0
        self.vm = []
        self.lg = []
    def uid(self, base="L"):
        self.uid_n += 1
        return f"{base}{self.uid_n}"
    def raw(self, text):
        for l in text.split("\n"):
            l = l.strip()
            if l:
                self.ins.append(Ins(l))
    def __call__(self, text, tag=None):
        for l in text.split("\n"):
            l = l.strip()
            if not l:
                continue
            i = Ins(l)
            self.ins.append(i)
            if i.kind == "vmem":
                self.vm.append(tag)
            elif i.kind == "ds":
                self.lg.append(tag)
    def label(self, name):
        self.ins.append(Ins(name + ":"))
    def _pending(self, q, tags):
        idx = -1
        for n, t in enumerate(q):
            if t in tags:
                idx = n
        return idx
    def wait(self, vm=(), lg=()):
        parts = []
        if not isinstance(vm, (tuple, list, set)): vm = (vm,)
        if not isinstance(lg, (tuple, list, set)): lg = (lg,)
        i = self._pending(self.vm, set(vm))
        if i >= 0:
            n = min(len(self.vm) - 1 - i, 63)
            parts.append(f"vmcnt({n})"); self.vm = self.vm[len(self.vm) - n:] if n else []
        i = self._pending(self.lg, set(lg))
        if i >= 0:
            n = min(len(self.lg) - 1 - i, 15)
            parts.append(f"lgkmcnt({n})"); self.lg = self.lg[len(self.lg) - n:] if n else []
        if parts:
            self.raw("s_waitcnt " + " ".join(parts))
    def wait_all(self, vm=True, lg=True):
        parts = []
        if vm: parts.append("vmcnt(0)"); self.vm = []
        if lg: parts.append("lgkmcnt(0)"); self.lg = []
        self.raw("s_waitcnt " + " ".join(parts))
    def pad(self):
        out = []; nops = 0
        for c in self.ins:
            if c.states:
                dist = 0; need = 0
                for p in reversed(out):
                    if p.kind == "branch" and p.op in ("s_branch", "s_endpgm", "s_setpc_b64"):
                        break
                    r = required_states(p, c) if p.states else 0
                    need = max(need, r - dist)
                    dist += p.states
                    if dist >= 20:
                        break
                while need > 0:
                    k = min(need, 16)
                    out.append(Ins(f"s_nop {k-1}")); nops += k; need -= k
            out.append(c)
        self.ins = out
        return nops
    def text(self):
        return "\n".join((i.text if i.kind in ("label", "none") else "    " + i.text) for i in self.ins) + "\n"
```

```python
import sys, math, struct
from emit import Emit

NAME = "interleave_layers__ssm_conv_h3__glu_gated_geglu__prompt_kernel"
OPT = dict(prof=0, nt_in=1, nt_w=1, stop=99, warm=1, shufwait=1, bud=16, bud3=20, g1_lag=14, pub2=50, pub3=100, poll_lead=19)
for a in sys.argv[2:]:
    k, v = a.split("="); OPT[k] = int(v)

ACT = 0x280000
CNT = 0; PROF = 0x10000
KVT = 0x100000; YB = KVT + ACT; XN = [YB + ACT, YB + 2 * ACT]; X3 = YB + 3 * ACT; F1 = YB + 4 * ACT
HB = [F1 + ACT, F1 + ACT + 0x700000]
WGU = HB[1] + 0x700000; WDP = WGU + 0x460000; WS_END = WDP + 0x230000
WT = 286720
RING = 0; ST_X = 131072; ST_Y = ST_X + 12288; RED = ST_Y + 12288
P0L = 0; F0 = 16384; FCH = 16640; FCP = 4160; U0 = F0 + 4 * FCH; UCH = 4640; YA = U0 + 4 * UCH; YCS = 4624
SHST = 20992
LDS_BYTES = 163840
SPIN_LIMIT = 400000
WS = "s[8:11]"; SA = "s[12:15]"; SB = "s[44:47]"; SC = "s[48:51]"
P_Q, P_K, P_V, P_SHK, P_SSM, P_D, P_WG, P_WU, P_WD, P_OUT, P_DBG, P_WS = 16, 18, 20, 22, 24, 26, 30, 32, 34, 36, 38, 40
sWV, sX, sSLOT, sG, sHF, sMI, sCI, sCGP, sMASK, sRB, sJT = "s52", "s53", "s54", "s55", "s56", "s57", "s58", "s59", "s60", "s61", "s62"
sDV = "s63"
T = [f"s{i}" for i in range(64, 84)]
sSPIN = "s84"; sWB = "s85"; sWO = "s86"; sM0 = "s87"; sH = ["s88", "s89", "s90", "s91"]; sHS = "s92"; sHS3 = "s93"; sWD = "s94"
DBG = f"s[{P_DBG}:{P_DBG+1}]"; WSP = f"s[{P_WS}:{P_WS+1}]"
NT_IN = " nt" if OPT["nt_in"] else ""
NT_W = " nt" if OPT["nt_w"] else ""
BIG = "0x80000000"

e = Emit()
def v(i, n=1): return f"v{i}" if n == 1 else f"v[{i}:{i+n-1}]"
def a(i, n=1): return f"a{i}" if n == 1 else f"a[{i}:{i+n-1}]"
def f32(x): return "0x%08x" % struct.unpack("<I", struct.pack("<f", x))[0]

def srd(dst, ptr, nbytes, add=None):
    d = int(dst[2:dst.index(":")])
    if add is None:
        e(f"s_mov_b32 s{d}, s{ptr}\ns_mov_b32 s{d+1}, s{ptr+1}")
    else:
        e(f"s_add_u32 s{d}, s{ptr}, {add}\ns_addc_u32 s{d+1}, s{ptr+1}, 0")
    e(f"s_mov_b32 s{d+2}, {nbytes}\ns_mov_b32 s{d+3}, 0x20000")

VST = 5
stamp_names = []
def stamp(name):
    if not OPT["prof"]:
        return
    i = stamp_names.index(name) if name in stamp_names else len(stamp_names)
    if name not in stamp_names: stamp_names.append(name)
    e.raw("s_memrealtime s[96:97]")
    e.wait_all(vm=False)
    e(f"v_writelane_b32 v{VST}, s96, {i}")

def spin(vaddr, base, target, vt=6):
    L = e.uid("spin"); D = e.uid("spun")
    e.raw(f"""s_mov_b32 {sSPIN}, 0
    {L}:
    global_load_dword v{vt}, v{vaddr}, {base} sc1
    s_add_u32 {sSPIN}, {sSPIN}, 1
    s_cmp_gt_u32 {sSPIN}, {SPIN_LIMIT}
    s_cbranch_scc1 {D}
    s_waitcnt vmcnt(0)
    v_cmp_gt_u32 vcc, {target}, v{vt}
    s_cbranch_vccnz {L}
    {D}:
    s_waitcnt vmcnt(0)""")

def wave0(fn):
    L = e.uid("w0")
    e.raw(f"s_cmp_lg_u32 {sWV}, 0\ns_cbranch_scc1 {L}")
    fn()
    e.raw(f"{L}:")

def wait_flag(vaddr, base, target):
    wave0(lambda: spin(vaddr, base, target))
    e.raw("s_barrier")

def signal(soff, base, vt=6):
    def fn():
        e.raw(f"""s_mov_b64 exec, 1
        v_mov_b32 v{vt}, {soff}
        v_mov_b32 v{vt+1}, 1
        global_atomic_add v{vt}, v{vt+1}, {base} sc1
        s_mov_b64 exec, -1""")
    wave0(fn)

def cnt_off(dst, idx_expr_s, const):
    e(f"s_lshl_b32 {dst}, {idx_expr_s}, 8\ns_add_u32 {dst}, {dst}, {CNT + const * 256 + 128}")

def entry():
    e(f"""s_cmp_ge_u32 s2, 256
    s_cbranch_scc1 L_exit
    s_load_dwordx16 s[16:31], s[0:1], 0
    s_load_dwordx8 s[32:39], s[0:1], 64
    s_load_dwordx2 s[40:41], s[0:1], 96
    v_lshrrev_b32 v2, 6, v0
    v_and_b32 v0, 63, v0
    v_readfirstlane_b32 {sWV}, v2
    s_and_b32 {sX}, s2, 7
    s_lshr_b32 {sSLOT}, s2, 3
    s_lshr_b32 {T[0]}, {sX}, 1
    s_lshl_b32 {T[0]}, {T[0]}, 2
    s_lshr_b32 {T[1]}, {sSLOT}, 3
    s_add_u32 {sG}, {T[0]}, {T[1]}
    s_and_b32 {sHF}, {sX}, 1
    s_and_b32 {sMI}, {sSLOT}, 7
    s_lshl_b32 {T[0]}, {sHF}, 3
    s_add_u32 {sJT}, {T[0]}, {sMI}
    s_lshl_b32 {sRB}, {sG}, 4
    s_add_u32 {sRB}, {sRB}, {sJT}
    s_mov_b32 {sMASK}, 0xffff0000
    v_lshlrev_b32 v1, 4, v0""")
    if OPT["prof"]:
        e(f"v_mov_b32 v{VST}, 0")
    e.wait_all(vm=False)
    srd(WS, P_WS, WS_END)
    stamp("start")
    e(f"s_cmp_ge_u32 {sSLOT}, 20\ns_cbranch_scc1 L_shuf")

def q_prefetch():
    srd(SC, P_Q, ACT)
    e(f"""v_and_b32 v8, 7, v0
    v_lshrrev_b32 v9, 3, v0
    v_mul_u32_u24 v8, 1280, v8
    v_lshl_add_u32 v8, v9, 4, v8
    s_mul_i32 {T[0]}, {sRB}, 10240
    s_mul_i32 {T[1]}, {sWV}, 320
    s_add_u32 {T[0]}, {T[0]}, {T[1]}
    v_mov_b32 v10, {BIG}
    v_cmp_gt_u32 vcc, 32, v0
    v_cndmask_b32 v10, v10, v8, vcc
    buffer_load_dwordx4 a[240:243], v8, {SC}, {T[0]} offen{NT_IN}
    buffer_load_dwordx4 a[244:247], v8, {SC}, {T[0]} offen offset:128{NT_IN}
    buffer_load_dwordx4 a[248:251], v10, {SC}, {T[0]} offen offset:256{NT_IN}""", tag="q")

def p0():
    KR, VR, WR, WF, KF, AC, VF, PK, HR = 16, 44, 60, 76, 108, 164, 196, 200, 216
    e(f"""s_mul_i32 {sCI}, {sX}, 20
    s_add_u32 {sCI}, {sCI}, {sSLOT}
    s_lshr_b32 {sCGP}, {sCI}, 4
    s_and_b32 {T[0]}, {sCI}, 15
    s_lshl_b32 {T[0]}, {T[0]}, 7
    s_lshl_b32 {T[1]}, {sWV}, 5
    s_add_u32 {T[2]}, {T[0]}, {T[1]}
    s_mul_i32 {T[3]}, {T[2]}, 1280
    s_lshl_b32 {T[4]}, {sCGP}, 7
    s_add_u32 {T[3]}, {T[3]}, {T[4]}
    v_and_b32 v2, 7, v0
    v_lshrrev_b32 v3, 3, v0
    v_mul_u32_u24 v4, 5120, v3
    v_lshl_add_u32 v4, v2, 4, v4
    v_add_u32 v4, {T[3]}, v4
    v_subrev_u32 v8, 3840, v4
    v_mov_b32 v9, {BIG}
    v_cmp_gt_u32 vcc, 1280, v4
    v_cndmask_b32 v8, v8, v9, vcc
    s_lshl_b32 {T[4]}, {sCGP}, 9
    v_lshlrev_b32 v9, 6, v2""")
    srd(SA, P_K, ACT); srd(SB, P_V, ACT); srd(SC, P_SHK, 5120)
    for i in range(3):
        e(f"buffer_load_dwordx4 {v(KR+4*i,4)}, v8, {SA}, 0 offen offset:{1280*i}{NT_IN}", tag=f"k{i}")
    for i in range(4):
        e(f"buffer_load_dwordx4 {v(KR+12+4*i,4)}, v4, {SA}, 0 offen offset:{1280*i}{NT_IN}", tag=f"k{i+3}")
    for i in range(4):
        e(f"buffer_load_dwordx4 {v(WR+4*i,4)}, v9, {SC}, {T[4]} offen offset:{16*i}", tag="shk")
    for i in range(4):
        e(f"buffer_load_dwordx4 {v(VR+4*i,4)}, v4, {SB}, 0 offen offset:{1280*i}{NT_IN}", tag=f"v{i}")
    e(f"""s_lshl_b32 {T[5]}, {sCI}, 2
    s_add_u32 {T[5]}, {T[5]}, {sWV}
    s_lshl_b32 {T[6]}, {T[5]}, 12
    s_lshr_b32 {T[7]}, {T[5]}, 1
    s_lshl_b32 {T[7]}, {T[7]}, 2""")
    e.raw(f"s_load_dword {sDV}, s[{P_D}:{P_D+1}], {T[7]}")
    srd(SA, P_SSM, 4096, add=T[6])
    e("v_subrev_u32 v10, 32, v1\nv_subrev_u32 v11, 16, v1\nv_add_u32 v12, 992, v1")
    e(f"buffer_load_dwordx4 {v(HR,4)}, v10, {SA}, 0 offen{NT_IN}\nbuffer_load_dwordx2 {v(HR+4,2)}, v11, {SA}, 0 offen{NT_IN}", tag="h0")
    for q in range(1, 5):
        e(f"buffer_load_dwordx4 {v(HR+8*q,4)}, v12, {SA}, 0 offen offset:{1024*(q-1)}{NT_IN}", tag=f"h{q}")
        e(f"buffer_load_dwordx2 {v(HR+8*q+4,2)}, v12, {SA}, 0 offen offset:{1024*(q-1)+16}{NT_IN}", tag=f"h{q}")
    def clr():
        e.raw(f"""s_lshl_b32 {T[8]}, {sCI}, 8
        s_mov_b64 exec, 0xffff
        v_mov_b32 v196, 0
        v_mov_b32 v197, 0
        v_mov_b32 v198, 0
        v_mov_b32 v199, 0
        buffer_store_dwordx4 v[196:199], v1, {WS}, {T[8]} offen sc1
        s_mov_b64 exec, -1""")
    wave0(clr)
    e(f"""s_lshl_b32 {T[8]}, {sWV}, 12
    v_lshlrev_b32 v13, 9, v3
    v_sub_u32 v13, {P0L + 28*128}, v13
    v_lshl_add_u32 v13, v2, 4, v13
    v_add_u32 v13, {T[8]}, v13
    v_bfe_u32 v14, v0, 2, 2
    v_lshlrev_b32 v14, 7, v14
    v_lshrrev_b32 v15, 4, v0
    v_lshl_add_u32 v14, v15, 5, v14
    v_and_b32 v15, 3, v0
    v_lshl_add_u32 v14, v15, 3, v14
    v_add_u32 v14, {T[8]}, v14""")
    def unpack(dst, src, n):
        for c in range(n):
            if c & 1: e(f"v_and_b32 v{dst+c}, {sMASK}, v{src+(c>>1)}")
            else: e(f"v_lshlrev_b32 v{dst+c}, 16, v{src+(c>>1)}")
    for i in range(7):
        e.wait(vm=f"k{i}")
        unpack(KF + 8 * i, KR + 4 * i, 8)
    e.wait(vm="shk")
    for c in range(8):
        for tau in range(4):
            src = WR + 2 * c + (tau >> 1)
            if tau & 1: e(f"v_and_b32 v{WF+8*tau+c}, {sMASK}, v{src}")
            else: e(f"v_lshlrev_b32 v{WF+8*tau+c}, 16, v{src}")
    for i in range(4):
        for p in range(4):
            d = v(AC + 8 * i + 2 * p, 2)
            e(f"v_pk_mul_f32 {d}, {v(KF+8*(i+3)+2*p,2)}, {v(WF+2*p,2)}")
        for tau in range(1, 4):
            for p in range(4):
                d = v(AC + 8 * i + 2 * p, 2)
                e(f"v_pk_fma_f32 {d}, {v(KF+8*(i+3-tau)+2*p,2)}, {v(WF+8*tau+2*p,2)}, {d}")
    for i in range(4):
        e.wait(vm=f"v{i}")
        unpack(KF, VR + 4 * i, 8)
        for p in range(4):
            d = v(AC + 8 * i + 2 * p, 2)
            e(f"v_pk_mul_f32 {d}, {d}, {v(KF+2*p,2)}")
        for p in range(4):
            e(f"v_cvt_pk_bf16_f32 v{PK+4*i+p}, v{AC+8*i+2*p}, v{AC+8*i+2*p+1}")
        e(f"ds_write_b128 v13, {v(PK+4*i,4)} offset:{128*(3-i)}", tag="w")
    e.wait(lg="w")
    for m in range(4):
        for hh in range(2):
            e(f"ds_read_b64_tr_b16 {v(16+4*m+2*hh,2)}, v14 offset:{(8*m+4*hh)*128}", tag=f"t{m}")
    e(f"""s_sub_u32 {T[8]}, 2016, {T[2]}
    s_lshr_b32 {T[8]}, {T[8]}, 3
    s_mul_i32 {T[8]}, {T[8]}, 10240
    s_lshl_b32 {T[9]}, {sCGP}, 10
    s_add_u32 {T[8]}, {T[8]}, {T[9]}
    s_add_u32 {T[8]}, {T[8]}, {KVT}""")
    for m in range(4):
        e.wait(lg=f"t{m}")
        e(f"buffer_store_dwordx4 {v(16+4*m,4)}, v1, {WS}, {T[8]} offen sc1", tag="st")
        if m < 3: e(f"s_add_u32 {T[8]}, {T[8]}, 10240")
    e.wait_all()
    e.raw("s_barrier")
    e(f"s_and_b32 {T[8]}, {sCGP}, 1\ns_lshl_b32 {T[8]}, {T[8]}, 7\ns_lshr_b32 {T[9]}, {sCGP}, 1\ns_lshl_b32 {T[9]}, {T[9]}, 2\ns_add_u32 {T[8]}, {T[8]}, {T[9]}")
    signal(T[8], DBG)
    stamp("p0_done")
    q_prefetch()
    e(f"s_mul_i32 {T[9]}, {sWV}, {FCH}\ns_add_u32 {T[9]}, {T[9]}, {F0}\nv_add_u32 v13, {T[9]}, v1")
    for q in range(5):
        d = HR + 8 * q
        for j in range(4):
            e(f"v_alignbit_b32 v{16+j}, v{d+j+1}, v{d+j}, 16")
            e(f"v_mov_b32 v{20+j}, v{d+j+1}")
            e(f"v_alignbit_b32 v{24+j}, v{d+j+2}, v{d+j+1}, 16")
        if q == 4: e("s_mov_b64 exec, 3")
        e(f"ds_write_b128 v13, {v(d,4)} offset:{1024*q}", tag="w")
        for sg in range(1, 4):
            e(f"ds_write_b128 v13, {v(12+4*sg,4)} offset:{sg*FCP+1024*q}", tag="w")
        e.wait(lg="w")
    e(f"""s_mul_i32 {T[9]}, {sWV}, {UCH}
    s_add_u32 {T[9]}, {T[9]}, {U0}
    s_mov_b64 exec, -1
    v_add_u32 v13, {T[9]}, v1
    v_mov_b32 v16, 0
    v_mov_b32 v17, 0
    v_mov_b32 v18, 0
    v_mov_b32 v19, 0
    s_mov_b32 exec_lo, -1
    s_mov_b32 exec_hi, 3
    ds_write_b128 v13, v[16:19] offset:4096
    s_mov_b64 exec, -1""", tag="w")
    e(f"""s_and_b32 {T[7]}, {T[5]}, 1
    s_lshl_b32 {T[6]}, {sDV}, 16
    s_and_b32 {sDV}, {sDV}, {sMASK}
    s_cmp_eq_u32 {T[7]}, 0
    s_cselect_b32 {sDV}, {T[6]}, {sDV}
    v_mov_b32 v7, {T[8]}""")

def p0_all_addr(vr):
    e(f"""v_min_u32 v{vr}, 9, v0
    v_and_b32 v6, 1, v{vr}
    v_lshlrev_b32 v6, 7, v6
    v_lshrrev_b32 v{vr}, 1, v{vr}
    v_lshl_add_u32 v{vr}, v{vr}, 2, v6""")

def conv():
    AC, GB, FB = 16, (48, 80), 112
    e(f"""v_lshrrev_b32 v8, 2, v0
    v_and_b32 v9, 3, v0
    v_mul_u32_u24 v10, 10240, v8
    v_lshl_add_u32 v10, v9, 4, v10
    v_mul_u32_u24 v11, {UCH}, v9
    v_lshl_add_u32 v11, v8, 4, v11
    s_lshl_b32 {T[0]}, {sWV}, 10
    s_add_u32 {T[0]}, {T[0]}, {U0}
    v_add_u32 v11, {T[0]}, v11
    s_mul_i32 {T[0]}, {sWV}, {64*10240}
    s_lshl_b32 {T[1]}, {sCI}, 6
    s_add_u32 {T[0]}, {T[0]}, {T[1]}
    s_add_u32 {T[0]}, {T[0]}, {KVT}
    v_and_b32 v8, 15, v0
    v_lshrrev_b32 v9, 4, v0
    v_add_u32 v12, 1, v8
    v_and_b32 v13, 3, v12
    v_sub_u32 v12, v12, v13
    v_mul_u32_u24 v13, {FCP}, v13
    v_lshl_add_u32 v12, v12, 1, v13
    v_lshl_add_u32 v12, v9, 4, v12
    s_mul_i32 {T[1]}, {sWV}, {FCH}
    s_add_u32 {T[1]}, {T[1]}, {F0}
    v_add_u32 v2, {T[1]}, v12
    s_mul_i32 {T[1]}, {sWV}, {UCH}
    s_add_u32 {T[1]}, {T[1]}, {U0}
    v_lshlrev_b32 v12, 5, v8
    v_sub_u32 v12, {T[1]}, v12
    v_lshl_add_u32 v3, v9, 4, v12
    v_add_u32 v3, 480, v3
    v_lshlrev_b32 v13, 3, v9
    v_sub_u32 v4, v12, v13
    v_add_u32 v4, 504, v4""")
    e.wait_all(vm=False)
    wait_flag(7, DBG, 16)
    stamp("p0_flag")
    for m in range(4):
        e(f"buffer_load_dwordx4 {v(16+4*m,4)}, v10, {WS}, {T[0]} offen sc1", tag=f"u{m}")
        if m < 3: e(f"s_add_u32 {T[0]}, {T[0]}, {16*10240}")
    p0_all_addr(7)
    e(f"global_load_dword v15, v7, {DBG} sc1", tag="all")
    for m in range(4):
        e.wait(vm=f"u{m}")
        e(f"ds_write_b128 v11, {v(16+4*m,4)} offset:{256*m}", tag="w")
    e.wait_all(vm=False)
    e.raw("s_barrier")
    stamp("u_ready")
    seq = []
    for r in range(8):
        for aa in range(8):
            for b in range(7 - aa, -1, -1):
                seq.append((r, aa, b))
    first = {}; last = {}
    for t, (r, aa, b) in enumerate(seq):
        for key in (("F", r, aa), ("G", r, b)):
            first.setdefault(key, t); last[key] = t
    reads = []
    for key, t in first.items():
        kind, r, i = key
        prev = (kind, r - (1 if kind == "F" else 2), i)
        earliest = last[prev] + 1 if prev in last else -99
        if kind == "F":
            for h in range(2):
                reads.append((t, earliest, f"ds_read_b64 {v(FB+4*i+2*h,2)}, v2 offset:{512*i+64*r+8*h}", key))
        else:
            reads.append((t, earliest, f"ds_read_b128 {v(GB[r&1]+4*i,4)}, v3 offset:{512*(7-i)+64*r}", key))
    reads.sort(key=lambda x: x[0])
    LOOK = 22; ri = 0
    done_acc = set()
    for t, (r, aa, b) in enumerate(seq):
        n = 0
        while ri < len(reads) and reads[ri][1] <= t and (reads[ri][0] - t <= 6 or (n < 1 and reads[ri][0] - t <= LOOK)):
            e(reads[ri][2], tag=reads[ri][3]); ri += 1; n += 1
        e.wait(lg=[("F", r, aa), ("G", r, b)])
        acc = v(AC + 4 * (aa + b), 4)
        c = acc if (aa + b) in done_acc else "0"
        done_acc.add(aa + b)
        e(f"v_mfma_f32_16x16x32_bf16 {acc}, {v(FB+4*aa,4)}, {v(GB[r&1]+4*b,4)}, {c}")
    assert ri == len(reads)
    stamp("conv_mfma")
    for n in range(8):
        e(f"ds_read_b64 {v(48+2*n,2)}, v4 offset:{512*(7-n)}", tag=f"kv{n}")
    e(f"""v_lshrrev_b32 v10, 1, v8
    v_mul_u32_u24 v10, 72, v10
    v_and_b32 v11, 1, v8
    v_lshl_add_u32 v10, v11, 4, v10
    v_lshl_add_u32 v10, v9, 2, v10
    s_mul_i32 {T[1]}, {sWV}, {YCS}
    s_add_u32 {T[1]}, {T[1]}, {YA}
    v_add_u32 v10, {T[1]}, v10
    v_lshrrev_b32 v11, 2, v8
    v_mul_u32_u24 v11, {YCS}, v11
    v_mul_u32_u24 v12, 72, v9
    v_add_u32 v11, v11, v12
    v_and_b32 v12, 3, v8
    v_lshl_add_u32 v11, v12, 3, v11
    s_mul_i32 {T[1]}, {sWV}, {72*16}
    s_add_u32 {T[1]}, {T[1]}, {YA}
    v_add_u32 v11, {T[1]}, v11
    v_lshrrev_b32 v12, 3, v0
    v_mul_u32_u24 v12, 20480, v12
    v_and_b32 v13, 7, v0
    v_lshl_add_u32 v12, v13, 4, v12
    s_mul_i32 {T[0]}, {sWV}, {32*20480}
    s_lshl_b32 {T[1]}, {sCI}, 7
    s_add_u32 {T[0]}, {T[0]}, {T[1]}
    s_add_u32 {T[0]}, {T[0]}, {YB}""")
    for n in range(8):
        e.wait(lg=f"kv{n}")
        d0, d1 = 48 + 2 * n, 49 + 2 * n
        e(f"""v_and_b32 v64, {sMASK}, v{d1}
        v_lshlrev_b32 v65, 16, v{d1}
        v_and_b32 v66, {sMASK}, v{d0}
        v_lshlrev_b32 v67, 16, v{d0}""")
        for k in range(4):
            e(f"v_fmac_f32 v{AC+4*n+k}, {sDV}, v{64+k}")
        e(f"v_cvt_pk_bf16_f32 v{68+2*n}, v{AC+4*n}, v{AC+4*n+2}\nv_cvt_pk_bf16_f32 v{69+2*n}, v{AC+4*n+1}, v{AC+4*n+3}")
        e(f"ds_write_b32 v10, v{68+2*n} offset:{576*n}\nds_write_b32 v10, v{69+2*n} offset:{576*n+32}", tag="w")
    e.wait_all(vm=False)
    e.raw("s_barrier")
    for m in range(4):
        for par in range(2):
            e(f"ds_read_b64_tr_b16 {v(16+4*m+2*par,2)}, v11 offset:{288*m+32*par}", tag=f"t{m}")
    for m in range(4):
        e.wait(lg=f"t{m}")
        e(f"buffer_store_dwordx4 {v(16+4*m,4)}, v12, {WS}, {T[0]} offen sc1", tag="st")
        if m < 3: e(f"s_add_u32 {T[0]}, {T[0]}, {8*20480}")
    e.wait_all()
    e.raw("s_barrier")
    e(f"s_lshl_b32 {T[0]}, {sCGP}, 12\ns_add_u32 {T[0]}, {T[0]}, {CNT}")
    signal(T[0], WSP)
    L = e.uid("allok")
    e.raw(f"v_cmp_gt_u32 vcc, 16, v15\ns_cbranch_vccz {L}")
    p0_all_addr(7)
    spin(7, DBG, 16)
    e.raw(f"{L}:")
    stamp("conv_done")

def shuffle():
    e.label("L_shuf")
    e(f"""s_mul_i32 {sCI}, {sX}, 12
    s_add_u32 {sCI}, {sCI}, {sSLOT}
    s_sub_u32 {sCI}, {sCI}, 20
    s_lshl_b32 {T[0]}, {sCI}, 2
    s_add_u32 {T[0]}, {T[0]}, {sWV}""")
    if OPT["warm"]:
        e(f"""s_getpc_b64 s[96:97]
        L_pc:
        s_sub_u32 s96, s96, L_pc-{NAME}
        s_subb_u32 s97, s97, 0
        s_sub_u32 {T[1]}, {sSLOT}, 20
        s_lshl_b32 {T[1]}, {T[1]}, 2
        s_add_u32 {T[1]}, {T[1]}, {sWV}
        s_lshl_b32 {T[1]}, {T[1]}, 11
        v_and_b32 v8, 15, v0
        v_lshlrev_b32 v8, 7, v8
        v_add_u32 v8, {T[1]}, v8
        v_min_u32 v8, L_exit-{NAME}, v8
        global_load_dword v9, v8, s[96:97]""", tag="warm")
    L = e.uid("nz")
    e(f"""s_cmp_ge_u32 {T[0]}, 160
    s_cbranch_scc1 {L}
    s_mul_i32 {T[1]}, {T[0]}, 1639
    s_lshr_b32 {T[1]}, {T[1]}, 16
    s_mul_i32 {T[2]}, {T[1]}, 40
    s_sub_u32 {T[2]}, {T[0]}, {T[2]}
    s_add_u32 {T[1]}, {T[1]}, 3""")
    frag_index(T[3], T[4], T[1], T[5])
    e.raw(f"""s_mul_i32 {T[4]}, {T[4]}, {T[2]}
    s_add_u32 {T[3]}, {T[3]}, {T[4]}
    s_add_u32 {T[3]}, {T[3]}, {WGU + 15*WT}
    v_mov_b32 v16, 0
    v_mov_b32 v17, 0
    v_mov_b32 v18, 0
    v_mov_b32 v19, 0
    buffer_store_dwordx4 v[16:19], v1, {WS}, {T[3]} offen sc1
    {L}:""")
    p0_all_addr(7)
    e.wait_all()
    if OPT["shufwait"]:
        wait_flag(7, DBG, 16)
    stamp("p0_flag")
    e(f"""s_mul_i32 {T[1]}, {sWV}, {SHST}
    v_lshrrev_b32 v2, 3, v0
    v_and_b32 v3, 7, v0
    v_lshrrev_b32 v8, 4, v0
    v_bfe_u32 v9, v0, 2, 2
    v_and_b32 v10, 3, v0
    s_cmp_ge_u32 {T[0]}, 270
    s_cbranch_scc1 L_shuf_wd""")
    srd(SA, P_WG, 640 * 3456); srd(SB, P_WU, 640 * 3456)
    e(f"""s_mul_i32 {T[2]}, {T[0]}, 6554
    s_lshr_b32 {T[2]}, {T[2]}, 16
    s_mul_i32 {T[3]}, {T[2]}, 10
    s_sub_u32 {T[3]}, {T[0]}, {T[3]}
    s_mul_i32 {T[4]}, {T[3]}, {64*3456}
    s_lshl_b32 {T[5]}, {T[2]}, 7
    s_add_u32 {T[4]}, {T[4]}, {T[5]}
    v_mul_u32_u24 v4, 3456, v2
    v_lshl_add_u32 v4, v3, 4, v4""")
    for m in range(8):
        e(f"buffer_load_dwordx4 {v(16+8*m,4)}, v4, {SA}, {T[4]} offen{NT_W}", tag=f"l{m}")
        e(f"buffer_load_dwordx4 {v(20+8*m,4)}, v4, {SB}, {T[4]} offen{NT_W}", tag=f"l{m}")
        if m < 7: e(f"s_add_u32 {T[4]}, {T[4]}, {8*3456}")
    e(f"""v_mul_u32_u24 v11, 272, v2
    v_lshl_add_u32 v11, v3, 4, v11
    v_add_u32 v11, {T[1]}, v11
    v_lshrrev_b32 v12, 1, v8
    v_lshl_add_u32 v12, v12, 3, v9
    v_mul_u32_u24 v12, 272, v12
    v_and_b32 v13, 1, v8
    v_lshl_add_u32 v12, v13, 7, v12
    v_and_b32 v13, 1, v10
    v_lshl_add_u32 v12, v13, 4, v12
    v_lshrrev_b32 v13, 1, v10
    v_lshl_add_u32 v12, v13, 3, v12
    v_add_u32 v12, {T[1]}, v12""")
    for m in range(8):
        e.wait(vm=f"l{m}")
        e(f"ds_write_b128 v11, {v(16+8*m,4)} offset:{m*2176}\nds_write_b128 v11, {v(20+8*m,4)} offset:{m*2176+128}", tag="w")
    e.wait(lg="w")
    for uu in range(4):
        for ss in range(4):
            for hh in range(2):
                e(f"ds_read_b64_tr_b16 {v(16+16*uu+4*ss+2*hh,2)}, v12 offset:{(16*ss+4*hh)*272+32*uu}", tag=f"t{uu}")
        e(f"""s_lshl_b32 {T[4]}, {T[2]}, 2
        s_add_u32 {T[4]}, {T[4]}, {uu}
        s_mul_i32 {T[5]}, {T[4]}, 9363
        s_lshr_b32 {T[5]}, {T[5]}, 16
        s_mul_i32 {T[6]}, {T[5]}, 7
        s_sub_u32 {T[6]}, {T[4]}, {T[6]}""")
        frag_index(T[7], T[8], T[6], T[9])
        e(f"""s_mul_i32 {T[5]}, {T[5]}, {WT}
        s_add_u32 {T[7]}, {T[7]}, {T[5]}
        s_lshl_b32 {T[9]}, {T[3]}, 2
        s_mul_i32 {T[9]}, {T[9]}, {T[8]}
        s_add_u32 {T[7]}, {T[7]}, {T[9]}
        s_add_u32 {T[7]}, {T[7]}, {WGU}""")
        e.wait(lg=f"t{uu}")
        for ss in range(4):
            e(f"buffer_store_dwordx4 {v(16+16*uu+4*ss,4)}, v1, {WS}, {T[7]} offen sc1", tag="st")
            if ss < 3: e(f"s_add_u32 {T[7]}, {T[7]}, {T[8]}")
    e.wait_all()
    e("s_branch L_shuf_end")
    e.label("L_shuf_wd")
    e(f"s_cmp_ge_u32 {T[0]}, 382\ns_cbranch_scc1 L_shuf_end")
    srd(SA, P_WD, 1728 * 1280)
    e(f"""s_sub_u32 {T[2]}, {T[0]}, 270
    s_and_b32 {T[3]}, {T[2]}, 1
    s_lshr_b32 {T[2]}, {T[2]}, 1
    s_mul_i32 {T[4]}, {T[2]}, 4682
    s_lshr_b32 {T[4]}, {T[4]}, 16
    s_mul_i32 {T[5]}, {T[4]}, 14
    s_sub_u32 {T[5]}, {T[2]}, {T[5]}
    s_and_b32 {T[6]}, {T[5]}, 3
    s_lshr_b32 {T[7]}, {T[5]}, 2
    s_lshl_b32 {T[7]}, {T[7]}, 5
    s_mov_b32 {T[8]}, 16
    s_lshl_b32 {T[9]}, {T[6]}, 1
    s_cmp_ge_u32 {T[5]}, 12
    s_cselect_b32 {T[6]}, {T[9]}, {T[6]}
    s_cselect_b32 {T[8]}, 112, {T[8]}
    s_lshl_b32 {T[9]}, {T[4]}, 2
    s_add_u32 {T[6]}, {T[6]}, {T[9]}
    s_mul_i32 {T[6]}, {T[6]}, 112
    s_add_u32 {T[6]}, {T[6]}, {T[7]}
    s_add_u32 {T[8]}, {T[8]}, {T[6]}
    s_mul_i32 {T[6]}, {T[6]}, 1280
    s_mul_i32 {T[8]}, {T[8]}, 1280
    s_mul_i32 {T[9]}, {T[3]}, 640
    v_mul_u32_u24 v4, 1280, v2
    v_lshl_add_u32 v4, v3, 4, v4
    v_add_u32 v4, {T[9]}, v4
    v_add_u32 v11, {T[6]}, v4
    v_add_u32 v12, 10240, v11
    v_add_u32 v13, {T[8]}, v4
    v_add_u32 v14, 10240, v13""")
    for rb4 in range(4):
        for ln in range(5):
            e(f"buffer_load_dwordx4 {v(16+20*rb4+4*ln,4)}, v{11+rb4}, {SA}, 0 offen offset:{128*ln}{NT_W}", tag=f"l{rb4}")
    e(f"""v_mul_u32_u24 v4, 656, v2
    v_lshl_add_u32 v4, v3, 4, v4
    v_add_u32 v4, {T[1]}, v4
    v_lshl_add_u32 v15, v8, 3, v9
    v_mul_u32_u24 v15, 656, v15
    v_add_u32 v15, {T[1]}, v15
    v_lshl_add_u32 v2, v10, 4, v15
    v_lshl_add_u32 v3, v10, 3, v15
    s_mul_i32 {T[6]}, {T[3]}, {4*WT}
    s_mul_i32 {T[7]}, {T[4]}, 71680
    s_add_u32 {T[6]}, {T[6]}, {T[7]}
    s_mul_i32 {T[7]}, {T[5]}, 5120
    s_add_u32 {T[6]}, {T[6]}, {T[7]}
    s_add_u32 {T[6]}, {T[6]}, {WDP}""")
    for rb4 in range(4):
        e.wait(vm=f"l{rb4}")
        for ln in range(5):
            e(f"ds_write_b128 v4, {v(16+20*rb4+4*ln,4)} offset:{rb4*8*656+128*ln}", tag="w")
    e.wait(lg="w")
    for ct in range(4):
        for tau in range(5):
            base = 32 * (tau >> 1) + 4 * (tau & 1) if tau < 4 else 64
            for hh in range(2):
                e(f"ds_read_b64_tr_b16 {v(16+20*ct+4*tau+2*hh,2)}, v{2 if tau < 4 else 3} offset:{4*hh*656+2*(80*ct+base)}", tag=f"t{ct}")
        e.wait(lg=f"t{ct}")
        for tau in range(4):
            e(f"buffer_store_dwordx4 {v(16+20*ct+4*tau,4)}, v1, {WS}, {T[6]} offen offset:{1024*tau} sc1", tag="st")
        e(f"s_add_u32 {T[7]}, {T[6]}, 4096")
        e(f"buffer_store_dwordx4 {v(16+20*ct+16,4)}, v1, {WS}, {T[7]} offen sc1", tag="st")
        e(f"s_add_u32 {T[6]}, {T[6]}, {WT}")
    e.label("L_shuf_end")
    e.wait_all()
    e.raw("s_barrier")
    signal("64", DBG)
    if not OPT["shufwait"]:
        p0_all_addr(7)
        wait_flag(7, DBG, 16)
    stamp("shuf_done")
    q_prefetch()

def frag_index(dbase, dstride, lu, tmp):
    e(f"""s_lshr_b32 {dbase}, {lu}, 1
    s_mul_i32 {dbase}, {dbase}, 80
    s_and_b32 {tmp}, {lu}, 1
    s_add_u32 {dbase}, {dbase}, {tmp}
    s_lshl_b32 {dbase}, {dbase}, 10
    s_cmp_lt_u32 {lu}, 6
    s_cselect_b32 {dstride}, 2, 1
    s_lshl_b32 {dstride}, {dstride}, 10""")

XV, YV, RAW, NV = 16, 40, 64, 88
def unpack24(dst, src):
    for c in range(24):
        if c & 1: e(f"v_and_b32 v{dst+c}, {sMASK}, v{src+(c>>1)}")
        else: e(f"v_lshlrev_b32 v{dst+c}, 16, v{src+(c>>1)}")

def row_stats(x, area):
    e(f"v_pk_add_f32 v[112:113], {v(x,2)}, {v(x+2,2)}\nv_pk_mul_f32 v[114:115], {v(x,2)}, {v(x,2)}")
    e(f"v_pk_fma_f32 v[114:115], {v(x+2,2)}, {v(x+2,2)}, v[114:115]")
    for p in range(2, 12):
        e(f"v_pk_add_f32 v[112:113], v[112:113], {v(x+2*p,2)}")
        e(f"v_pk_fma_f32 v[114:115], {v(x+2*p,2)}, {v(x+2*p,2)}, v[114:115]")
    e("""v_add_f32 v112, v112, v113
    v_add_f32 v113, v114, v115
    v_add_f32_dpp v112, v112, v112 row_ror:8 row_mask:0xf bank_mask:0xf
    v_add_f32_dpp v113, v113, v113 row_ror:8 row_mask:0xf bank_mask:0xf""")
    for sw in ("v_permlane16_swap_b32", "v_permlane32_swap_b32"):
        e(f"""v_mov_b32 v114, v112
        v_mov_b32 v115, v113
        {sw} v112, v114
        {sw} v113, v115
        v_add_f32 v112, v112, v114
        v_add_f32 v113, v113, v115""")
    e(f"s_mov_b64 exec, 0xff\nds_write_b64 v13, v[112:113] offset:{area}\ns_mov_b64 exec, -1", tag="w")
    e.wait_all(vm=False)
    e.raw("s_barrier")
    e(f"ds_read_b128 v[112:115], v14 offset:{area}\nds_read_b128 v[116:119], v14 offset:{area+16}", tag="r")
    e.wait(lg="r")
    e(f"""v_pk_add_f32 v[112:113], v[112:113], v[114:115]
    v_pk_add_f32 v[116:117], v[116:117], v[118:119]
    v_pk_add_f32 v[112:113], v[112:113], v[116:117]
    v_mul_f32 v112, {f32(1/640)}, v112
    v_mul_f32 v113, {f32(1/640)}, v113
    v_fma_f32 v113, -v112, v112, v113
    v_max_f32 v113, 0, v113
    v_add_f32 v113, {f32(1e-5)}, v113
    v_rsq_f32 v120, v113
    v_mul_f32 v121, v112, v120
    v_sub_f32 v121, 0, v121""")

def normalise(dst, x):
    for p in range(12):
        e(f"v_pk_fma_f32 {v(dst+2*p,2)}, {v(x+2*p,2)}, v[120:121], v[120:121] op_sel:[0,0,1] op_sel_hi:[1,0,1]")

def r_addr():
    e(f"""v_and_b32 v8, 7, v0
    v_lshrrev_b32 v9, 3, v0
    s_mul_i32 {T[0]}, {sWV}, 20
    v_add_u32 v9, {T[0]}, v9
    v_lshlrev_b32 v10, 9, v9
    v_lshl_add_u32 v10, v8, 4, v10
    v_add_u32 v11, 4096, v10
    v_add_u32 v12, 8192, v10
    v_mov_b32 v15, {BIG}
    v_cmp_gt_u32 vcc, 32, v0
    v_cndmask_b32 v12, v15, v12, vcc
    v_lshlrev_b32 v14, 5, v8
    v_add_u32 v14, {RED}, v14
    s_lshl_b32 {T[0]}, {sWV}, 3
    v_add_u32 v13, {T[0]}, v14
    s_lshr_b32 {T[1]}, {sRB}, 2
    s_mul_i32 {T[1]}, {T[1]}, 40960
    s_and_b32 {T[2]}, {sRB}, 3
    s_lshl_b32 {T[2]}, {T[2]}, 7
    s_add_u32 {T[1]}, {T[1]}, {T[2]}
    s_lshl_b32 {T[2]}, {sWV}, 10
    v_add_u32 v4, {T[2]}, v1""")

def r_finish(layer):
    row_stats(XV, 256)
    normalise(NV, XV)
    for p in range(12):
        e(f"v_cvt_pk_bf16_f32 v{RAW+p}, v{NV+2*p}, v{NV+2*p+1}")
    e(f"s_add_u32 {T[2]}, {T[1]}, {XN[layer]}")
    for it in range(3):
        e(f"buffer_store_dwordx4 {v(RAW+4*it,4)}, v{10+it}, {WS}, {T[2]} offen sc1", tag="st")
    for p in range(12):
        e(f"v_cvt_pk_bf16_f32 v{RAW+12+p}, v{XV+2*p}, v{XV+2*p+1}")
    if layer == 0:
        for it in range(3):
            e(f"ds_write_b128 v4, {v(RAW+12+4*it,4)} offset:{ST_X-131072+4096*it}", tag="w")
    else:
        e(f"s_add_u32 {T[2]}, {T[1]}, {X3}")
        for it in range(3):
            e(f"buffer_store_dwordx4 {v(RAW+12+4*it,4)}, v{10+it}, {WS}, {T[2]} offen sc1", tag="st")
    e.wait_all()
    e.raw("s_barrier")
    cnt_off(T[0], sG, 16 * layer)
    signal(T[0], WSP)
    e(f"v_mov_b32 v7, {T[0]}")

def r1():
    e.label("L_r1")
    r_addr()
    e("v_add_u32 v4, 131072, v4")
    e(f"""v_lshlrev_b32 v2, 8, v9
    v_lshl_add_u32 v2, v8, 3, v2
    v_add_u32 v3, 4096, v2
    v_cndmask_b32 v3, v15, v3, vcc
    s_lshr_b32 {T[3]}, {sRB}, 1
    s_mul_i32 {T[3]}, {T[3]}, 20480
    s_and_b32 {T[4]}, {sRB}, 1
    s_lshl_b32 {T[4]}, {T[4]}, 6
    s_add_u32 {T[3]}, {T[3]}, {T[4]}
    s_add_u32 {T[3]}, {T[3]}, {YB}""")
    e.wait_all()
    for i in range(12):
        e(f"v_accvgpr_read_b32 v{RAW+i}, a{240+i}")
    unpack24(XV, RAW)
    row_stats(XV, 0)
    normalise(NV, XV)
    e("v_min_u32 v7, 9, v0\nv_lshlrev_b32 v7, 12, v7")
    wait_flag(7, WSP, 16)
    stamp("conv_flag")
    for it in range(3):
        for h in range(2):
            va, off = (2, 2048 * it + 128 * h) if it < 2 else (3, 128 * h)
            e(f"buffer_load_dwordx2 {v(RAW+4*it+2*h,2)}, v{va}, {WS}, {T[3]} offen offset:{off} sc1", tag="y")
    e.wait(vm="y")
    for it in range(3):
        e(f"ds_write_b128 v4, {v(RAW+4*it,4)} offset:{ST_Y-131072+4096*it}", tag="w")
    unpack24(YV, RAW)
    for p in range(12):
        e(f"v_pk_fma_f32 {v(XV+2*p,2)}, {v(NV+2*p,2)}, {v(YV+2*p,2)}, {v(XV+2*p,2)}")
    r_finish(0)
    stamp("r1_done")

def r2():
    r_addr()
    e("v_add_u32 v4, 131072, v4")
    for it in range(3):
        e(f"ds_read_b128 {v(RAW+4*it,4)}, v4 offset:{ST_X-131072+4096*it}", tag="x")
    for it in range(3):
        e(f"ds_read_b128 {v(RAW+12+4*it,4)}, v4 offset:{ST_Y-131072+4096*it}", tag="x")
    e.wait(lg="x")
    unpack24(XV, RAW)
    unpack24(YV, RAW + 12)
    e(f"s_add_u32 {T[2]}, {T[1]}, {F1}")
    e.wait_all()
    wait_flag(7, WSP, 8)
    stamp("f_flag")
    for it in range(3):
        e(f"buffer_load_dwordx4 {v(RAW+4*it,4)}, v{10+it}, {WS}, {T[2]} offen sc1", tag="f")
    e.wait(vm="f")
    unpack24(NV, RAW)
    for p in range(12):
        e(f"v_pk_add_f32 {v(XV+2*p,2)}, {v(XV+2*p,2)}, {v(NV+2*p,2)}")
    row_stats(XV, 0)
    normalise(NV, XV)
    for p in range(12):
        e(f"v_pk_fma_f32 {v(XV+2*p,2)}, {v(NV+2*p,2)}, {v(YV+2*p,2)}, {v(XV+2*p,2)}")
    r_finish(1)
    stamp("r2_done")

XR = 16; ACC = (176, 208); WB0 = 220; NWB = 8; PD = 6; NRES = 11
C1 = -2.0 * math.sqrt(2.0 / math.pi) * math.log2(math.e); C2 = C1 * 0.044715

def dma_stage(sg):
    out = [f"s_add_u32 {sWO}, {sWB}, {sg*16384}", f"s_add_u32 m0, {sM0}, {(sg & 7)*16384}"]
    out += [(f"buffer_load_dwordx4 v1, {WS}, {sWO} offen offset:{1024*d} sc1 lds", f"dma{sg}") for d in range(4)]
    return out

def put(item):
    if isinstance(item, tuple): e(item[0], tag=item[1])
    elif callable(item): item()
    else: e(item)

def prefill(stages):
    for sg in stages:
        for it in dma_stage(sg): put(it)

def ffn_setup():
    e(f"""s_mul_i32 {sWB}, {sJT}, {WT}
    s_lshl_b32 {sM0}, {sWV}, 12
    s_add_u32 {sWB}, {sWB}, {sM0}
    s_add_u32 {sWB}, {sWB}, {WGU}
    s_mul_i32 {sWD}, {sMI}, {WT}
    s_mul_i32 {T[0]}, {sWV}, 71680
    s_add_u32 {sWD}, {sWD}, {T[0]}
    s_add_u32 {sWD}, {sWD}, {WDP}""")

def geglu(acc, outq, store):
    L = []
    for z0 in range(0, 8, 2):
        zs = (z0, z0 + 1)
        L += [f"v_mul_f32 v{8+(z&3)}, v{acc+z}, v{acc+z}" for z in zs]
        L += [f"v_mul_f32 v{acc+8+z}, v{acc+z}, v{acc+8+z}" for z in zs]
        L += [f"v_fmaak_f32 v{8+(z&3)}, v4, v{8+(z&3)}, {f32(C1)}" for z in zs]
        L += [f"v_mul_f32 v{acc+z}, v{acc+z}, v{8+(z&3)}" for z in zs]
        L += [f"v_exp_f32 v{acc+z}, v{acc+z}" for z in zs]
        L += [f"v_add_f32 v{acc+z}, 1.0, v{acc+z}" for z in zs]
        L += [f"v_rcp_f32 v{acc+z}, v{acc+z}" for z in zs]
        L += [f"v_mul_f32 v{acc+8+z}, v{acc+8+z}, v{acc+z}" for z in zs]
        L += [f"v_cvt_pk_bf16_f32 v{outq+(z0>>1)}, v{acc+8+z0}, v{acc+9+z0}"]
    L.append(store)
    return L

def cost(item):
    s = item[0] if isinstance(item, tuple) else item
    if callable(s): return 8
    if s.startswith(("v_exp", "v_rcp")): return 8
    if s.startswith("s_"): return 2
    return 4

def check_or_spin(vt, vaddr, target):
    def fn():
        L = e.uid("rdy")
        e.wait(vm=f"poll{vt}")
        keep = list(e.vm)
        e.raw(f"v_cmp_gt_u32 vcc, {target}, v{vt}\ns_cbranch_vccz {L}")
        spin(vaddr, WSP, target, vt)
        e.raw(f"{L}:")
        e.vm = keep
    return fn

HF = 16; WN = 80
def acc2(tau, ri):
    regs = list(range(176, 208, 4)) + list(range(224, 240, 4)) + list(range(144, 176, 4))
    return regs[ri * 5 + tau]

def ffn(layer):
    H = HB[layer]
    e(f"""v_add_u32 v2, 0x10000, v1
    v_mov_b32 v4, {f32(C2)}
    v_bfe_u32 v8, v0, 4, 1
    v_mul_u32_u24 v3, 57344, v8
    v_lshrrev_b32 v8, 5, v0
    v_lshl_add_u32 v3, v8, 8, v3
    v_and_b32 v8, 15, v0
    v_lshl_add_u32 v3, v8, 4, v3
    s_lshl_b32 {T[0]}, {sG}, 3
    s_lshl_b32 {T[1]}, {sWV}, 1
    s_add_u32 {T[1]}, {T[1]}, {T[0]}
    s_mul_i32 {T[1]}, {T[1]}, 57344
    s_lshr_b32 {T[2]}, {sJT}, 2
    s_mul_i32 {T[2]}, {T[2]}, 14336
    s_add_u32 {T[1]}, {T[1]}, {T[2]}
    s_add_u32 {T[1]}, {T[1]}, {H}
    s_and_b32 {T[2]}, {sJT}, 3
    s_lshl_b32 {T[3]}, {T[2]}, 10
    s_add_u32 {sHS}, {T[1]}, {T[3]}
    s_lshl_b32 {T[3]}, {T[2]}, 9
    s_add_u32 {sHS3}, {T[1]}, {T[3]}
    s_add_u32 {sHS3}, {sHS3}, 12288
    s_lshl_b32 {T[1]}, {sHF}, 2
    s_add_u32 {T[0]}, {T[0]}, {T[1]}
    s_mul_i32 {T[2]}, {sWV}, 14336
    s_add_u32 {T[2]}, {T[2]}, {H}""")
    for ri in range(4):
        e(f"""s_add_u32 {T[1]}, {sWV}, {ri}
        s_and_b32 {T[1]}, {T[1]}, 3
        s_add_u32 {T[1]}, {T[1]}, {T[0]}
        s_mul_i32 {T[1]}, {T[1]}, 57344
        s_add_u32 {sH[ri]}, {T[1]}, {T[2]}""")
    e(f"""s_lshl_b32 {T[4]}, {sG}, 2
    s_add_u32 {T[4]}, {T[4]}, {sWV}
    s_mul_i32 {T[4]}, {T[4]}, 40960
    s_add_u32 {T[4]}, {T[4]}, {XN[layer]}
    s_mul_i32 {T[5]}, {sG}, 3""")
    cnt_off(T[5], T[5], 64 + 48 * layer)
    e(f"v_mov_b32 v244, {T[5]}\nv_add_u32 v245, 64, v244\nv_add_u32 v246, 256, v244\nv_add_u32 v248, 512, v244")
    e.wait_all()
    wait_flag(7, WSP, 16)
    stamp(f"xn_flag{layer}")
    for s in range(40):
        e(f"buffer_load_dwordx4 {v(XR+4*s,4)}, v1, {WS}, {T[4]} offen offset:{1024*(s&3)} sc1", tag=f"x{s}")
        if s & 3 == 3 and s < 39: e(f"s_add_u32 {T[4]}, {T[4]}, 4096")

    def wread(phi):
        addr = (phi & 127) * 1024
        e(f"ds_read_b128 {a(WB0+4*(phi%NWB),4)}, v{1 if addr < 65536 else 2} offset:{addr & 65535}", tag=f"w{phi}")
    def hload(ks, ri):
        return (f"buffer_load_dwordx4 {v(HF+16*(ks&3)+4*ri,4)}, v1, {WS}, {sH[ri]} offen offset:{1024*(ks&3)} sc1", f"h{ks}_{ri}")
    def wdload(fr):
        dst = a(4 * fr, 4) if fr < 5 * NRES else v(WN + 4 * (fr - 5 * NRES), 4)
        L = []
        if fr & 3 == 0 or fr == 5 * NRES: L.append(f"s_add_u32 {T[6]}, {sWD}, {(fr & ~3)*1024}")
        L.append((f"buffer_load_dwordx4 {dst}, v1, {WS}, {T[6]} offen offset:{1024*(fr&3)} sc1", f"wd{fr}"))
        return L
    def sig_h(pi):
        def fn():
            e(f"s_add_u32 {T[7]}, {T[5]}, {(0, 64, 256, 512)[pi]}")
            signal(T[7], WSP)
        return fn

    fill = []
    def add(slot, items):
        for it in items: fill.append((slot, it))
    def unit_store(p, u, q):
        if p < 3: return (f"buffer_store_dwordx4 {v(q,4)}, v3, {WS}, {sHS} offen offset:{512*u} sc1", f"hs{p}")
        return (f"buffer_store_dwordx4 {v(q,4)}, v3, {WS}, {sHS3} offen sc1", "hs3")
    for p in range(3):
        s0 = 80 * (p + 1) + 4
        add(s0, geglu(ACC[p & 1], 12, unit_store(p, 0, 12)))
        add(s0, geglu(ACC[p & 1] + 16, 240, unit_store(p, 1, 240)))
        if p < 2: add(s0, [f"s_add_u32 {sHS}, {sHS}, 4096"])
    side = {}
    def at(slot, items): side.setdefault(slot, []).extend(items)
    if layer == 0:
        for fr in range(5 * NRES):
            at(84 + (fr * 150) // (5 * NRES), wdload(fr))
    at(228, [(f"global_load_dword v247, v244, {WSP} sc1", "poll247")])
    at(243, [check_or_spin(247, 244, 16)])
    for ks in range(4):
        for ri in range(4):
            at(244 + 4 * ks + ri, [hload(ks, ri)])
    sig_after = {"hs0": 0, "hs1": 1, "hs2": 2, "hs3": 3}
    issued = {}
    def left(t):
        return any(isinstance(it, tuple) and it[1] == t for _, it in fill)
    def putf(it, slot):
        put(it)
        if isinstance(it, tuple) and it[1] in sig_after and not left(it[1]): issued[it[1]] = slot
    for phi in range(-PD, 280):
        nxt = phi + PD
        if nxt < 280 and nxt % 16 == 0:
            sg = nxt // 16
            ready = [t for t in sig_after if t in issued and phi - issued[t] >= OPT["g1_lag"]]
            e.wait(vm=[f"dma{sg}"] + ready)
            e.raw("s_barrier")
            for t in ready:
                sig_h(sig_after.pop(t))()
            if sg + 6 <= 17:
                st = dma_stage(sg + 6)
                at(phi, st[:3])
                for d in range(1, 4): at(phi + 2 * d, [st[2 + d]])
        if nxt < 280: wread(nxt)
        p = min(max(phi, 0) // 80, 3)
        budget = OPT["bud3"] if p == 3 else OPT["bud"]
        for it in side.pop(phi, []):
            put(it); budget -= cost(it)
        if phi < 0: continue
        while fill and fill[0][0] <= phi and budget >= cost(fill[0][1]):
            it = fill.pop(0)[1]; putf(it, phi); budget -= cost(it)
        s, u = ((phi % 80) >> 1, phi & 1) if p < 3 else (phi - 240, 0)
        acc = v(ACC[p & 1] + 16 * u, 16)
        if s == 0 and p >= 2:
            assert f"hs{p-2}" in issued
        e.wait(vm=f"x{s}", lg=f"w{phi}")
        e(f"v_mfma_f32_32x32x16_bf16 {acc}, {a(WB0+4*(phi%NWB),4)}, {v(XR+4*s,4)}, {acc if s else 0}")
    assert not side, side
    assert "hs0" not in sig_after and "hs1" not in sig_after
    stamp(f"g1_done{layer}")
    while fill:
        putf(fill.pop(0)[1], 280)
    issued = {t: -(280 - s_) * 2 for t, s_ in issued.items()}
    add(6, geglu(ACC[1], 12, unit_store(3, 0, 12)))
    nr = []
    for fr in range(5 * NRES, 70): nr += wdload(fr)
    add(60, nr)
    side = {}
    def publish(t):
        def fn():
            assert t in issued
            e.wait(vm=t)
            e.raw("s_barrier")
            sig_h(sig_after.pop(t))()
        return fn
    if "hs2" in sig_after: at(OPT["pub2"], [publish("hs2")])
    at(OPT["pub3"], [publish("hs3")])
    for slot, va in ((19, 245), (99, 246), (179, 248)):
        at(max(slot - OPT["poll_lead"], 0), [(f"global_load_dword v247, v{va}, {WSP} sc1", "poll247")])
        at(slot, [check_or_spin(247, va, 16)])
    for ks in range(4, 14):
        if ks & 3 == 0: at(20 * (ks - 3), [f"s_add_u32 {sH[ri]}, {sH[ri]}, 4096" for ri in range(4)])
        for ri in range(4):
            at(20 * (ks - 3) + 5 * ri, [hload(ks, ri)])
    order = []
    for ks in range(14):
        for ri in ((0, 1, 2, 3) if ks < 13 else (1, 2, 3, 0)):
            for tau in range(5): order.append((ks, ri, tau))
    for n, (ks, ri, tau) in enumerate(order):
        budget = 8
        for it in side.pop(n, []):
            put(it); budget -= cost(it)
        while fill and fill[0][0] <= n and budget >= cost(fill[0][1]):
            it = fill.pop(0)[1]; putf(it, n); budget -= cost(it)
        fr = 5 * ks + tau
        w = a(4 * fr, 4) if fr < 5 * NRES else v(WN + 4 * (fr - 5 * NRES), 4)
        e.wait(vm=[f"h{ks}_{ri}", f"wd{fr}"])
        acc = v(acc2(tau, ri), 4)
        e(f"v_mfma_f32_16x16x32_bf16 {acc}, {w}, {v(HF+16*(ks&3)+4*ri,4)}, {acc if ks else 0}")
    assert not side and not fill, (side, fill)
    stamp(f"g2_mfma{layer}")
    e(f"""v_lshrrev_b32 v8, 4, v0
    v_and_b32 v9, 15, v0
    v_lshlrev_b32 v10, 9, v8
    v_lshl_add_u32 v10, v9, 4, v10
    v_lshrrev_b32 v11, 1, v8
    v_lshlrev_b32 v11, 9, v11
    v_lshl_add_u32 v11, v9, 4, v11
    v_add_u32 v11, 4096, v11
    v_mov_b32 v15, {BIG}
    v_and_b32 v12, 16, v0
    v_cmp_eq_u32 vcc, 0, v12
    v_cndmask_b32 v11, v15, v11, vcc
    s_lshl_b32 {T[8]}, {sG}, 2
    s_lshl_b32 {T[9]}, {sHF}, 1
    s_add_u32 {T[8]}, {T[8]}, {T[9]}
    s_lshr_b32 {T[9]}, {sWV}, 1
    s_add_u32 {T[8]}, {T[8]}, {T[9]}
    s_mul_i32 {T[8]}, {T[8]}, 40960
    s_mul_i32 {T[9]}, {sMI}, 5120
    s_add_u32 {T[8]}, {T[8]}, {T[9]}
    s_and_b32 {T[9]}, {sWV}, 1
    s_lshl_b32 {T[9]}, {T[9]}, 8
    s_add_u32 {T[8]}, {T[8]}, {T[9]}
    s_add_u32 {T[8]}, {T[8]}, {F1 if layer == 0 else X3}""")
    if layer == 1:
        e(f"""buffer_load_dwordx4 v[80:83], v10, {WS}, {T[8]} offen sc1
        buffer_load_dwordx4 v[84:87], v10, {WS}, {T[8]} offen offset:2048 sc1
        buffer_load_dwordx4 v[88:91], v11, {WS}, {T[8]} offen sc1""", tag="x3")
    for ri in range(1, 4):
        e(f"""s_add_u32 {T[0]}, {sWV}, {ri}
        s_and_b32 {T[0]}, {T[0]}, 3
        s_mul_i32 {T[0]}, {T[0]}, 15360
        v_add_u32 v13, {T[0]}, v1""")
        for tau in range(5):
            e(f"ds_write_b128 v13, {v(acc2(tau,ri),4)} offset:{(ri-1)*5120+1024*tau}", tag="w")
    e(f"s_mul_i32 {T[0]}, {sWV}, 15360\nv_add_u32 v13, {T[0]}, v1")
    e.wait_all(vm=False)
    e.raw("s_barrier")
    for k in range(15):
        e(f"ds_read_b128 {v(16+4*k,4)}, v13 offset:{1024*k}", tag=f"r{k}")
    for k in range(15):
        e.wait(lg=f"r{k}")
        d = acc2(k % 5, 0)
        for h in range(2):
            e(f"v_pk_add_f32 {v(d+2*h,2)}, {v(d+2*h,2)}, {v(16+4*k+2*h,2)}")
    if layer == 1:
        e.wait(vm="x3")
        for g in range(2):
            for i in range(8):
                src = 80 + 4 * g + (i >> 1)
                e(f"v_and_b32 v14, {sMASK}, v{src}" if i & 1 else f"v_lshlrev_b32 v14, 16, v{src}")
                d = acc2(2 * g + (i >> 2), 0) + (i & 3)
                e(f"v_add_f32 v{d}, v{d}, v14")
    for g in range(2):
        for i in range(4):
            d = acc2(2 * g + (i >> 1), 0) + 2 * (i & 1)
            e(f"v_cvt_pk_bf16_f32 v{16+4*g+i}, v{d}, v{d+1}")
    d = acc2(4, 0)
    if layer == 0:
        e(f"""v_cvt_pk_bf16_f32 v24, v{d}, v{d+1}
        v_cvt_pk_bf16_f32 v25, v{d+2}, v{d+3}
        v_mov_b32 v26, v24
        v_mov_b32 v27, v25
        v_permlane16_swap_b32 v24, v26
        v_permlane16_swap_b32 v25, v27""")
        e(f"""buffer_store_dwordx4 v[16:19], v10, {WS}, {T[8]} offen sc1
        buffer_store_dwordx4 v[20:23], v10, {WS}, {T[8]} offen offset:2048 sc1
        buffer_store_dwordx4 v[24:27], v11, {WS}, {T[8]} offen sc1""", tag="st")
        e.wait_all()
        e.raw("s_barrier")
        e(f"s_lshl_b32 {T[0]}, {sG}, 1\ns_add_u32 {T[0]}, {T[0]}, {sHF}")
        cnt_off(T[0], T[0], 32)
        signal(T[0], WSP)
        e(f"v_mov_b32 v7, {T[0]}")
    else:
        for i in range(4):
            e(f"v_mov_b32 v{28+i}, v{d+i}")
        for i in range(4):
            e(f"v_permlane16_swap_b32 v{d+i}, v{28+i}")
        for i in range(8):
            src = 88 + (i >> 1)
            e(f"v_and_b32 v14, {sMASK}, v{src}" if i & 1 else f"v_lshlrev_b32 v14, 16, v{src}")
            dd = d + i if i < 4 else 28 + i - 4
            e(f"v_add_f32 v{dd}, v{dd}, v14")
        e(f"""v_cvt_pk_bf16_f32 v24, v{d}, v{d+1}
        v_cvt_pk_bf16_f32 v25, v{d+2}, v{d+3}
        v_cvt_pk_bf16_f32 v26, v28, v29
        v_cvt_pk_bf16_f32 v27, v30, v31""")
        srd(SA, P_OUT, ACT)
        e(f"""v_mul_u32_u24 v10, 1280, v9
        v_lshrrev_b32 v11, 1, v8
        v_lshl_add_u32 v11, v11, 4, v10
        v_lshl_add_u32 v10, v8, 4, v10
        v_cndmask_b32 v11, v15, v11, vcc
        s_lshl_b32 {T[8]}, {sG}, 7
        s_lshl_b32 {T[9]}, {sHF}, 6
        s_add_u32 {T[8]}, {T[8]}, {T[9]}
        s_lshl_b32 {T[9]}, {sWV}, 4
        s_add_u32 {T[8]}, {T[8]}, {T[9]}
        s_mul_i32 {T[8]}, {T[8]}, 1280
        s_mul_i32 {T[9]}, {sMI}, 160
        s_add_u32 {T[8]}, {T[8]}, {T[9]}
        buffer_store_dwordx4 v[16:19], v10, {SA}, {T[8]} offen
        buffer_store_dwordx4 v[20:23], v10, {SA}, {T[8]} offen offset:64
        buffer_store_dwordx4 v[24:27], v11, {SA}, {T[8]} offen offset:128""", tag="st")
    stamp(f"g2_done{layer}")

def finish():
    if OPT["prof"]:
        e.wait_all()
        stamp("end")
        e(f"""s_lshl_b32 {T[0]}, s2, 2
        s_add_u32 {T[0]}, {T[0]}, {sWV}
        s_lshl_b32 {T[0]}, {T[0]}, 8
        s_add_u32 {T[0]}, {T[0]}, {PROF}
        v_lshlrev_b32 v1, 2, v0
        buffer_store_dword v{VST}, v1, {WS}, {T[0]} offen""")
    e.label("L_exit")
    e("s_endpgm")

entry()
p0()
conv()
e("s_branch L_r1")
e.vm = []; e.lg = []
shuffle()
r1()
ffn_setup()
e("v_mov_b32 v8, 64")
wave0(lambda: spin(8, DBG, 96))
e.raw("s_barrier")
stamp("shuf_flag")
prefill(range(6))
ffn(0)
prefill(range(3))
r2()
prefill(range(3, 6))
ffn(1)
finish()
nops = e.pad()

hdr = open("interleave_layers__ssm_conv_h3__glu_gated_geglu__prompt.s.ref").read().split("; Override launch")[0]
out = hdr + f"""; Single persistent launch: 256 workgroups, one per CU, phases chained by counters in d_debug / d_ws.
; @launch grid=(256,1,1) block=(256,1,1) lds={LDS_BYTES}
.amdgcn_target "amdgcn-amd-amdhsa--gfx950"
.text
.globl {NAME}
.p2align 8
.type {NAME},@function
{NAME}:
""" + e.text() + f""".section .rodata,"a"
.p2align 6
.amdhsa_kernel {NAME}
  .amdhsa_next_free_vgpr 512
  .amdhsa_next_free_sgpr 102
  .amdhsa_accum_offset 256
  .amdhsa_group_segment_fixed_size 0
  .amdhsa_kernarg_size 104
  .amdhsa_user_sgpr_count 2
  .amdhsa_user_sgpr_kernarg_segment_ptr 1
  .amdhsa_system_sgpr_workgroup_id_x 1
  .amdhsa_float_denorm_mode_32 3
.end_amdhsa_kernel
"""
open(sys.argv[1], "w").write(out)
import json
json.dump(dict(stamps=stamp_names, KVT=KVT, YB=YB, XN=XN, X3=X3, F1=F1, HB=HB, WGU=WGU, WDP=WDP, PROF=PROF, CNT=CNT), open(sys.argv[1] + ".json", "w"))
print(f"{len(e.ins)} lines, {nops} padded wait states", file=sys.stderr)
```

```python
import sys, math, struct
from emit import Emit

NAME = "interleave_layers__ssm_conv_h3__glu_gated_geglu__prompt_kernel"
OPT = dict(prof=0, nt_in=1, nt_w=1, stop=99, warm=1, shufwait=1, bud=7, bud3=12, bud2=12, lag=44, poll_lead=30, chk0=440, chk1=570, chk2=675, chk3=755, hd=2, wn0=100, x_nodma=0, x_nobar=0, x_nofill=0, passprof=0, xup=10, wd0=100, wd1=640, htouch=1, xtouch=0)
for a in sys.argv[2:]:
    k, v = a.split("="); OPT[k] = int(v)

ACT = 0x280000
CNT = 0; EPO = 0xA000; P0F = 0xA080; PROF = 0x10000
KVT = 0x100000; YB = KVT + ACT; XN = [YB + ACT, YB + 2 * ACT]; X3 = YB + 3 * ACT; F1 = YB + 4 * ACT
HB = [F1 + ACT, F1 + ACT + 0x700000]
WGU = HB[1] + 0x700000; WDP = WGU + 0x460000; WS_END = WDP + 0x230000
WT = 286720
RING = 0; ST_X = 131072; ST_Y = ST_X + 12288; RED = ST_Y + 12288
P0L = 0; F0 = 16384; FCH = 16640; FCP = 4160; U0 = F0 + 4 * FCH; UCH = 4640; YA = U0 + 4 * UCH; YCS = 4624
SHST = 20992
LDS_BYTES = 163840
SPIN_LIMIT = 400000
WS = "s[8:11]"; SA = "s[12:15]"; SB = "s[44:47]"; SC = "s[48:51]"
P_Q, P_K, P_V, P_SHK, P_SSM, P_D, P_WG, P_WU, P_WD, P_OUT, P_DBG, P_WS = 16, 18, 20, 22, 24, 26, 30, 32, 34, 36, 38, 40
sWV, sX, sSLOT, sG, sHF, sMI, sCI, sCGP, sMASK, sRB, sJT = "s52", "s53", "s54", "s55", "s56", "s57", "s58", "s59", "s60", "s61", "s62"
sDV = "s63"; sTAG = "s42"; sNTAG = "s43"
T = [f"s{i}" for i in range(64, 84)]
sSPIN = "s84"; sWB = "s85"; sWO = "s86"; sM0 = "s87"; sH = ["s88", "s89", "s90", "s91"]; sHS = "s92"; sHS3 = "s93"; sWD = "s94"
DBG = f"s[{P_DBG}:{P_DBG+1}]"; WSP = f"s[{P_WS}:{P_WS+1}]"
NT_IN = " nt" if OPT["nt_in"] else ""
NT_W = " nt" if OPT["nt_w"] else ""
BIG = "0x80000000"

e = Emit()
def v(i, n=1): return f"v{i}" if n == 1 else f"v[{i}:{i+n-1}]"
def a(i, n=1): return f"a{i}" if n == 1 else f"a[{i}:{i+n-1}]"
def f32(x): return "0x%08x" % struct.unpack("<I", struct.pack("<f", x))[0]

def srd(dst, ptr, nbytes, add=None):
    d = int(dst[2:dst.index(":")])
    if add is None:
        e(f"s_mov_b32 s{d}, s{ptr}\ns_mov_b32 s{d+1}, s{ptr+1}")
    else:
        e(f"s_add_u32 s{d}, s{ptr}, {add}\ns_addc_u32 s{d+1}, s{ptr+1}, 0")
    e(f"s_mov_b32 s{d+2}, {nbytes}\ns_mov_b32 s{d+3}, 0x20000")

VST = 5
stamp_names = []
def stamp(name):
    if not OPT["prof"]:
        return
    i = stamp_names.index(name) if name in stamp_names else len(stamp_names)
    if name not in stamp_names: stamp_names.append(name)
    e.raw("s_memrealtime s[96:97]\ns_memtime s[98:99]")
    e.wait_all(vm=False)
    e(f"v_writelane_b32 v{VST}, s96, {i}\nv_writelane_b32 v{VST}, s98, {32+i}")

def fstamp(name):
    if not OPT['passprof']: stamp(name)

def spin(vaddr, base, target, vt=6):
    L = e.uid("spin"); D = e.uid("spun")
    e.raw(f"""s_mov_b32 {sSPIN}, 0
    {L}:
    global_load_dword v{vt}, v{vaddr}, {base} sc1
    s_add_u32 {sSPIN}, {sSPIN}, 1
    s_cmp_gt_u32 {sSPIN}, {SPIN_LIMIT}
    s_cbranch_scc1 {D}
    s_waitcnt vmcnt(0)
    v_cmp_gt_u32 vcc, {target}, v{vt}
    s_cbranch_vccnz {L}
    {D}:
    s_waitcnt vmcnt(0)""")

def tag_ready():
    e.wait_all(vm=False)
    e(f"s_add_u32 {sTAG}, {sTAG}, 1\ns_not_b32 {sNTAG}, {sTAG}")

def tag_bad(r, n):
    e.raw(f"v_xor_b32 v{r}, {sTAG}, v{r}\nv_xor_b32 v{r+1}, {sNTAG}, v{r+1}\nv_or_b32 v{r}, v{r}, v{r+1}")
    for k in range(1, n):
        e.raw(f"v_xor_b32 v{r+2*k}, {sTAG}, v{r+2*k}\nv_xor_b32 v{r+2*k+1}, {sNTAG}, v{r+2*k+1}\nv_or3_b32 v{r}, v{r}, v{r+2*k}, v{r+2*k+1}")
    e.raw(f"v_cmp_ne_u32 vcc, 0, v{r}")

def spin_tag(loads, r, n):
    L = e.uid("spin"); D = e.uid("spun")
    e.raw(f"s_mov_b32 {sSPIN}, 0\n{L}:\n{loads}")
    e.raw(f"""s_add_u32 {sSPIN}, {sSPIN}, 1
    s_cmp_gt_u32 {sSPIN}, {SPIN_LIMIT}
    s_cbranch_scc1 {D}
    s_waitcnt vmcnt(0)""")
    tag_bad(r, n)
    e.raw(f"s_cbranch_vccnz {L}\n{D}:\ns_waitcnt vmcnt(0)")

def all_loads(va, vb, r):
    return f"global_load_dwordx4 v[{r}:{r+3}], v{va}, {WSP} sc1\nglobal_load_dwordx4 v[{r+4}:{r+7}], v{vb}, {WSP} sc1"

def all_addr(va, vb):
    e(f"v_add_u32 v{va}, {P0F}, v1\nv_and_b32 v{vb}, 0xf0, v1\nv_add_u32 v{vb}, {P0F+1024}, v{vb}")

def wave0(fn):
    L = e.uid("w0")
    e.raw(f"s_cmp_lg_u32 {sWV}, 0\ns_cbranch_scc1 {L}")
    fn()
    e.raw(f"{L}:")

def wait_flag(vaddr, base, target):
    wave0(lambda: spin(vaddr, base, target))
    e.raw("s_barrier")

def signal(soff, base, vt=6):
    def fn():
        e.raw(f"""s_mov_b64 exec, 1
        v_mov_b32 v{vt}, {soff}
        v_mov_b32 v{vt+1}, 1
        global_atomic_add v{vt}, v{vt+1}, {base} sc1
        s_mov_b64 exec, -1""")
    wave0(fn)

def cnt_off(dst, idx_expr_s, const):
    e(f"s_lshl_b32 {dst}, {idx_expr_s}, 8\ns_add_u32 {dst}, {dst}, {CNT + const * 256 + 128}")

def entry():
    e(f"""s_cmp_ge_u32 s2, 256
    s_cbranch_scc1 L_exit
    s_load_dwordx16 s[16:31], s[0:1], 0
    s_load_dwordx8 s[32:39], s[0:1], 64
    s_load_dwordx2 s[40:41], s[0:1], 96
    v_lshrrev_b32 v2, 6, v0
    v_and_b32 v0, 63, v0
    v_readfirstlane_b32 {sWV}, v2
    s_and_b32 {sX}, s2, 7
    s_lshr_b32 {sSLOT}, s2, 3
    s_lshr_b32 {T[0]}, {sX}, 1
    s_lshl_b32 {T[0]}, {T[0]}, 2
    s_lshr_b32 {T[1]}, {sSLOT}, 3
    s_add_u32 {sG}, {T[0]}, {T[1]}
    s_and_b32 {sHF}, {sX}, 1
    s_and_b32 {sMI}, {sSLOT}, 7
    s_lshl_b32 {T[0]}, {sHF}, 3
    s_add_u32 {sJT}, {T[0]}, {sMI}
    s_lshl_b32 {sRB}, {sG}, 4
    s_add_u32 {sRB}, {sRB}, {sJT}
    s_mov_b32 {sMASK}, 0xffff0000
    v_lshlrev_b32 v1, 4, v0""")
    if OPT["prof"]:
        e(f"v_mov_b32 v{VST}, 0")
    e.wait_all(vm=False)
    e.raw(f"s_load_dword {sTAG}, {WSP}, {EPO}")
    srd(WS, P_WS, WS_END)
    stamp("start")
    e(f"s_cmp_ge_u32 {sSLOT}, 20\ns_cbranch_scc1 L_shuf")

def q_prefetch():
    srd(SC, P_Q, ACT)
    e(f"""v_and_b32 v8, 7, v0
    v_lshrrev_b32 v9, 3, v0
    v_mul_u32_u24 v8, 1280, v8
    v_lshl_add_u32 v8, v9, 4, v8
    s_mul_i32 {T[0]}, {sRB}, 10240
    s_mul_i32 {T[1]}, {sWV}, 320
    s_add_u32 {T[0]}, {T[0]}, {T[1]}
    v_mov_b32 v10, {BIG}
    v_cmp_gt_u32 vcc, 32, v0
    v_cndmask_b32 v10, v10, v8, vcc
    buffer_load_dwordx4 a[240:243], v8, {SC}, {T[0]} offen{NT_IN}
    buffer_load_dwordx4 a[244:247], v8, {SC}, {T[0]} offen offset:128{NT_IN}
    buffer_load_dwordx4 a[248:251], v10, {SC}, {T[0]} offen offset:256{NT_IN}""", tag="q")

def p0():
    KR, VR, WR, WF, KF, AC, VF, PK, HR = 16, 44, 60, 76, 108, 164, 196, 200, 216
    e(f"""s_mul_i32 {sCI}, {sX}, 20
    s_add_u32 {sCI}, {sCI}, {sSLOT}
    s_lshr_b32 {sCGP}, {sCI}, 4
    s_and_b32 {T[0]}, {sCI}, 15
    s_lshl_b32 {T[0]}, {T[0]}, 7
    s_lshl_b32 {T[1]}, {sWV}, 5
    s_add_u32 {T[2]}, {T[0]}, {T[1]}
    s_mul_i32 {T[3]}, {T[2]}, 1280
    s_lshl_b32 {T[4]}, {sCGP}, 7
    s_add_u32 {T[3]}, {T[3]}, {T[4]}
    v_and_b32 v2, 7, v0
    v_lshrrev_b32 v3, 3, v0
    v_mul_u32_u24 v4, 5120, v3
    v_lshl_add_u32 v4, v2, 4, v4
    v_add_u32 v4, {T[3]}, v4
    v_subrev_u32 v8, 3840, v4
    v_mov_b32 v9, {BIG}
    v_cmp_gt_u32 vcc, 1280, v4
    v_cndmask_b32 v8, v8, v9, vcc
    s_lshl_b32 {T[4]}, {sCGP}, 9
    v_lshlrev_b32 v9, 6, v2""")
    srd(SA, P_K, ACT); srd(SB, P_V, ACT); srd(SC, P_SHK, 5120)
    for i in range(3):
        e(f"buffer_load_dwordx4 {v(KR+4*i,4)}, v8, {SA}, 0 offen offset:{1280*i}{NT_IN}", tag=f"k{i}")
    for i in range(4):
        e(f"buffer_load_dwordx4 {v(KR+12+4*i,4)}, v4, {SA}, 0 offen offset:{1280*i}{NT_IN}", tag=f"k{i+3}")
    for i in range(4):
        e(f"buffer_load_dwordx4 {v(WR+4*i,4)}, v9, {SC}, {T[4]} offen offset:{16*i}", tag="shk")
    for i in range(4):
        e(f"buffer_load_dwordx4 {v(VR+4*i,4)}, v4, {SB}, 0 offen offset:{1280*i}{NT_IN}", tag=f"v{i}")
    e(f"""s_lshl_b32 {T[5]}, {sCI}, 2
    s_add_u32 {T[5]}, {T[5]}, {sWV}
    s_lshl_b32 {T[6]}, {T[5]}, 12
    s_lshr_b32 {T[7]}, {T[5]}, 1
    s_lshl_b32 {T[7]}, {T[7]}, 2""")
    e.raw(f"s_load_dword {sDV}, s[{P_D}:{P_D+1}], {T[7]}")
    srd(SA, P_SSM, 4096, add=T[6])
    e("v_subrev_u32 v10, 32, v1\nv_subrev_u32 v11, 16, v1\nv_add_u32 v12, 992, v1")
    e(f"buffer_load_dwordx4 {v(HR,4)}, v10, {SA}, 0 offen{NT_IN}\nbuffer_load_dwordx2 {v(HR+4,2)}, v11, {SA}, 0 offen{NT_IN}", tag="h0")
    for q in range(1, 5):
        e(f"buffer_load_dwordx4 {v(HR+8*q,4)}, v12, {SA}, 0 offen offset:{1024*(q-1)}{NT_IN}", tag=f"h{q}")
        e(f"buffer_load_dwordx2 {v(HR+8*q+4,2)}, v12, {SA}, 0 offen offset:{1024*(q-1)+16}{NT_IN}", tag=f"h{q}")
    def clr():
        e.raw(f"""s_lshl_b32 {T[8]}, {sCI}, 8
        s_mov_b64 exec, 0xffff
        v_mov_b32 v196, 0
        v_mov_b32 v197, 0
        v_mov_b32 v198, 0
        v_mov_b32 v199, 0
        buffer_store_dwordx4 v[196:199], v1, {WS}, {T[8]} offen sc1
        s_mov_b64 exec, -1""")
    wave0(clr)
    e(f"""s_lshl_b32 {T[8]}, {sWV}, 12
    v_lshlrev_b32 v13, 9, v3
    v_sub_u32 v13, {P0L + 28*128}, v13
    v_lshl_add_u32 v13, v2, 4, v13
    v_add_u32 v13, {T[8]}, v13
    v_bfe_u32 v14, v0, 2, 2
    v_lshlrev_b32 v14, 7, v14
    v_lshrrev_b32 v15, 4, v0
    v_lshl_add_u32 v14, v15, 5, v14
    v_and_b32 v15, 3, v0
    v_lshl_add_u32 v14, v15, 3, v14
    v_add_u32 v14, {T[8]}, v14""")
    def unpack(dst, src, n):
        for c in range(n):
            if c & 1: e(f"v_and_b32 v{dst+c}, {sMASK}, v{src+(c>>1)}")
            else: e(f"v_lshlrev_b32 v{dst+c}, 16, v{src+(c>>1)}")
    for i in range(7):
        e.wait(vm=f"k{i}")
        unpack(KF + 8 * i, KR + 4 * i, 8)
    e.wait(vm="shk")
    for c in range(8):
        for tau in range(4):
            src = WR + 2 * c + (tau >> 1)
            if tau & 1: e(f"v_and_b32 v{WF+8*tau+c}, {sMASK}, v{src}")
            else: e(f"v_lshlrev_b32 v{WF+8*tau+c}, 16, v{src}")
    for i in range(4):
        for p in range(4):
            d = v(AC + 8 * i + 2 * p, 2)
            e(f"v_pk_mul_f32 {d}, {v(KF+8*(i+3)+2*p,2)}, {v(WF+2*p,2)}")
        for tau in range(1, 4):
            for p in range(4):
                d = v(AC + 8 * i + 2 * p, 2)
                e(f"v_pk_fma_f32 {d}, {v(KF+8*(i+3-tau)+2*p,2)}, {v(WF+8*tau+2*p,2)}, {d}")
    fstamp("k_done")
    for i in range(4):
        e.wait(vm=f"v{i}")
        unpack(KF, VR + 4 * i, 8)
        for p in range(4):
            d = v(AC + 8 * i + 2 * p, 2)
            e(f"v_pk_mul_f32 {d}, {d}, {v(KF+2*p,2)}")
        for p in range(4):
            e(f"v_cvt_pk_bf16_f32 v{PK+4*i+p}, v{AC+8*i+2*p}, v{AC+8*i+2*p+1}")
        e(f"ds_write_b128 v13, {v(PK+4*i,4)} offset:{128*(3-i)}", tag="w")
    e.wait(lg="w")
    for m in range(4):
        for hh in range(2):
            e(f"ds_read_b64_tr_b16 {v(16+4*m+2*hh,2)}, v14 offset:{(8*m+4*hh)*128}", tag=f"t{m}")
    e(f"""s_sub_u32 {T[8]}, 2016, {T[2]}
    s_lshr_b32 {T[8]}, {T[8]}, 3
    s_mul_i32 {T[8]}, {T[8]}, 10240
    s_lshl_b32 {T[9]}, {sCGP}, 10
    s_add_u32 {T[8]}, {T[8]}, {T[9]}
    s_add_u32 {T[8]}, {T[8]}, {KVT}""")
    for m in range(4):
        e.wait(lg=f"t{m}")
        e(f"buffer_store_dwordx4 {v(16+4*m,4)}, v1, {WS}, {T[8]} offen sc1", tag="st")
        if m < 3: e(f"s_add_u32 {T[8]}, {T[8]}, 10240")
    fstamp("p0_st")
    e.wait(vm="h4")
    fstamp("h_arr")
    e.wait_all()
    fstamp("p0_drain")
    e.raw("s_barrier")
    tag_ready()
    def sig():
        e.raw(f"""s_lshl_b32 {T[8]}, {sCI}, 3
        s_add_u32 {T[8]}, {T[8]}, {P0F}
        s_mov_b64 exec, 1
        v_mov_b32 v6, {T[8]}
        v_mov_b32 v8, {sTAG}
        v_mov_b32 v9, {sNTAG}
        global_store_dwordx2 v6, v[8:9], {WSP} sc1
        s_mov_b64 exec, -1""")
    wave0(sig)
    fstamp("p0_done")
    e(f"s_mul_i32 {T[9]}, {sWV}, {FCH}\ns_add_u32 {T[9]}, {T[9]}, {F0}\nv_add_u32 v13, {T[9]}, v1")
    for q in range(5):
        d = HR + 8 * q
        for j in range(4):
            e(f"v_alignbit_b32 v{16+j}, v{d+j+1}, v{d+j}, 16")
            e(f"v_mov_b32 v{20+j}, v{d+j+1}")
            e(f"v_alignbit_b32 v{24+j}, v{d+j+2}, v{d+j+1}, 16")
        if q == 4: e("s_mov_b64 exec, 3")
        e(f"ds_write_b128 v13, {v(d,4)} offset:{1024*q}", tag="w")
        for sg in range(1, 4):
            e(f"ds_write_b128 v13, {v(12+4*sg,4)} offset:{sg*FCP+1024*q}", tag="w")
        e.wait(lg="w")
    e(f"""s_mul_i32 {T[9]}, {sWV}, {UCH}
    s_add_u32 {T[9]}, {T[9]}, {U0}
    s_mov_b64 exec, -1
    v_add_u32 v13, {T[9]}, v1
    v_mov_b32 v16, 0
    v_mov_b32 v17, 0
    v_mov_b32 v18, 0
    v_mov_b32 v19, 0
    s_mov_b32 exec_lo, -1
    s_mov_b32 exec_hi, 3
    ds_write_b128 v13, v[16:19] offset:4096
    s_mov_b64 exec, -1""", tag="w")
    e(f"""s_and_b32 {T[7]}, {T[5]}, 1
    s_lshl_b32 {T[6]}, {sDV}, 16
    s_and_b32 {sDV}, {sDV}, {sMASK}
    s_cmp_eq_u32 {T[7]}, 0
    s_cselect_b32 {sDV}, {T[6]}, {sDV}
    s_lshl_b32 {T[8]}, {sCGP}, 7
    s_add_u32 {T[8]}, {T[8]}, {P0F}
    v_and_b32 v7, 15, v0
    v_lshlrev_b32 v7, 3, v7
    v_add_u32 v7, {T[8]}, v7""")

def conv():
    AC, GB, FB = 16, (48, 80), 112
    e(f"""v_lshrrev_b32 v8, 2, v0
    v_and_b32 v9, 3, v0
    v_mul_u32_u24 v10, 10240, v8
    v_lshl_add_u32 v10, v9, 4, v10
    v_mul_u32_u24 v11, {UCH}, v9
    v_lshl_add_u32 v11, v8, 4, v11
    s_lshl_b32 {T[0]}, {sWV}, 10
    s_add_u32 {T[0]}, {T[0]}, {U0}
    v_add_u32 v11, {T[0]}, v11
    s_mul_i32 {T[0]}, {sWV}, {64*10240}
    s_lshl_b32 {T[1]}, {sCI}, 6
    s_add_u32 {T[0]}, {T[0]}, {T[1]}
    s_add_u32 {T[0]}, {T[0]}, {KVT}
    v_and_b32 v8, 15, v0
    v_lshrrev_b32 v9, 4, v0
    v_add_u32 v12, 1, v8
    v_and_b32 v13, 3, v12
    v_sub_u32 v12, v12, v13
    v_mul_u32_u24 v13, {FCP}, v13
    v_lshl_add_u32 v12, v12, 1, v13
    v_lshl_add_u32 v12, v9, 4, v12
    s_mul_i32 {T[1]}, {sWV}, {FCH}
    s_add_u32 {T[1]}, {T[1]}, {F0}
    v_add_u32 v2, {T[1]}, v12
    s_mul_i32 {T[1]}, {sWV}, {UCH}
    s_add_u32 {T[1]}, {T[1]}, {U0}
    v_lshlrev_b32 v12, 5, v8
    v_sub_u32 v12, {T[1]}, v12
    v_lshl_add_u32 v3, v9, 4, v12
    v_add_u32 v3, 480, v3
    v_lshlrev_b32 v13, 3, v9
    v_sub_u32 v4, v12, v13
    v_add_u32 v4, 504, v4""")
    e.wait_all(vm=False)
    wave0(lambda: spin_tag(f"global_load_dwordx2 v[14:15], v7, {WSP} sc1", 14, 1))
    e.raw("s_barrier")
    stamp("p0_flag")
    for m in range(4):
        e(f"buffer_load_dwordx4 {v(16+4*m,4)}, v10, {WS}, {T[0]} offen sc1", tag=f"u{m}")
        if m < 3: e(f"s_add_u32 {T[0]}, {T[0]}, {16*10240}")
    for m in range(4):
        e.wait(vm=f"u{m}")
        e(f"ds_write_b128 v11, {v(16+4*m,4)} offset:{256*m}", tag="w")
    e("v_mov_b32 v146, v8\nv_mov_b32 v147, v9")
    q_prefetch()
    e("v_mov_b32 v8, v146\nv_mov_b32 v9, v147")
    e.wait_all(vm=False)
    e.raw("s_barrier")
    fstamp("u_ready")
    seq = []
    for r in range(8):
        for aa in range(8):
            for b in range(7 - aa, -1, -1):
                seq.append((r, aa, b))
    first = {}; last = {}
    for t, (r, aa, b) in enumerate(seq):
        for key in (("F", r, aa), ("G", r, b)):
            first.setdefault(key, t); last[key] = t
    reads = []
    for key, t in first.items():
        kind, r, i = key
        prev = (kind, r - (1 if kind == "F" else 2), i)
        earliest = last[prev] + 1 if prev in last else -99
        if kind == "F":
            for h in range(2):
                reads.append((t, earliest, f"ds_read_b64 {v(FB+4*i+2*h,2)}, v2 offset:{512*i+64*r+8*h}", key))
        else:
            reads.append((t, earliest, f"ds_read_b128 {v(GB[r&1]+4*i,4)}, v3 offset:{512*(7-i)+64*r}", key))
    reads.sort(key=lambda x: x[0])
    LOOK = 22; ri = 0
    done_acc = set()
    for t, (r, aa, b) in enumerate(seq):
        n = 0
        while ri < len(reads) and reads[ri][1] <= t and (reads[ri][0] - t <= 6 or (n < 1 and reads[ri][0] - t <= LOOK)):
            e(reads[ri][2], tag=reads[ri][3]); ri += 1; n += 1
        e.wait(lg=[("F", r, aa), ("G", r, b)])
        acc = v(AC + 4 * (aa + b), 4)
        c = acc if (aa + b) in done_acc else "0"
        done_acc.add(aa + b)
        e(f"v_mfma_f32_16x16x32_bf16 {acc}, {v(FB+4*aa,4)}, {v(GB[r&1]+4*b,4)}, {c}")
    assert ri == len(reads)
    fstamp("conv_mfma")
    all_addr(144, 145)
    e(all_loads(144, 145, 148), tag="all")
    for n in range(8):
        e(f"ds_read_b64 {v(48+2*n,2)}, v4 offset:{512*(7-n)}", tag=f"kv{n}")
    e(f"""v_lshrrev_b32 v10, 1, v8
    v_mul_u32_u24 v10, 72, v10
    v_and_b32 v11, 1, v8
    v_lshl_add_u32 v10, v11, 4, v10
    v_lshl_add_u32 v10, v9, 2, v10
    s_mul_i32 {T[1]}, {sWV}, {YCS}
    s_add_u32 {T[1]}, {T[1]}, {YA}
    v_add_u32 v10, {T[1]}, v10
    v_lshrrev_b32 v11, 2, v8
    v_mul_u32_u24 v11, {YCS}, v11
    v_mul_u32_u24 v12, 72, v9
    v_add_u32 v11, v11, v12
    v_and_b32 v12, 3, v8
    v_lshl_add_u32 v11, v12, 3, v11
    s_mul_i32 {T[1]}, {sWV}, {72*16}
    s_add_u32 {T[1]}, {T[1]}, {YA}
    v_add_u32 v11, {T[1]}, v11
    v_lshrrev_b32 v12, 3, v0
    v_mul_u32_u24 v12, 20480, v12
    v_and_b32 v13, 7, v0
    v_lshl_add_u32 v12, v13, 4, v12
    s_mul_i32 {T[0]}, {sWV}, {32*20480}
    s_lshl_b32 {T[1]}, {sCI}, 7
    s_add_u32 {T[0]}, {T[0]}, {T[1]}
    s_add_u32 {T[0]}, {T[0]}, {YB}""")
    for n in range(8):
        e.wait(lg=f"kv{n}")
        d0, d1 = 48 + 2 * n, 49 + 2 * n
        e(f"""v_and_b32 v64, {sMASK}, v{d1}
        v_lshlrev_b32 v65, 16, v{d1}
        v_and_b32 v66, {sMASK}, v{d0}
        v_lshlrev_b32 v67, 16, v{d0}""")
        for k in range(4):
            e(f"v_fmac_f32 v{AC+4*n+k}, {sDV}, v{64+k}")
        e(f"v_cvt_pk_bf16_f32 v{68+2*n}, v{AC+4*n}, v{AC+4*n+2}\nv_cvt_pk_bf16_f32 v{69+2*n}, v{AC+4*n+1}, v{AC+4*n+3}")
        e(f"ds_write_b32 v10, v{68+2*n} offset:{576*n}\nds_write_b32 v10, v{69+2*n} offset:{576*n+32}", tag="w")
    e.wait_all(vm=False)
    e.raw("s_barrier")
    for m in range(4):
        for par in range(2):
            e(f"ds_read_b64_tr_b16 {v(16+4*m+2*par,2)}, v11 offset:{288*m+32*par}", tag=f"t{m}")
    for m in range(4):
        e.wait(lg=f"t{m}")
        e(f"buffer_store_dwordx4 {v(16+4*m,4)}, v12, {WS}, {T[0]} offen sc1", tag="st")
        if m < 3: e(f"s_add_u32 {T[0]}, {T[0]}, {8*20480}")
    e.wait_all()
    e.raw("s_barrier")
    def sig():
        e.raw(f"""s_lshl_b32 {T[0]}, {sCGP}, 12
        s_add_u32 {T[0]}, {T[0]}, {CNT + 256}
        s_mov_b64 exec, 0xff
        v_lshlrev_b32 v6, 8, v0
        v_add_u32 v6, {T[0]}, v6
        v_mov_b32 v7, 1
        global_atomic_add v6, v7, {WSP} sc1
        s_mov_b64 exec, -1""")
    wave0(sig)
    L = e.uid("allok")
    tag_bad(148, 4)
    e.raw(f"s_cbranch_vccz {L}")
    spin_tag(all_loads(144, 145, 148), 148, 4)
    e.raw(f"{L}:")
    stamp("conv_done")

def shuffle():
    e.label("L_shuf")
    e(f"""s_mul_i32 {sCI}, {sX}, 12
    s_add_u32 {sCI}, {sCI}, {sSLOT}
    s_sub_u32 {sCI}, {sCI}, 20""")
    q_prefetch()
    e(f"s_lshl_b32 {T[0]}, {sCI}, 2\ns_add_u32 {T[0]}, {T[0]}, {sWV}")
    if OPT["warm"]:
        e(f"""s_getpc_b64 s[96:97]
        L_pc:
        s_sub_u32 s96, s96, L_pc-{NAME}
        s_subb_u32 s97, s97, 0
        s_sub_u32 {T[1]}, {sSLOT}, 20
        s_lshl_b32 {T[1]}, {T[1]}, 2
        s_add_u32 {T[1]}, {T[1]}, {sWV}
        s_lshl_b32 {T[1]}, {T[1]}, 11
        v_and_b32 v8, 15, v0
        v_lshlrev_b32 v8, 7, v8
        v_add_u32 v8, {T[1]}, v8
        v_min_u32 v8, L_exit-{NAME}, v8
        global_load_dword v9, v8, s[96:97]""", tag="warm")
    L = e.uid("nz")
    e.raw(f"""s_cmp_ge_u32 {T[0]}, 160
    s_cbranch_scc1 {L}
    s_mul_i32 {T[1]}, {T[0]}, 1639
    s_lshr_b32 {T[1]}, {T[1]}, 16
    s_mul_i32 {T[2]}, {T[1]}, 40
    s_sub_u32 {T[2]}, {T[0]}, {T[2]}
    s_lshl_b32 {T[2]}, {T[2]}, 10
    s_mul_i32 {T[3]}, {T[1]}, {WT}
    s_add_u32 {T[3]}, {T[3]}, {T[2]}
    s_add_u32 {T[3]}, {T[3]}, {WGU + 12*WT + 240*1024}
    v_mov_b32 v16, 0
    v_mov_b32 v17, 0
    v_mov_b32 v18, 0
    v_mov_b32 v19, 0
    buffer_store_dwordx4 v[16:19], v1, {WS}, {T[3]} offen sc1
    {L}:""")
    tag_ready()
    e(f"""s_mul_i32 {T[1]}, {sWV}, {SHST}
    v_lshrrev_b32 v2, 3, v0
    v_and_b32 v3, 7, v0
    v_lshrrev_b32 v8, 4, v0
    v_bfe_u32 v9, v0, 2, 2
    v_and_b32 v10, 3, v0
    v_lshl_add_u32 v8, v8, 3, v9""")
    if OPT["shufwait"]:
        e.wait_all()
    fstamp("shuf_go")
    e(f"s_cmp_ge_u32 {T[0]}, 270\ns_cbranch_scc1 L_shuf_wd")
    srd(SA, P_WG, 640 * 3456); srd(SB, P_WU, 640 * 3456)
    e(f"""s_mul_i32 {T[2]}, {T[0]}, 6554
    s_lshr_b32 {T[2]}, {T[2]}, 16
    s_mul_i32 {T[3]}, {T[2]}, 10
    s_sub_u32 {T[3]}, {T[0]}, {T[3]}
    s_mul_i32 {T[4]}, {T[3]}, {64*3456}
    s_lshl_b32 {T[5]}, {T[2]}, 7
    s_add_u32 {T[4]}, {T[4]}, {T[5]}
    v_mul_u32_u24 v4, 3456, v2
    v_lshl_add_u32 v4, v3, 4, v4""")
    for m in range(8):
        e(f"buffer_load_dwordx4 {v(16+8*m,4)}, v4, {SA}, {T[4]} offen{NT_W}", tag=f"l{m}")
        e(f"buffer_load_dwordx4 {v(20+8*m,4)}, v4, {SB}, {T[4]} offen{NT_W}", tag=f"l{m}")
        if m < 7: e(f"s_add_u32 {T[4]}, {T[4]}, {8*3456}")
    e(f"""v_mul_u32_u24 v11, 272, v2
    v_lshl_add_u32 v11, v3, 4, v11
    v_add_u32 v11, {T[1]}, v11
    v_mul_u32_u24 v12, 272, v8
    v_add_u32 v12, {T[1]}, v12
    s_cmp_lt_u32 {T[2]}, 24
    s_cselect_b32 {T[4]}, 4, 3
    v_lshlrev_b32 v10, {T[4]}, v10
    v_add_u32 v12, v12, v10
    s_cselect_b32 {T[4]}, 8, 32
    v_add_u32 v13, {T[4]}, v12
    v_add_u32 v14, 64, v12
    v_add_u32 v15, 64, v13
    s_cselect_b32 {T[8]}, 4, 2
    s_lshl_b32 {T[8]}, {T[8]}, 10""")
    for m in range(8):
        e.wait(vm=f"l{m}")
        e(f"ds_write_b128 v11, {v(16+8*m,4)} offset:{m*2176}\nds_write_b128 v11, {v(20+8*m,4)} offset:{m*2176+128}", tag="w")
    e.wait(lg="w")
    for fi in range(4):
        for ss in range(2):
            for mat in range(2):
                for hh in range(2):
                    e(f"ds_read_b64_tr_b16 {v(16+16*fi+8*ss+4*mat+2*hh,2)}, v{12+fi} offset:{(32*ss+4*hh)*272+128*mat}", tag=f"t{fi}")
        e(f"""s_lshl_b32 {T[4]}, {T[2]}, 1
        s_add_u32 {T[4]}, {T[4]}, {fi >> 1}
        s_mul_i32 {T[5]}, {T[4]}, 21846
        s_lshr_b32 {T[5]}, {T[5]}, 16
        s_mul_i32 {T[6]}, {T[5]}, 3
        s_sub_u32 {T[6]}, {T[4]}, {T[6]}
        s_mul_i32 {T[6]}, {T[6]}, 80
        s_add_u32 {T[6]}, {T[6]}, {2 * (fi & 1)}
        s_lshl_b32 {T[4]}, {T[2]}, 2
        s_sub_u32 {T[4]}, {T[4]}, {96 - fi}
        s_cmp_lt_u32 {T[2]}, 24
        s_cselect_b32 {T[5]}, {T[5]}, {T[4]}
        s_cselect_b32 {T[6]}, {T[6]}, 240
        s_mul_i32 {T[5]}, {T[5]}, {WT}
        s_lshl_b32 {T[6]}, {T[6]}, 10
        s_add_u32 {T[7]}, {T[5]}, {T[6]}
        s_lshl_b32 {T[9]}, {T[3]}, 1
        s_mul_i32 {T[9]}, {T[9]}, {T[8]}
        s_add_u32 {T[7]}, {T[7]}, {T[9]}
        s_add_u32 {T[7]}, {T[7]}, {WGU}""")
        e.wait(lg=f"t{fi}")
        for ss in range(2):
            for mat in range(2):
                e(f"buffer_store_dwordx4 {v(16+16*fi+8*ss+4*mat,4)}, v1, {WS}, {T[7]} offen offset:{1024*mat} sc1", tag="st")
            if ss == 0: e(f"s_add_u32 {T[7]}, {T[7]}, {T[8]}")
    e.wait_all()
    e("s_branch L_shuf_end")
    e.label("L_shuf_wd")
    e(f"s_cmp_ge_u32 {T[0]}, 382\ns_cbranch_scc1 L_shuf_end")
    srd(SA, P_WD, 1728 * 1280)
    e(f"""s_sub_u32 {T[2]}, {T[0]}, 270
    s_and_b32 {T[3]}, {T[2]}, 1
    s_lshr_b32 {T[2]}, {T[2]}, 1
    s_mul_i32 {T[4]}, {T[2]}, 4682
    s_lshr_b32 {T[4]}, {T[4]}, 16
    s_mul_i32 {T[5]}, {T[4]}, 14
    s_sub_u32 {T[5]}, {T[2]}, {T[5]}
    s_and_b32 {T[6]}, {T[5]}, 3
    s_lshl_b32 {T[9]}, {T[4]}, 2
    s_add_u32 {T[7]}, {T[9]}, {T[6]}
    s_mul_i32 {T[7]}, {T[7]}, 3
    s_lshr_b32 {T[8]}, {T[5]}, 2
    s_add_u32 {T[7]}, {T[7]}, {T[8]}
    s_lshl_b32 {T[8]}, {T[4]}, 1
    s_add_u32 {T[8]}, {T[8]}, {T[6]}
    s_add_u32 {T[8]}, {T[8]}, 48
    s_cmp_ge_u32 {T[5]}, 12
    s_cselect_b32 {T[7]}, {T[8]}, {T[7]}
    s_mul_i32 {T[6]}, {T[7]}, {32*1280}
    s_mul_i32 {T[9]}, {T[3]}, 640
    s_add_u32 {T[6]}, {T[6]}, {T[9]}
    v_mul_u32_u24 v4, 1280, v2
    v_lshl_add_u32 v4, v3, 4, v4
    v_add_u32 v11, {T[6]}, v4
    v_add_u32 v12, 10240, v11
    v_add_u32 v13, 20480, v11
    v_add_u32 v14, 30720, v11""")
    for rb4 in range(4):
        for ln in range(5):
            e(f"buffer_load_dwordx4 {v(16+20*rb4+4*ln,4)}, v{11+rb4}, {SA}, 0 offen offset:{128*ln}{NT_W}", tag=f"l{rb4}")
    e(f"""v_mul_u32_u24 v4, 656, v2
    v_lshl_add_u32 v4, v3, 4, v4
    v_add_u32 v4, {T[1]}, v4
    v_mul_u32_u24 v15, 656, v8
    v_add_u32 v15, {T[1]}, v15
    v_lshl_add_u32 v2, v10, 4, v15
    v_lshl_add_u32 v3, v10, 3, v15
    s_mul_i32 {T[6]}, {T[3]}, {4*WT}
    s_mul_i32 {T[7]}, {T[4]}, 71680
    s_add_u32 {T[6]}, {T[6]}, {T[7]}
    s_mul_i32 {T[7]}, {T[5]}, 5120
    s_add_u32 {T[6]}, {T[6]}, {T[7]}
    s_add_u32 {T[6]}, {T[6]}, {WDP}""")
    for rb4 in range(4):
        e.wait(vm=f"l{rb4}")
        for ln in range(5):
            e(f"ds_write_b128 v4, {v(16+20*rb4+4*ln,4)} offset:{rb4*8*656+128*ln}", tag="w")
    e.wait(lg="w")
    for ct in range(4):
        for tau in range(5):
            base = 32 * (tau >> 1) + 4 * (tau & 1) if tau < 4 else 64
            for hh in range(2):
                e(f"ds_read_b64_tr_b16 {v(16+20*ct+4*tau+2*hh,2)}, v{2 if tau < 4 else 3} offset:{4*hh*656+2*(80*ct+base)}", tag=f"t{ct}")
        e.wait(lg=f"t{ct}")
        for tau in range(4):
            e(f"buffer_store_dwordx4 {v(16+20*ct+4*tau,4)}, v1, {WS}, {T[6]} offen offset:{1024*tau} sc1", tag="st")
        e(f"s_add_u32 {T[7]}, {T[6]}, 4096")
        e(f"buffer_store_dwordx4 {v(16+20*ct+16,4)}, v1, {WS}, {T[7]} offen sc1", tag="st")
        e(f"s_add_u32 {T[6]}, {T[6]}, {WT}")
    e.label("L_shuf_end")
    e.wait_all()
    e.raw("s_barrier")
    signal("64", DBG)
    all_addr(144, 145)
    spin_tag(all_loads(144, 145, 148), 148, 4)
    fstamp("shuf_done")

XV, YV, RAW, NV = 16, 40, 64, 88
def unpack24(dst, src):
    for c in range(24):
        if c & 1: e(f"v_and_b32 v{dst+c}, {sMASK}, v{src+(c>>1)}")
        else: e(f"v_lshlrev_b32 v{dst+c}, 16, v{src+(c>>1)}")

def row_stats(x, area):
    e(f"v_pk_add_f32 v[112:113], {v(x,2)}, {v(x+2,2)}\nv_pk_mul_f32 v[114:115], {v(x,2)}, {v(x,2)}")
    e(f"v_pk_fma_f32 v[114:115], {v(x+2,2)}, {v(x+2,2)}, v[114:115]")
    for p in range(2, 12):
        e(f"v_pk_add_f32 v[112:113], v[112:113], {v(x+2*p,2)}")
        e(f"v_pk_fma_f32 v[114:115], {v(x+2*p,2)}, {v(x+2*p,2)}, v[114:115]")
    e("""v_add_f32 v112, v112, v113
    v_add_f32 v113, v114, v115
    v_add_f32_dpp v112, v112, v112 row_ror:8 row_mask:0xf bank_mask:0xf
    v_add_f32_dpp v113, v113, v113 row_ror:8 row_mask:0xf bank_mask:0xf""")
    for sw in ("v_permlane16_swap_b32", "v_permlane32_swap_b32"):
        e(f"""v_mov_b32 v114, v112
        v_mov_b32 v115, v113
        {sw} v112, v114
        {sw} v113, v115
        v_add_f32 v112, v112, v114
        v_add_f32 v113, v113, v115""")
    e(f"s_mov_b64 exec, 0xff\nds_write_b64 v13, v[112:113] offset:{area}\ns_mov_b64 exec, -1", tag="w")
    e.wait_all(vm=False)
    e.raw("s_barrier")
    e(f"ds_read_b128 v[112:115], v14 offset:{area}\nds_read_b128 v[116:119], v14 offset:{area+16}", tag="r")
    e.wait(lg="r")
    e(f"""v_pk_add_f32 v[112:113], v[112:113], v[114:115]
    v_pk_add_f32 v[116:117], v[116:117], v[118:119]
    v_pk_add_f32 v[112:113], v[112:113], v[116:117]
    v_mul_f32 v112, {f32(1/640)}, v112
    v_mul_f32 v113, {f32(1/640)}, v113
    v_fma_f32 v113, -v112, v112, v113
    v_max_f32 v113, 0, v113
    v_add_f32 v113, {f32(1e-5)}, v113
    v_rsq_f32 v120, v113
    v_mul_f32 v121, v112, v120
    v_sub_f32 v121, 0, v121""")

def normalise(dst, x):
    for p in range(12):
        e(f"v_pk_fma_f32 {v(dst+2*p,2)}, {v(x+2*p,2)}, v[120:121], v[120:121] op_sel:[0,0,1] op_sel_hi:[1,0,1]")

def r_addr():
    e(f"""v_and_b32 v8, 7, v0
    v_lshrrev_b32 v9, 3, v0
    s_mul_i32 {T[0]}, {sWV}, 20
    v_add_u32 v9, {T[0]}, v9
    v_lshlrev_b32 v10, 8, v9
    v_lshl_add_u32 v10, v8, 4, v10
    v_add_u32 v11, 2048, v10
    v_add_u32 v12, 4096, v10
    v_mov_b32 v15, {BIG}
    v_cmp_gt_u32 vcc, 32, v0
    v_cndmask_b32 v12, v15, v12, vcc
    v_lshlrev_b32 v14, 5, v8
    v_add_u32 v14, {RED}, v14
    s_lshl_b32 {T[0]}, {sWV}, 3
    v_add_u32 v13, {T[0]}, v14
    s_lshr_b32 {T[1]}, {sRB}, 1
    s_mul_i32 {T[1]}, {T[1]}, 20480
    s_and_b32 {T[2]}, {sRB}, 1
    s_lshl_b32 {T[2]}, {T[2]}, 7
    s_add_u32 {T[1]}, {T[1]}, {T[2]}
    s_lshl_b32 {T[2]}, {sWV}, 10
    v_add_u32 v4, {T[2]}, v1""")

def r_finish(layer):
    row_stats(XV, 256)
    normalise(NV, XV)
    for p in range(12):
        e(f"v_cvt_pk_bf16_f32 v{RAW+p}, v{NV+2*p}, v{NV+2*p+1}")
    e(f"s_add_u32 {T[2]}, {T[1]}, {XN[layer]}")
    for it in range(3):
        e(f"buffer_store_dwordx4 {v(RAW+4*it,4)}, v{10+it}, {WS}, {T[2]} offen sc1", tag="st")
    for p in range(12):
        e(f"v_cvt_pk_bf16_f32 v{RAW+12+p}, v{XV+2*p}, v{XV+2*p+1}")
    if layer == 0:
        for it in range(3):
            e(f"ds_write_b128 v4, {v(RAW+12+4*it,4)} offset:{ST_X-131072+4096*it}", tag="w")
    else:
        e(f"s_add_u32 {T[2]}, {T[1]}, {X3}")
        for it in range(3):
            e(f"buffer_store_dwordx4 {v(RAW+12+4*it,4)}, v{10+it}, {WS}, {T[2]} offen sc1", tag="st")
    e.wait_all()
    e.raw("s_barrier")
    cnt_off(T[0], sG, 16 * layer)
    signal(T[0], WSP)
    e(f"v_mov_b32 v7, {T[0]}")

def r1():
    e.label("L_r1")
    r_addr()
    e("v_add_u32 v4, 131072, v4")
    e(f"""v_lshlrev_b32 v2, 8, v9
    v_lshl_add_u32 v2, v8, 3, v2
    v_add_u32 v3, 4096, v2
    v_cndmask_b32 v3, v15, v3, vcc
    s_lshr_b32 {T[3]}, {sRB}, 1
    s_mul_i32 {T[3]}, {T[3]}, 20480
    s_and_b32 {T[4]}, {sRB}, 1
    s_lshl_b32 {T[4]}, {T[4]}, 6
    s_add_u32 {T[3]}, {T[3]}, {T[4]}
    s_add_u32 {T[3]}, {T[3]}, {YB}""")
    e.wait_all()
    for i in range(12):
        e(f"v_accvgpr_read_b32 v{RAW+i}, a{240+i}")
    unpack24(XV, RAW)
    row_stats(XV, 0)
    normalise(NV, XV)
    e(f"s_lshl_b32 {T[4]}, {sX}, 8\ns_add_u32 {T[4]}, {T[4]}, {CNT + 256}\nv_min_u32 v7, 9, v0\nv_lshlrev_b32 v7, 12, v7\nv_add_u32 v7, {T[4]}, v7")
    wait_flag(7, WSP, 16)
    stamp("conv_flag")
    for it in range(3):
        for h in range(2):
            va, off = (2, 2048 * it + 128 * h) if it < 2 else (3, 128 * h)
            e(f"buffer_load_dwordx2 {v(RAW+4*it+2*h,2)}, v{va}, {WS}, {T[3]} offen offset:{off} sc1", tag="y")
    e.wait(vm="y")
    for it in range(3):
        e(f"ds_write_b128 v4, {v(RAW+4*it,4)} offset:{ST_Y-131072+4096*it}", tag="w")
    unpack24(YV, RAW)
    for p in range(12):
        e(f"v_pk_fma_f32 {v(XV+2*p,2)}, {v(NV+2*p,2)}, {v(YV+2*p,2)}, {v(XV+2*p,2)}")
    r_finish(0)
    stamp("r1_done")

def r2():
    r_addr()
    e("v_add_u32 v4, 131072, v4")
    for it in range(3):
        e(f"ds_read_b128 {v(RAW+4*it,4)}, v4 offset:{ST_X-131072+4096*it}", tag="x")
    for it in range(3):
        e(f"ds_read_b128 {v(RAW+12+4*it,4)}, v4 offset:{ST_Y-131072+4096*it}", tag="x")
    e.wait(lg="x")
    unpack24(XV, RAW)
    unpack24(YV, RAW + 12)
    e(f"s_add_u32 {T[2]}, {T[1]}, {F1}")
    e.wait_all()
    wait_flag(7, WSP, 8)
    stamp("f_flag")
    for it in range(3):
        e(f"buffer_load_dwordx4 {v(RAW+4*it,4)}, v{10+it}, {WS}, {T[2]} offen sc1", tag="f")
    e.wait(vm="f")
    unpack24(NV, RAW)
    for p in range(12):
        e(f"v_pk_add_f32 {v(XV+2*p,2)}, {v(XV+2*p,2)}, {v(NV+2*p,2)}")
    row_stats(XV, 0)
    normalise(NV, XV)
    for p in range(12):
        e(f"v_pk_fma_f32 {v(XV+2*p,2)}, {v(NV+2*p,2)}, {v(YV+2*p,2)}, {v(XV+2*p,2)}")
    r_finish(1)
    stamp("r2_done")

XR = 16; ACC = (176, 208); WB0 = 220; NWB = 8; PD = 6; NRES = 11
C1 = -2.0 * math.sqrt(2.0 / math.pi) * math.log2(math.e); C2 = C1 * 0.044715

def dma_stage(sg):
    out = [f"s_add_u32 {sWO}, {sWB}, {sg*16384}", f"s_add_u32 m0, {sM0}, {(sg & 7)*16384}"]
    out += [(f"buffer_load_dwordx4 v1, {WS}, {sWO} offen offset:{1024*d} sc1 lds", f"dma{sg}") for d in range(4)]
    return out

def put(item):
    if isinstance(item, tuple): e(item[0], tag=item[1])
    elif callable(item): item()
    else: e(item)

def prefill(stages):
    for sg in stages:
        for it in dma_stage(sg): put(it)

def ffn_setup():
    e(f"""s_mul_i32 {sWB}, {sJT}, {WT}
    s_lshl_b32 {sM0}, {sWV}, 12
    s_add_u32 {sWB}, {sWB}, {sM0}
    s_add_u32 {sWB}, {sWB}, {WGU}
    s_mul_i32 {sWD}, {sMI}, {WT}
    s_mul_i32 {T[0]}, {sWV}, 71680
    s_add_u32 {sWD}, {sWD}, {T[0]}
    s_add_u32 {sWD}, {sWD}, {WDP}""")

def geglu(g, u, n, outq):
    L = []
    if OPT["x_nofill"]: return L
    for z0 in range(0, n, 2):
        zs = (z0, z0 + 1)
        L += [f"v_mul_f32 v{8+(z&3)}, v{g+z}, v{g+z}" for z in zs]
        L += [f"v_mul_f32 v{u+z}, v{g+z}, v{u+z}" for z in zs]
        L += [f"v_fmaak_f32 v{8+(z&3)}, v4, v{8+(z&3)}, {f32(C1)}" for z in zs]
        L += [f"v_mul_f32 v{g+z}, v{g+z}, v{8+(z&3)}" for z in zs]
        L += [f"v_exp_f32 v{g+z}, v{g+z}" for z in zs]
        L += [f"v_add_f32 v{g+z}, 1.0, v{g+z}" for z in zs]
        L += [f"v_rcp_f32 v{g+z}, v{g+z}" for z in zs]
        L += [f"v_mul_f32 v{u+z}, v{u+z}, v{g+z}" for z in zs]
        L += [f"v_cvt_pk_bf16_f32 v{outq+(z0>>1)}, v{u+z0}, v{u+z0+1}"]
    return L

def cost(item):
    s = item[0] if isinstance(item, tuple) else item
    if callable(s): return 8
    if s.startswith(("v_exp", "v_rcp")): return 8
    if s.startswith("s_"): return 2
    return 4

def check_or_spin(vt, vaddr, target):
    def fn():
        L = e.uid("rdy")
        e.wait(vm=f"poll{vt}")
        keep = list(e.vm)
        e.raw(f"v_cmp_gt_u32 vcc, {target}, v{vt}\ns_cbranch_vccz {L}")
        spin(vaddr, WSP, target, vt)
        e.raw(f"{L}:")
        e.vm = keep
    return fn

HF = 16
WNQ = list(range(160, 176, 4)) + list(range(224, 240, 4)) + list(range(176, 204, 4))
def acc2(tau, ri): return 80 + 4 * (ri * 5 + tau)
def wdreg(fr): return a(4 * fr, 4) if fr < 5 * NRES else v(WNQ[fr - 5 * NRES], 4)
sX0, sX1, sHC, sWDO, sTMP, sHT = T[10], T[11], T[12], T[13], T[14], T[15]
sHS1 = T[16]

def ffn(layer):
    H = HB[layer]
    e(f"""v_add_u32 v2, 0x10000, v1
    v_mov_b32 v4, {f32(C2)}
    v_bfe_u32 v8, v0, 4, 1
    v_mul_u32_u24 v3, 57344, v8
    v_lshrrev_b32 v8, 5, v0
    v_lshl_add_u32 v3, v8, 8, v3
    v_and_b32 v8, 15, v0
    v_lshl_add_u32 v3, v8, 4, v3
    s_lshl_b32 {T[0]}, {sG}, 3
    s_lshl_b32 {T[1]}, {sWV}, 1
    s_add_u32 {T[1]}, {T[1]}, {T[0]}
    s_mul_i32 {sX0}, {T[1]}, 20480
    s_add_u32 {sX0}, {sX0}, {XN[layer]}
    s_add_u32 {sX1}, {sX0}, 20480
    s_mul_i32 {T[1]}, {T[1]}, 57344
    s_lshr_b32 {T[2]}, {sJT}, 2
    s_mul_i32 {T[2]}, {T[2]}, 14336
    s_add_u32 {T[1]}, {T[1]}, {T[2]}
    s_add_u32 {T[1]}, {T[1]}, {H}
    s_and_b32 {T[2]}, {sJT}, 3
    s_lshl_b32 {T[3]}, {T[2]}, 10
    s_add_u32 {sHS}, {T[1]}, {T[3]}
    s_add_u32 {sHS1}, {sHS}, 57344
    s_lshl_b32 {T[3]}, {T[2]}, 9
    s_add_u32 {sHS3}, {T[1]}, {T[3]}
    s_add_u32 {sHS3}, {sHS3}, 12288
    s_lshl_b32 {T[1]}, {sHF}, 2
    s_add_u32 {T[0]}, {T[0]}, {T[1]}
    s_mul_i32 {T[2]}, {sWV}, 14336
    s_add_u32 {T[2]}, {T[2]}, {H}""")
    for ri in range(4):
        e(f"""s_add_u32 {T[1]}, {sWV}, {ri}
        s_and_b32 {T[1]}, {T[1]}, 3
        s_add_u32 {T[1]}, {T[1]}, {T[0]}
        s_mul_i32 {T[1]}, {T[1]}, 57344
        s_add_u32 {sH[ri]}, {T[1]}, {T[2]}""")
    e(f"""s_and_b32 {T[1]}, {sMI}, 1
    s_lshl_b32 {T[1]}, {T[1]}, 1
    s_add_u32 {T[1]}, {T[1]}, {T[0]}
    s_lshr_b32 {T[2]}, {sWV}, 1
    s_add_u32 {T[1]}, {T[1]}, {T[2]}
    s_mul_i32 {sHT}, {T[1]}, 57344
    s_lshr_b32 {T[1]}, {sMI}, 1
    s_mul_i32 {T[1]}, {T[1]}, 14336
    s_add_u32 {sHT}, {sHT}, {T[1]}
    s_add_u32 {sHT}, {sHT}, {H}
    s_and_b32 {T[1]}, {sWV}, 1
    s_lshl_b32 {T[2]}, {T[1]}, 11
    v_lshlrev_b32 v250, 7, v8
    v_and_b32 v251, 0x380, v250
    v_add_u32 v250, {T[2]}, v250
    s_lshl_b32 {T[2]}, {T[1]}, 10
    v_add_u32 v251, {T[2]}, v251
    s_mul_i32 {sHC}, {sG}, 3""")
    cnt_off(sHC, sHC, 64 + 48 * layer)
    e(f"v_mov_b32 v244, {sHC}\nv_add_u32 v245, 64, v244\nv_add_u32 v246, 256, v244\nv_add_u32 v248, 512, v244")
    e.wait_all()
    wait_flag(7, WSP, 16)
    stamp(f"xn_flag{layer}")

    def xload(i):
        s_, rt = i >> 1, i & 1
        L = [(f"buffer_load_dwordx4 {v(XR+4*i,4)}, v1, {WS}, {(sX0, sX1)[rt]} offen offset:{1024*(s_&3)} sc1", f"x{i}")]
        if s_ & 3 == 3 and s_ < 19: L.append(f"s_add_u32 {(sX0, sX1)[rt]}, {(sX0, sX1)[rt]}, 4096")
        return L
    def wread(fr):
        addr = (fr & 127) * 1024
        e(f"ds_read_b128 {a(WB0+4*(fr%NWB),4)}, v{1 if addr < 65536 else 2} offset:{addr & 65535}", tag=f"w{fr}")
    def hload(ks, ri):
        return (f"buffer_load_dwordx4 {v(HF+16*(ks&3)+4*ri,4)}, v1, {WS}, {sH[ri]} offen offset:{1024*(ks&3)} sc1", f"h{ks}_{ri}")
    def wdload(fr):
        L = []
        if fr & 3 == 0 or fr == 5 * NRES: L.append(f"s_add_u32 {sWDO}, {sWD}, {(fr & ~3)*1024}")
        L.append((f"buffer_load_dwordx4 {wdreg(fr)}, v1, {WS}, {sWDO} offen offset:{1024*(fr&3)} sc1", f"wd{fr}"))
        return L
    def htouch(p):
        if not OPT["htouch"]: return []
        return [f"s_add_u32 {sTMP}, {sHT}, {4096*p}", (f"buffer_load_dword v249, v{250 if p < 3 else 251}, {WS}, {sTMP} offen sc1", "touch")]
    def sig_h(pi):
        e(f"s_add_u32 {sTMP}, {sHC}, {(0, 64, 256, 512)[pi]}")
        signal(sTMP, WSP)

    G2 = 560
    fill = []
    def add(slot, items):
        for it in items: fill.append((slot, it))
    side = {}
    def at(slot, items): side.setdefault(slot, []).extend(items)
    for p in range(3):
        s0 = 160 * (p + 1) + 4
        for rt in range(2):
            base = ACC[p & 1] + 16 * rt; q = (12, 240)[rt]
            add(s0, geglu(base, base + 8, 8, q))
            add(s0, [(f"buffer_store_dwordx4 {v(q,4)}, v1, {WS}, {(sHS, sHS1)[rt]} offen sc1", f"hs{p}")])
        if p < 2: add(s0, [f"s_add_u32 {sHS}, {sHS}, 4096", f"s_add_u32 {sHS1}, {sHS1}, 4096"])
    add(G2 + 4, geglu(ACC[1], ACC[1] + 4, 4, 12) + geglu(ACC[1] + 8, ACC[1] + 12, 4, 14))
    add(G2 + 4, ["v_permlane16_swap_b32 v12, v14", "v_permlane16_swap_b32 v13, v15",
                 (f"buffer_store_dwordx4 v[12:15], v3, {WS}, {sHS3} offen sc1", "hs3")])
    for i in range(OPT["xup"]):
        for it in xload(i): put(it)
    for i in range(OPT["xup"], 40):
        at(4 * (i - OPT["xup"]) + 1, xload(i))
    if layer == 0:
        n = 5 * NRES
        for fr in range(n):
            at(OPT["wd0"] + (fr * (OPT["wd1"] - OPT["wd0"])) // n, wdload(fr))
    for k, fr in enumerate(range(5 * NRES, 70)):
        at(G2 + OPT["wn0"] + 4 * k + 2, wdload(fr))
    chk = [OPT["chk0"], OPT["chk1"], OPT["chk2"], OPT["chk3"]]
    for p, va in enumerate((244, 245, 246, 248)):
        at(chk[p] - OPT["poll_lead"], [(f"global_load_dword v247, v{va}, {WSP} sc1", "poll247")])
        at(chk[p], [check_or_spin(247, va, 16)] + htouch(p))
    for ks in range(4):
        for ri in range(4):
            at(480 + 8 * (ks + 1) + 2 * ri + 8 * ks, [hload(ks, ri)])
    for ks in range(4, 14):
        t0 = G2 + 20 * (ks - OPT["hd"])
        assert t0 > chk[ks >> 2] and OPT["hd"] <= 3
        if ks & 3 == 0: at(t0, [f"s_add_u32 {sH[ri]}, {sH[ri]}, 4096" for ri in range(4)])
        for ri in range(4):
            at(t0 + 5 * ri, [hload(ks, ri)])
    sig_after = {"hs0": 0, "hs1": 1, "hs2": 2, "hs3": 3}
    issued = {}
    def putf(it, slot):
        put(it)
        if isinstance(it, tuple) and it[1] in sig_after and not any(isinstance(x, tuple) and x[1] == it[1] for _, x in fill):
            issued[it[1]] = slot
    order = []
    for ks in range(14):
        for ri in ((0, 1, 2, 3) if ks < 13 else (1, 2, 3, 0)):
            for tau in range(5): order.append((ks, ri, tau))
    credit = 0
    for n in range(-2 * PD, G2 + 280):
        ready = [t for t in sig_after if t in issued and n - issued[t] >= OPT["lag"]]
        if n < G2 and n % 2 == 0:
            nxt = n // 2 + PD
            if nxt < 280 and nxt % 16 == 0:
                sg = nxt // 16
                e.wait(vm=[f"dma{sg}"] + ready)
                if not OPT["x_nobar"] or ready: e.raw("s_barrier")
                for t in ready:
                    assert n < chk[sig_after[t]] - 20, (t, n)
                    sig_h(sig_after.pop(t))
                if sg + 6 <= 17 and not OPT["x_nodma"]:
                    st = dma_stage(sg + 6)
                    at(n, st[:2])
                    for d in range(4): at(n + 6 * d + 1, [st[2 + d]])
            if nxt < 280: wread(nxt)
        elif n >= G2 - 16 and ready:
            e.wait(vm=ready)
            e.raw("s_barrier")
            for t in ready:
                assert n < chk[sig_after[t]], (t, n)
                print(f"layer {layer}: {t} issued at {issued[t]} published at {n}", file=sys.stderr)
                sig_h(sig_after.pop(t))
        if n >= 0:
            credit = min(credit + (OPT["bud"] if n < 480 else OPT["bud3"] if n < G2 else OPT["bud2"]), 16)
        for it in side.pop(n, []):
            put(it); credit -= cost(it)
        if n < 0: continue
        while fill and fill[0][0] <= n and credit >= cost(fill[0][1]):
            it = fill.pop(0)[1]; putf(it, n); credit -= cost(it)
        if n < G2:
            fr, rt = n >> 1, n & 1
            p = min(fr // 80, 3); fi = fr - 80 * p
            if p < 3: s_, acc = fi >> 2, ACC[p & 1] + 16 * rt + 8 * (fi & 1) + 4 * ((fi >> 1) & 1)
            else: s_, acc = fi >> 1, ACC[1] + 8 * rt + 4 * (fi & 1)
            if fi == 0 and p >= 2: assert f"hs{p-2}" in issued
            if OPT["passprof"] and n in (1, 160, 320, 480): stamp(f"L{layer}_at{n}")
            e.wait(vm=f"x{2*s_+rt}", lg=f"w{fr}")
            e(f"v_mfma_f32_16x16x32_bf16 {v(acc,4)}, {a(WB0+4*(fr%NWB),4)}, {v(XR+8*s_+4*rt,4)}, {v(acc,4) if s_ else 0}")
        else:
            if n == G2: stamp(f"g1_done{layer}")
            if OPT["passprof"] and n - G2 in (80, 160): stamp(f"L{layer}_g2at{n-G2}")
            ks, ri, tau = order[n - G2]
            fr = 5 * ks + tau
            if fr >= 5 * NRES: assert "hs3" in issued
            e.wait(vm=[f"h{ks}_{ri}", f"wd{fr}"])
            acc = v(acc2(tau, ri), 4)
            e(f"v_mfma_f32_16x16x32_bf16 {acc}, {wdreg(fr)}, {v(HF+16*(ks&3)+4*ri,4)}, {acc if ks else 0}")
    assert not side and not fill and not sig_after, (side, fill, sig_after)
    stamp(f"g2_mfma{layer}")
    e(f"""v_lshrrev_b32 v8, 4, v0
    v_and_b32 v9, 15, v0
    v_lshrrev_b32 v11, 1, v8
    v_lshlrev_b32 v11, 8, v11
    v_lshl_add_u32 v11, v9, 4, v11
    v_add_u32 v11, 2048, v11
    v_mov_b32 v15, {BIG}
    v_and_b32 v12, 16, v0
    v_cmp_eq_u32 vcc, 0, v12
    v_cndmask_b32 v11, v15, v11, vcc
    s_lshl_b32 {T[8]}, {sG}, 3
    s_lshl_b32 {T[9]}, {sHF}, 2
    s_add_u32 {T[8]}, {T[8]}, {T[9]}
    s_add_u32 {T[8]}, {T[8]}, {sWV}
    s_mul_i32 {T[8]}, {T[8]}, 20480
    s_mul_i32 {T[9]}, {sMI}, 2560
    s_add_u32 {T[8]}, {T[8]}, {T[9]}
    s_add_u32 {T[8]}, {T[8]}, {F1 if layer == 0 else X3}""")
    if layer == 1:
        e(f"""buffer_load_dwordx4 v[224:227], v1, {WS}, {T[8]} offen sc1
        buffer_load_dwordx4 v[228:231], v1, {WS}, {T[8]} offen offset:1024 sc1
        buffer_load_dwordx4 v[232:235], v11, {WS}, {T[8]} offen sc1""", tag="x3")
    for ri in range(1, 4):
        e(f"""s_add_u32 {T[0]}, {sWV}, {ri}
        s_and_b32 {T[0]}, {T[0]}, 3
        s_mul_i32 {T[0]}, {T[0]}, 15360
        v_add_u32 v13, {T[0]}, v1""")
        for tau in range(5):
            e(f"ds_write_b128 v13, {v(acc2(tau,ri),4)} offset:{(ri-1)*5120+1024*tau}", tag="w")
    e(f"s_mul_i32 {T[0]}, {sWV}, 15360\nv_add_u32 v13, {T[0]}, v1")
    e.wait_all(vm=False)
    e.raw("s_barrier")
    for k in range(15):
        e(f"ds_read_b128 {v(16+4*k,4)}, v13 offset:{1024*k}", tag=f"r{k}")
    for k in range(15):
        e.wait(lg=f"r{k}")
        d = acc2(k % 5, 0)
        for h in range(2):
            e(f"v_pk_add_f32 {v(d+2*h,2)}, {v(d+2*h,2)}, {v(16+4*k+2*h,2)}")
    if layer == 1:
        e.wait(vm="x3")
        for g in range(2):
            for i in range(8):
                src = 224 + 4 * g + (i >> 1)
                e(f"v_and_b32 v14, {sMASK}, v{src}" if i & 1 else f"v_lshlrev_b32 v14, 16, v{src}")
                d = acc2(2 * g + (i >> 2), 0) + (i & 3)
                e(f"v_add_f32 v{d}, v{d}, v14")
    for g in range(2):
        for i in range(4):
            d = acc2(2 * g + (i >> 1), 0) + 2 * (i & 1)
            e(f"v_cvt_pk_bf16_f32 v{16+4*g+i}, v{d}, v{d+1}")
    d = acc2(4, 0)
    if layer == 0:
        e(f"""v_cvt_pk_bf16_f32 v24, v{d}, v{d+1}
        v_cvt_pk_bf16_f32 v25, v{d+2}, v{d+3}
        v_mov_b32 v26, v24
        v_mov_b32 v27, v25
        v_permlane16_swap_b32 v24, v26
        v_permlane16_swap_b32 v25, v27""")
        e(f"""buffer_store_dwordx4 v[16:19], v1, {WS}, {T[8]} offen sc1
        buffer_store_dwordx4 v[20:23], v1, {WS}, {T[8]} offen offset:1024 sc1
        buffer_store_dwordx4 v[24:27], v11, {WS}, {T[8]} offen sc1""", tag="st")
        e.wait_all()
        e.raw("s_barrier")
        e(f"s_lshl_b32 {T[0]}, {sG}, 1\ns_add_u32 {T[0]}, {T[0]}, {sHF}")
        cnt_off(T[0], T[0], 32)
        signal(T[0], WSP)
        e(f"v_mov_b32 v7, {T[0]}")
    else:
        for i in range(4):
            e(f"v_mov_b32 v{28+i}, v{d+i}")
        for i in range(4):
            e(f"v_permlane16_swap_b32 v{d+i}, v{28+i}")
        for i in range(8):
            src = 232 + (i >> 1)
            e(f"v_and_b32 v14, {sMASK}, v{src}" if i & 1 else f"v_lshlrev_b32 v14, 16, v{src}")
            dd = d + i if i < 4 else 28 + i - 4
            e(f"v_add_f32 v{dd}, v{dd}, v14")
        e(f"""v_cvt_pk_bf16_f32 v24, v{d}, v{d+1}
        v_cvt_pk_bf16_f32 v25, v{d+2}, v{d+3}
        v_cvt_pk_bf16_f32 v26, v28, v29
        v_cvt_pk_bf16_f32 v27, v30, v31""")
        srd(SA, P_OUT, ACT)
        e(f"""v_mul_u32_u24 v10, 1280, v9
        v_lshrrev_b32 v11, 1, v8
        v_lshl_add_u32 v11, v11, 4, v10
        v_lshl_add_u32 v10, v8, 4, v10
        v_cndmask_b32 v11, v15, v11, vcc
        s_lshl_b32 {T[8]}, {sG}, 7
        s_lshl_b32 {T[9]}, {sHF}, 6
        s_add_u32 {T[8]}, {T[8]}, {T[9]}
        s_lshl_b32 {T[9]}, {sWV}, 4
        s_add_u32 {T[8]}, {T[8]}, {T[9]}
        s_mul_i32 {T[8]}, {T[8]}, 1280
        s_mul_i32 {T[9]}, {sMI}, 160
        s_add_u32 {T[8]}, {T[8]}, {T[9]}
        buffer_store_dwordx4 v[16:19], v10, {SA}, {T[8]} offen
        buffer_store_dwordx4 v[20:23], v10, {SA}, {T[8]} offen offset:64
        buffer_store_dwordx4 v[24:27], v11, {SA}, {T[8]} offen offset:128""", tag="st")
        L = e.uid("epo")
        e.raw(f"""s_or_b32 {T[0]}, s2, {sWV}
        s_cmp_lg_u32 {T[0]}, 0
        s_cbranch_scc1 {L}
        s_mov_b64 exec, 1
        v_mov_b32 v6, {EPO}
        v_mov_b32 v7, {sTAG}
        global_store_dword v6, v7, {WSP} sc1
        s_mov_b64 exec, -1
        {L}:""")
    stamp(f"g2_done{layer}")

def finish():
    if OPT["prof"]:
        e.wait_all()
        stamp("end")
        e(f"""s_lshl_b32 {T[0]}, s2, 2
        s_add_u32 {T[0]}, {T[0]}, {sWV}
        s_lshl_b32 {T[0]}, {T[0]}, 8
        s_add_u32 {T[0]}, {T[0]}, {PROF}
        v_lshlrev_b32 v1, 2, v0
        buffer_store_dword v{VST}, v1, {WS}, {T[0]} offen""")
    e.label("L_exit")
    e("s_endpgm")

entry()
p0()
conv()
e("s_branch L_r1")
e.vm = []; e.lg = []
shuffle()
r1()
ffn_setup()
e("v_mov_b32 v8, 64")
wave0(lambda: spin(8, DBG, 96))
e.raw("s_barrier")
stamp("shuf_flag")
prefill(range(6))
ffn(0)
prefill(range(3))
r2()
prefill(range(3, 6))
ffn(1)
finish()
nops = e.pad()

hdr = open("interleave_layers__ssm_conv_h3__glu_gated_geglu__prompt.s.ref").read().split("; Override launch")[0]
out = hdr + f"""; Single persistent launch: 256 workgroups, one per CU, phases chained by counters in d_debug / d_ws.
; @launch grid=(256,1,1) block=(256,1,1) lds={LDS_BYTES}
.amdgcn_target "amdgcn-amd-amdhsa--gfx950"
.text
.globl {NAME}
.p2align 8
.type {NAME},@function
{NAME}:
""" + e.text() + f""".section .rodata,"a"
.p2align 6
.amdhsa_kernel {NAME}
  .amdhsa_next_free_vgpr 512
  .amdhsa_next_free_sgpr 102
  .amdhsa_accum_offset 256
  .amdhsa_group_segment_fixed_size 0
  .amdhsa_kernarg_size 104
  .amdhsa_user_sgpr_count 2
  .amdhsa_user_sgpr_kernarg_segment_ptr 1
  .amdhsa_system_sgpr_workgroup_id_x 1
  .amdhsa_float_denorm_mode_32 3
.end_amdhsa_kernel
"""
open(sys.argv[1], "w").write(out)
import json
json.dump(dict(stamps=stamp_names, KVT=KVT, YB=YB, XN=XN, X3=X3, F1=F1, HB=HB, WGU=WGU, WDP=WDP, PROF=PROF, CNT=CNT), open(sys.argv[1] + ".json", "w"))
print(f"{len(e.ins)} lines, {nops} padded wait states", file=sys.stderr)
```

```python
import re

_REG = re.compile(r"^-?(?:abs\()?\|?([vas])(?:(\d+)|\[(\d+):(\d+)\])\|?\)?$")

def regs_of(tok):
    tok = tok.strip()
    if tok in ("vcc", "exec"):
        return {(tok, 0)}
    if tok == "m0":
        return {("m0", 0)}
    m = _REG.match(tok)
    if not m:
        return set()
    k = m.group(1)
    if m.group(2) is not None:
        return {(k, int(m.group(2)))}
    return {(k, i) for i in range(int(m.group(3)), int(m.group(4)) + 1)}

TRANS = ("v_exp_f32", "v_log_f32", "v_rcp_f32", "v_rsq_f32", "v_sqrt_f32", "v_sin_f32", "v_cos_f32")

class Ins:
    __slots__ = ("text", "op", "kind", "dst", "src", "passes", "srcc", "dpp", "states", "wide_store", "lds_dma")
    def __init__(self, text):
        self.text = text
        t = text.split(";")[0].strip()
        self.dst = set(); self.src = set(); self.srcc = set()
        self.passes = 0; self.dpp = False; self.states = 1; self.wide_store = set(); self.lds_dma = False
        if not t or t.endswith(":") or t.startswith("."):
            self.op = t; self.kind = "label" if t.endswith(":") else "none"; self.states = 0
            return
        parts = t.split(None, 1)
        op = self.op = parts[0]
        rest = parts[1] if len(parts) > 1 else ""
        rest = re.sub(r"\s+\w+:\[[^\]]*\]", "", rest) if "op_sel" in rest or "neg_" in rest else rest
        if "quad_perm" in rest:
            rest = re.sub(r"quad_perm:\[[^\]]*\]", "quad_perm", rest)
        ops = [x.strip() for x in rest.split(",")] if rest else []
        if ops:
            last = ops[-1].split()
            mods = last[1:]; ops[-1] = last[0] if last else ""
        else:
            mods = []
        R = [regs_of(x) for x in ops]
        if op == "s_nop":
            self.kind = "salu"; self.states = int(ops[0], 0) + 1
        elif op.startswith("v_mfma"):
            self.kind = "mfma"; self.passes = 8 if "32x32" in op else 4
            self.dst = R[0]; self.src = R[1] | R[2] | R[3]; self.srcc = R[3]
        elif op.startswith("v_"):
            self.kind = "valu"
            self.dpp = any(m.startswith(("row_", "quad_perm", "wave_")) for m in mods) or "_dpp" in op
            if op.startswith("v_permlane") and "swap" in op:
                self.dst = R[0] | R[1]; self.src = R[0] | R[1]
            elif op.startswith(("v_add_co", "v_sub_co", "v_addc_co", "v_subb_co")):
                self.dst = R[0] | R[1]; self.src = set().union(*R[2:])
            else:
                self.dst = R[0]; self.src = set().union(*R[1:]) if len(R) > 1 else set()
                if op.startswith(("v_fmac", "v_dot2c", "v_writelane", "v_pk_fmac")) or self.dpp:
                    self.src |= R[0]
                if op.startswith("v_cndmask") and len(R) == 3:
                    self.src |= {("vcc", 0)}
        elif op.startswith("ds_"):
            self.kind = "ds"
            if op.startswith("ds_read") or op.startswith("ds_bpermute") or op.startswith("ds_swizzle"):
                self.dst = R[0]; self.src = set().union(*R[1:])
            else:
                self.src = set().union(*R)
        elif op.startswith("buffer_") or op.startswith("global_"):
            self.kind = "vmem"
            if op in ("buffer_wbl2", "buffer_inv"):
                pass
            elif "lds" in mods:
                self.lds_dma = True; self.src = set().union(*R) | {("m0", 0)}
            elif "_load" in op:
                self.dst = R[0]; self.src = set().union(*R[1:])
            else:
                self.src = set().union(*R)
                if op.endswith(("x3", "x4")):
                    self.wide_store = R[0] if op.startswith("buffer_") else R[1]
        elif op.startswith(("s_load", "s_memtime", "s_memrealtime")):
            self.kind = "smem"; self.dst = R[0]; self.src = set().union(*R[1:]) if len(R) > 1 else set()
        elif op.startswith(("s_branch", "s_cbranch", "s_setpc", "s_swappc", "s_endpgm")):
            self.kind = "branch"
        else:
            self.kind = "salu"
            if op.startswith(("s_cmp", "s_waitcnt", "s_barrier", "s_sleep", "s_setprio")):
                self.src = set().union(*R) if R else set()
            elif R:
                self.dst = R[0]; self.src = set().union(*R[1:]) if len(R) > 1 else set()
                if "saveexec" in op:
                    self.dst = self.dst | {("exec", 0)}

def _vec(s):
    return {r for r in s if r[0] in ("v", "a")}
def _sca(s):
    return {r for r in s if r[0] in ("s", "vcc")}

def required_states(p, c):
    need = 0
    if p.kind == "valu":
        pv = _vec(p.dst); ps = _sca(p.dst)
        if c.kind == "mfma" and pv & c.src: need = max(need, 2)
        if c.kind == "valu":
            if c.dpp and pv & c.src: need = max(need, 2)
            if c.op.startswith("v_permlane") and pv & c.src: need = max(need, 2)
            if c.op.startswith(("v_readlane", "v_readfirstlane")) and pv & c.src: need = max(need, 1)
            if p.op.startswith(TRANS) and pv & c.src: need = max(need, 1)
            if ps & c.src: need = max(need, 4 if c.op.startswith(("v_readlane", "v_writelane")) else 2)
        if c.kind == "vmem" and ps & c.src: need = max(need, 5)
        if c.kind in ("salu", "smem", "branch") and ps & c.src: need = max(need, 1)
    elif p.kind == "mfma":
        big = p.passes + 4
        if c.kind == "mfma":
            if p.dst & (c.src - c.srcc): need = max(need, big)
            if p.dst & c.srcc and not (p.dst == c.srcc and p.passes == c.passes): need = max(need, p.passes + 2)
            if p.dst & c.dst and not (p.dst & c.srcc): need = max(need, p.passes + 2)
        elif c.kind == "valu":
            if p.dst & (c.src | c.dst): need = max(need, big)
            if p.srcc & c.dst: need = max(need, p.passes - 1)
        elif c.kind in ("vmem", "ds"):
            if p.dst & (c.src | c.dst): need = max(need, big)
    elif p.kind == "vmem":
        if p.wide_store and (p.wide_store & c.dst): need = max(need, 2)
    elif p.kind == "salu":
        if ("m0", 0) in p.dst and c.lds_dma: need = max(need, 1)
    return need

class Emit:
    def __init__(self):
        self.ins = []
        self.uid_n = 0
        self.vm = []
        self.lg = []
        self.vmd = []
        self.lgd = []
    def uid(self, base="L"):
        self.uid_n += 1
        return f"{base}{self.uid_n}"
    def raw(self, text):
        for l in text.split("\n"):
            l = l.strip()
            if l:
                i = Ins(l); self._check(i)
                self.ins.append(i)
    def _sync(self):
        self.vmd = self.vmd[len(self.vmd) - len(self.vm):] if self.vm else []
        self.lgd = self.lgd[len(self.lgd) - len(self.lg):] if self.lg else []
    def _check(self, i):
        self._sync()
        for q, kind in ((self.vmd, "vmem"), (self.lgd, "ds")):
            for d in q:
                hit = d & (i.src | (i.dst if i.kind != kind else set()))
                if hit:
                    raise AssertionError(f"'{i.text}' touches {sorted(hit)} while a load into it is outstanding")
    def __call__(self, text, tag=None):
        for l in text.split("\n"):
            l = l.strip()
            if not l:
                continue
            i = Ins(l)
            self._check(i)
            self.ins.append(i)
            if i.kind == "vmem":
                self.vm.append(tag); self.vmd.append(i.dst)
            elif i.kind == "ds":
                self.lg.append(tag); self.lgd.append(i.dst)
    def label(self, name):
        self.ins.append(Ins(name + ":"))
    def _pending(self, q, tags):
        idx = -1
        for n, t in enumerate(q):
            if t in tags:
                idx = n
        return idx
    def would_wait(self, vm=(), lg=()):
        return self._pending(self.vm, set(vm)) >= 0 or self._pending(self.lg, set(lg)) >= 0
    def wait(self, vm=(), lg=()):
        parts = []
        if not isinstance(vm, (tuple, list, set)): vm = (vm,)
        if not isinstance(lg, (tuple, list, set)): lg = (lg,)
        i = self._pending(self.vm, set(vm))
        if i >= 0:
            n = min(len(self.vm) - 1 - i, 63)
            parts.append(f"vmcnt({n})"); self.vm = self.vm[len(self.vm) - n:] if n else []
        i = self._pending(self.lg, set(lg))
        if i >= 0:
            n = min(len(self.lg) - 1 - i, 15)
            parts.append(f"lgkmcnt({n})"); self.lg = self.lg[len(self.lg) - n:] if n else []
        if parts:
            self.raw("s_waitcnt " + " ".join(parts))
    def wait_all(self, vm=True, lg=True):
        parts = []
        if vm: parts.append("vmcnt(0)"); self.vm = []
        if lg: parts.append("lgkmcnt(0)"); self.lg = []
        self.raw("s_waitcnt " + " ".join(parts))
    def pad(self):
        out = []; nops = 0
        for c in self.ins:
            if c.states:
                dist = 0; need = 0
                for p in reversed(out):
                    if p.kind == "branch" and p.op in ("s_branch", "s_endpgm", "s_setpc_b64"):
                        break
                    r = required_states(p, c) if p.states else 0
                    need = max(need, r - dist)
                    dist += p.states
                    if dist >= 20:
                        break
                while need > 0:
                    k = min(need, 16)
                    out.append(Ins(f"s_nop {k-1}")); nops += k; need -= k
            out.append(c)
        self.ins = out
        return nops
    def text(self):
        return "\n".join((i.text if i.kind in ("label", "none") else "    " + i.text) for i in self.ins) + "\n"
```

```python
import sys, math, struct
from emit import Emit, Ins

NAME = "interleave_layers__ssm_conv_h3__glu_gated_geglu__prompt_kernel"
OPT = dict(prof=0, nt_in=0, nt_w=0, stop=99, warm=1, shufwait=0, bud=7, bud3=12, bud2=12, lag=50, poll_lead=45, chk0=480, chk1=578, chk2=678, chk3=758, hd=2, wn0=10, wn_gap=15, x_nodma=0, x_nobar=0, x_nofill=0, passprof=0, ksprof=0, xup=10, wd0=100, wd1=640, htouch=0, dbgspin=0, pre_r=5, pre_every=8, pre_now=4, bar2=1, dma_gap=7, pd=8, lgw=4, slack=3, x3=4, x2=2, pub_from=480, hd1=3, ksw=0, sig_q=2, wtouch=0, go=1, outpol=0, xtouch=0)
for a in sys.argv[2:]:
    k, v = a.split("="); OPT[k] = int(v)

C1 = 2.0 * math.sqrt(2.0 / math.pi) * math.log2(math.e); C2 = C1 * 0.044715
ALPHA = C2 ** (1.0 / 3.0); KAPPA = C1 / ALPHA; INVA2 = 1.0 / (ALPHA * ALPHA)
ACT = 0x280000
CNT = 0; EPO = 0xA000; P0F = 0xA080; GOF = 0xA800; PROF = 0x10000
KVT = 0x100000; YB = KVT + ACT; XN = [YB + ACT, YB + 2 * ACT]; X3 = YB + 3 * ACT; F1 = YB + 4 * ACT
HB = [F1 + ACT, F1 + ACT + 0x700000]
WGU = HB[1] + 0x700000; WDP = WGU + 0x460000; WS_END = WDP + 0x230000
WT = 286720
RING = 0; ST_X = 131072; ST_Y = ST_X + 12288; RED = ST_Y + 12288
P0L = 0; F0 = 16384; FCH = 16640; FCP = 4160; U0 = F0 + 4 * FCH; UCH = 4640; YA = U0 + 4 * UCH; YCS = 4624
SHST = 20992
LDS_BYTES = 163840
SPIN_LIMIT = 400000
WS = "s[8:11]"; SA = "s[12:15]"; SB = "s[44:47]"; SC = "s[48:51]"
P_Q, P_K, P_V, P_SHK, P_SSM, P_D, P_WG, P_WU, P_WD, P_OUT, P_DBG, P_WS = 16, 18, 20, 22, 24, 26, 30, 32, 34, 36, 38, 40
sWV, sX, sSLOT, sG, sHF, sMI, sCI, sCGP, sMASK, sRB, sJT = "s52", "s53", "s54", "s55", "s56", "s57", "s58", "s59", "s60", "s61", "s62"
sDV = "s63"; sTAG = "s42"; sNTAG = "s43"
T = [f"s{i}" for i in range(64, 84)]
sSPIN = "s84"; sWB = "s85"; sWO = "s86"; sM0 = "s87"; sH = ["s88", "s89", "s90", "s91"]; sHS = "s92"; sHS3 = "s93"; sWD = "s94"
DBG = f"s[{P_DBG}:{P_DBG+1}]"; WSP = f"s[{P_WS}:{P_WS+1}]"
NT_IN = " nt" if OPT["nt_in"] else ""
NT_W = " nt" if OPT["nt_w"] else ""
BIG = "0x80000000"
OUTP = ("", " sc1", " nt", " sc0 sc1")[OPT["outpol"]]

e = Emit()
def v(i, n=1): return f"v{i}" if n == 1 else f"v[{i}:{i+n-1}]"
def a(i, n=1): return f"a{i}" if n == 1 else f"a[{i}:{i+n-1}]"
def f32(x): return "0x%08x" % struct.unpack("<I", struct.pack("<f", x))[0]

def srd(dst, ptr, nbytes, add=None):
    d = int(dst[2:dst.index(":")])
    if add is None:
        e(f"s_mov_b32 s{d}, s{ptr}\ns_mov_b32 s{d+1}, s{ptr+1}")
    else:
        e(f"s_add_u32 s{d}, s{ptr}, {add}\ns_addc_u32 s{d+1}, s{ptr+1}, 0")
    e(f"s_mov_b32 s{d+2}, {nbytes}\ns_mov_b32 s{d+3}, 0x20000")

VST = 5
stamp_names = []
def stamp(name):
    if not OPT["prof"]:
        return
    i = stamp_names.index(name) if name in stamp_names else len(stamp_names)
    if name not in stamp_names: stamp_names.append(name)
    e.raw("s_memrealtime s[4:5]\ns_memtime s[6:7]")
    e.wait_all(vm=False)
    e(f"v_writelane_b32 v{VST}, s4, {i}\nv_writelane_b32 v{VST}, s6, {32+i}")

light_prev = [None]
def lstamp(name):
    if light_prev[0] is not None:
        i, r = light_prev[0]
        e.raw(f"s_waitcnt lgkmcnt(0)\nv_writelane_b32 v{VST}, s{r}, {32+i}\nv_writelane_b32 v{VST}, 1, {i}")
        light_prev[0] = None
    if name:
        stamp_names.append(name); i = len(stamp_names) - 1
        e.raw("s_memtime s[6:7]"); light_prev[0] = (i, 6)

def rstamp(name):
    if OPT['passprof'] == 3: stamp(name)

def fstamp(name):
    if not OPT['passprof'] and not OPT['ksprof']: stamp(name)

spin_sites = []
def spin_report(vt):
    if not OPT["dbgspin"]:
        return
    site = len(spin_sites); spin_sites.append(site)
    L = e.uid("rep")
    e.raw(f"""s_cmp_lt_u32 {sSPIN}, 3000
    s_cbranch_scc1 {L}
    s_mov_b64 exec, 1
    v_mov_b32 v252, {128 + 4 * site}
    v_mov_b32 v253, 1
    global_atomic_add v252, v253, {DBG} sc1
    s_mov_b64 exec, -1
    s_waitcnt vmcnt(0)
    {L}:""")

def spin(vaddr, base, target, vt=6):
    L = e.uid("spin"); D = e.uid("spun")
    e.raw(f"""s_mov_b32 {sSPIN}, 0
    {L}:
    global_load_dword v{vt}, v{vaddr}, {base} sc1
    s_add_u32 {sSPIN}, {sSPIN}, 1
    s_cmp_gt_u32 {sSPIN}, {SPIN_LIMIT}
    s_cbranch_scc1 {D}
    s_waitcnt vmcnt(0)
    v_cmp_gt_u32 vcc, {target}, v{vt}
    s_cbranch_vccnz {L}
    {D}:
    s_waitcnt vmcnt(0)""")
    spin_report(vt)

def tag_ready():
    e.wait_all(vm=False)
    e(f"s_add_u32 {sTAG}, {sTAG}, 1\ns_not_b32 {sNTAG}, {sTAG}")

def tag_bad(r, n):
    e.raw(f"v_xor_b32 v{r}, {sTAG}, v{r}\nv_xor_b32 v{r+1}, {sNTAG}, v{r+1}\nv_or_b32 v{r}, v{r}, v{r+1}")
    for k in range(1, n):
        e.raw(f"v_xor_b32 v{r+2*k}, {sTAG}, v{r+2*k}\nv_xor_b32 v{r+2*k+1}, {sNTAG}, v{r+2*k+1}\nv_or3_b32 v{r}, v{r}, v{r+2*k}, v{r+2*k+1}")
    e.raw(f"v_cmp_ne_u32 vcc, 0, v{r}")

def spin_tag(loads, r, n):
    L = e.uid("spin"); D = e.uid("spun")
    e.raw(f"s_mov_b32 {sSPIN}, 0\n{L}:\n{loads}")
    e.raw(f"""s_add_u32 {sSPIN}, {sSPIN}, 1
    s_cmp_gt_u32 {sSPIN}, {SPIN_LIMIT}
    s_cbranch_scc1 {D}
    s_waitcnt vmcnt(0)""")
    tag_bad(r, n)
    e.raw(f"s_cbranch_vccnz {L}\n{D}:\ns_waitcnt vmcnt(0)")
    spin_report(r)

def all_loads(va, vb, r):
    return f"global_load_dwordx4 v[{r}:{r+3}], v{va}, {WSP} sc1\nglobal_load_dwordx4 v[{r+4}:{r+7}], v{vb}, {WSP} sc1"

def all_addr(va, vb):
    e(f"v_add_u32 v{va}, {P0F}, v1\nv_and_b32 v{vb}, 0xf0, v1\nv_add_u32 v{vb}, {P0F+1024}, v{vb}")

def wave0(fn):
    L = e.uid("w0")
    e.raw(f"s_cmp_lg_u32 {sWV}, 0\ns_cbranch_scc1 {L}")
    fn()
    e.raw(f"{L}:")

def wait_flag(vaddr, base, target):
    wave0(lambda: spin(vaddr, base, target))
    e.raw("s_barrier")

def signal(soff, base, vt=6):
    def fn():
        e.raw(f"""s_mov_b64 exec, 1
        v_mov_b32 v{vt}, {soff}
        v_mov_b32 v{vt+1}, 1
        global_atomic_add v{vt}, v{vt+1}, {base} sc1
        s_mov_b64 exec, -1""")
    wave0(fn)

def cnt_off(dst, idx_expr_s, const):
    e(f"s_lshl_b32 {dst}, {idx_expr_s}, 8\ns_add_u32 {dst}, {dst}, {CNT + const * 256 + 128}")

def entry():
    e(f"""s_cmp_ge_u32 s2, 256
    s_cbranch_scc1 L_exit
    s_load_dwordx16 s[16:31], s[0:1], 0
    s_load_dwordx8 s[32:39], s[0:1], 64
    s_load_dwordx2 s[40:41], s[0:1], 96
    v_lshrrev_b32 v2, 6, v0
    v_and_b32 v0, 63, v0
    v_readfirstlane_b32 {sWV}, v2
    s_and_b32 {sX}, s2, 7
    s_lshr_b32 {sSLOT}, s2, 3
    s_mov_b32 {sMASK}, 0xffff0000
    v_lshlrev_b32 v1, 4, v0""")
    if OPT["prof"]:
        e(f"v_mov_b32 v{VST}, 0")
    e(f"s_cmp_ge_u32 {sSLOT}, 20\ns_cbranch_scc1 L_shuf")

def args_ready():
    e.wait_all(vm=False)
    stamp("start")
    e.raw(f"s_load_dword {sTAG}, {WSP}, {EPO}")

def ffn_ids():
    srd(WS, P_WS, WS_END)
    e(f"""s_lshr_b32 {T[0]}, {sX}, 1
    s_lshl_b32 {T[0]}, {T[0]}, 2
    s_lshr_b32 {T[1]}, {sSLOT}, 3
    s_add_u32 {sG}, {T[0]}, {T[1]}
    s_and_b32 {sHF}, {sX}, 1
    s_and_b32 {sMI}, {sSLOT}, 7
    s_lshl_b32 {T[0]}, {sHF}, 3
    s_add_u32 {sJT}, {T[0]}, {sMI}
    s_lshl_b32 {sRB}, {sG}, 4
    s_add_u32 {sRB}, {sRB}, {sJT}""")

def q_prefetch(t):
    srd(SC, P_Q, ACT)
    e(f"""v_and_b32 v{t}, 7, v0
    v_lshrrev_b32 v{t+1}, 3, v0
    v_mul_u32_u24 v{t}, 1280, v{t}
    v_lshl_add_u32 v{t}, v{t+1}, 4, v{t}
    s_mul_i32 {T[18]}, {sRB}, 10240
    s_mul_i32 {T[19]}, {sWV}, 320
    s_add_u32 {T[18]}, {T[18]}, {T[19]}
    v_mov_b32 v{t+1}, {BIG}
    v_cmp_gt_u32 vcc, 32, v0
    v_cndmask_b32 v{t+1}, v{t+1}, v{t}, vcc""")
    return [(f"buffer_load_dwordx4 a[240:243], v{t}, {SC}, {T[18]} offen{NT_IN}", "q"),
            (f"buffer_load_dwordx4 a[244:247], v{t}, {SC}, {T[18]} offen offset:128{NT_IN}", "q"),
            (f"buffer_load_dwordx4 a[248:251], v{t+1}, {SC}, {T[18]} offen offset:256{NT_IN}", "q")]

def replica_add(line0):
    def fn():
        e.raw(f"""s_mov_b64 exec, 0xff
        v_lshlrev_b32 v6, 8, v0
        v_add_u32 v6, {line0}, v6
        v_mov_b32 v7, 1
        global_atomic_add v6, v7, {WSP} sc1
        s_mov_b64 exec, -1""")
    wave0(fn)

def all_check():
    L = e.uid("allok")
    e.wait(vm="all")
    keep = list(e.vm)
    tag_bad(208, 4)
    e.raw(f"s_cbranch_vccz {L}")
    spin_tag(all_loads(216, 217, 208), 208, 4)
    e.raw(f"{L}:")
    e.vm = keep

def p0():
    KR, VR, WR, WF, KF, AC, VF, PK, HR = 16, 44, 60, 76, 108, 164, 196, 200, 216
    e(f"""s_mul_i32 {sCI}, {sX}, 20
    s_add_u32 {sCI}, {sCI}, {sSLOT}
    s_lshr_b32 {sCGP}, {sCI}, 4
    s_and_b32 {T[0]}, {sCI}, 15
    s_lshl_b32 {T[0]}, {T[0]}, 7
    s_lshl_b32 {T[1]}, {sWV}, 5
    s_add_u32 {T[2]}, {T[0]}, {T[1]}
    s_mul_i32 {T[3]}, {T[2]}, 1280
    s_lshl_b32 {T[4]}, {sCGP}, 7
    s_add_u32 {T[3]}, {T[3]}, {T[4]}
    v_and_b32 v2, 7, v0
    v_lshrrev_b32 v3, 3, v0
    v_mul_u32_u24 v4, 5120, v3
    v_lshl_add_u32 v4, v2, 4, v4
    v_add_u32 v4, {T[3]}, v4
    v_subrev_u32 v8, 3840, v4
    v_mov_b32 v9, {BIG}
    v_cmp_gt_u32 vcc, 1280, v4
    s_lshl_b32 {T[4]}, {sCGP}, 9
    s_lshl_b32 {T[5]}, {sCI}, 2
    v_cndmask_b32 v8, v8, v9, vcc
    v_lshlrev_b32 v9, 6, v2
    s_add_u32 {T[5]}, {T[5]}, {sWV}
    s_lshl_b32 {T[6]}, {T[5]}, 12
    s_lshr_b32 {T[7]}, {T[5]}, 1
    s_lshl_b32 {T[7]}, {T[7]}, 2
    v_subrev_u32 v10, 32, v1
    v_subrev_u32 v11, 16, v1
    v_add_u32 v12, 992, v1""")
    args_ready()
    srd(SA, P_K, ACT)
    for i in range(3):
        e(f"buffer_load_dwordx4 {v(KR+4*i,4)}, v8, {SA}, 0 offen offset:{1280*i}{NT_IN}", tag=f"k{i}")
    for i in range(4):
        e(f"buffer_load_dwordx4 {v(KR+12+4*i,4)}, v4, {SA}, 0 offen offset:{1280*i}{NT_IN}", tag=f"k{i+3}")
    srd(SC, P_SHK, 5120)
    for i in range(4):
        e(f"buffer_load_dwordx4 {v(WR+4*i,4)}, v9, {SC}, {T[4]} offen offset:{16*i}", tag="shk")
    srd(SB, P_V, ACT)
    for i in range(4):
        e(f"buffer_load_dwordx4 {v(VR+4*i,4)}, v4, {SB}, 0 offen offset:{1280*i}{NT_IN}", tag=f"v{i}")
    e.raw(f"s_load_dword {sDV}, s[{P_D}:{P_D+1}], {T[7]}")
    srd(SA, P_SSM, 4096, add=T[6])
    e(f"buffer_load_dwordx4 {v(HR,4)}, v10, {SA}, 0 offen{NT_IN}\nbuffer_load_dwordx2 {v(HR+4,2)}, v11, {SA}, 0 offen{NT_IN}", tag="h0")
    for q in range(1, 5):
        e(f"buffer_load_dwordx4 {v(HR+8*q,4)}, v12, {SA}, 0 offen offset:{1024*(q-1)}{NT_IN}", tag=f"h{q}")
        e(f"buffer_load_dwordx2 {v(HR+8*q+4,2)}, v12, {SA}, 0 offen offset:{1024*(q-1)+16}{NT_IN}", tag=f"h{q}")
    ffn_ids()
    def clr():
        e.raw(f"""s_lshl_b32 {T[8]}, {sCI}, 8
        s_mov_b64 exec, 0xffff
        v_mov_b32 v196, 0
        v_mov_b32 v197, 0
        v_mov_b32 v198, 0
        v_mov_b32 v199, 0
        buffer_store_dwordx4 v[196:199], v1, {WS}, {T[8]} offen sc1
        s_mov_b64 exec, -1""")
    wave0(clr)
    e(f"""s_lshl_b32 {T[8]}, {sWV}, 12
    v_lshlrev_b32 v13, 9, v3
    v_sub_u32 v13, {P0L + 28*128}, v13
    v_lshl_add_u32 v13, v2, 4, v13
    v_add_u32 v13, {T[8]}, v13
    v_bfe_u32 v14, v0, 2, 2
    v_lshlrev_b32 v14, 7, v14
    v_lshrrev_b32 v15, 4, v0
    v_lshl_add_u32 v14, v15, 5, v14
    v_and_b32 v15, 3, v0
    v_lshl_add_u32 v14, v15, 3, v14
    v_add_u32 v14, {T[8]}, v14
    s_sub_u32 {T[8]}, 2016, {T[2]}
    s_lshr_b32 {T[8]}, {T[8]}, 3
    s_mul_i32 {T[8]}, {T[8]}, 10240
    s_lshl_b32 {T[9]}, {sCGP}, 10
    s_add_u32 {T[8]}, {T[8]}, {T[9]}
    s_add_u32 {T[8]}, {T[8]}, {KVT}""")
    def unpack(dst, src, n):
        for c in range(n):
            if c & 1: e(f"v_and_b32 v{dst+c}, {sMASK}, v{src+(c>>1)}")
            else: e(f"v_lshlrev_b32 v{dst+c}, 16, v{src+(c>>1)}")
    for i in range(7):
        e.wait(vm=f"k{i}")
        unpack(KF + 8 * i, KR + 4 * i, 8)
    e.wait(vm="shk")
    for c in range(8):
        for tau in range(4):
            src = WR + 2 * c + (tau >> 1)
            if tau & 1: e(f"v_and_b32 v{WF+8*tau+c}, {sMASK}, v{src}")
            else: e(f"v_lshlrev_b32 v{WF+8*tau+c}, 16, v{src}")
    fstamp("k_done")
    for i in range(4):
        for p in range(4):
            d = v(AC + 8 * i + 2 * p, 2)
            e(f"v_pk_mul_f32 {d}, {v(KF+8*(i+3)+2*p,2)}, {v(WF+2*p,2)}")
        for tau in range(1, 4):
            for p in range(4):
                d = v(AC + 8 * i + 2 * p, 2)
                e(f"v_pk_fma_f32 {d}, {v(KF+8*(i+3-tau)+2*p,2)}, {v(WF+8*tau+2*p,2)}, {d}")
        e.wait(vm=f"v{i}")
        unpack(KF + 8 * i, VR + 4 * i, 8)
        for p in range(4):
            d = v(AC + 8 * i + 2 * p, 2)
            e(f"v_pk_mul_f32 {d}, {d}, {v(KF+8*i+2*p,2)}")
        for p in range(4):
            e(f"v_cvt_pk_bf16_f32 v{PK+4*i+p}, v{AC+8*i+2*p}, v{AC+8*i+2*p+1}")
        e(f"ds_write_b128 v13, {v(PK+4*i,4)} offset:{128*(3-i)}", tag="w")
    for m in range(4):
        for hh in range(2):
            e(f"ds_read_b64_tr_b16 {v(16+4*m+2*hh,2)}, v14 offset:{(8*m+4*hh)*128}", tag=f"t{m}")
    tag_ready()
    for m in range(4):
        e(f"buffer_store_dwordx4 {v(16+4*m,4)}, v1, {WS}, {T[8]} offen sc1", tag="st")
        if m < 3: e(f"s_add_u32 {T[8]}, {T[8]}, 10240")
    fstamp("p0_st")
    e(f"s_mul_i32 {T[9]}, {sWV}, {FCH}\ns_add_u32 {T[9]}, {T[9]}, {F0}\nv_add_u32 v13, {T[9]}, v1")
    for q in range(5):
        d = HR + 8 * q; t = 108 + 12 * q
        e.wait(vm=f"h{q}")
        for j in range(4):
            e(f"v_alignbit_b32 v{t+j}, v{d+j+1}, v{d+j}, 16")
            e(f"v_mov_b32 v{t+4+j}, v{d+j+1}")
            e(f"v_alignbit_b32 v{t+8+j}, v{d+j+2}, v{d+j+1}, 16")
        if q == 4: e("s_mov_b64 exec, 3")
        e(f"ds_write_b128 v13, {v(d,4)} offset:{1024*q}", tag="w")
        for sg in range(1, 4):
            e(f"ds_write_b128 v13, {v(t+4*sg-4,4)} offset:{sg*FCP+1024*q}", tag="w")
        if q == OPT["sig_q"]:
            e("s_mov_b64 exec, -1")
            p0_signal()
    e(f"""s_mul_i32 {T[9]}, {sWV}, {UCH}
    s_add_u32 {T[9]}, {T[9]}, {U0}
    s_mov_b64 exec, -1
    v_add_u32 v13, {T[9]}, v1
    v_mov_b32 v32, 0
    v_mov_b32 v33, 0
    v_mov_b32 v34, 0
    v_mov_b32 v35, 0
    s_mov_b32 exec_lo, -1
    s_mov_b32 exec_hi, 3
    ds_write_b128 v13, v[32:35] offset:4096
    s_mov_b64 exec, -1""", tag="w")
    e(f"""s_and_b32 {T[7]}, {T[5]}, 1
    s_lshl_b32 {T[6]}, {sDV}, 16
    s_and_b32 {sDV}, {sDV}, {sMASK}
    s_cmp_eq_u32 {T[7]}, 0
    s_cselect_b32 {sDV}, {T[6]}, {sDV}
    s_lshl_b32 {T[8]}, {sCGP}, 7
    s_add_u32 {T[8]}, {T[8]}, {P0F}
    v_and_b32 v7, 15, v0
    v_lshlrev_b32 v7, 3, v7
    v_add_u32 v7, {T[8]}, v7""")

def p0_signal():
    e.wait_all(lg=False)
    fstamp("p0_drain")
    e.raw("s_barrier")
    def sig():
        e.raw(f"""s_lshl_b32 {T[8]}, {sCI}, 3
        s_add_u32 {T[8]}, {T[8]}, {P0F}
        s_mov_b64 exec, 1
        v_mov_b32 v6, {T[8]}
        v_mov_b32 v8, {sTAG}
        v_mov_b32 v9, {sNTAG}
        global_store_dwordx2 v6, v[8:9], {WSP} sc1
        s_mov_b64 exec, -1""")
    wave0(sig)

def conv():
    AC, GB, FB, KV, KU, YP = 16, (48, 80), 112, 144, 160, 192
    e(f"""v_lshrrev_b32 v8, 2, v0
    v_and_b32 v9, 3, v0
    v_mul_u32_u24 v10, 10240, v8
    v_lshl_add_u32 v10, v9, 4, v10
    v_mul_u32_u24 v11, {UCH}, v9
    v_lshl_add_u32 v11, v8, 4, v11
    s_lshl_b32 {T[0]}, {sWV}, 10
    s_add_u32 {T[0]}, {T[0]}, {U0}
    v_add_u32 v11, {T[0]}, v11
    s_mul_i32 {T[0]}, {sWV}, {64*10240}
    s_lshl_b32 {T[1]}, {sCI}, 6
    s_add_u32 {T[0]}, {T[0]}, {T[1]}
    s_add_u32 {T[0]}, {T[0]}, {KVT}
    v_and_b32 v8, 15, v0
    v_lshrrev_b32 v9, 4, v0
    v_add_u32 v12, 1, v8
    v_and_b32 v13, 3, v12
    v_sub_u32 v12, v12, v13
    v_mul_u32_u24 v13, {FCP}, v13
    v_lshl_add_u32 v12, v12, 1, v13
    v_lshl_add_u32 v12, v9, 4, v12
    s_mul_i32 {T[1]}, {sWV}, {FCH}
    s_add_u32 {T[1]}, {T[1]}, {F0}
    v_add_u32 v2, {T[1]}, v12
    s_mul_i32 {T[1]}, {sWV}, {UCH}
    s_add_u32 {T[1]}, {T[1]}, {U0}
    v_lshlrev_b32 v12, 5, v8
    v_sub_u32 v12, {T[1]}, v12
    v_lshl_add_u32 v3, v9, 4, v12
    v_add_u32 v3, 480, v3
    v_lshlrev_b32 v13, 3, v9
    v_sub_u32 v4, v12, v13
    v_add_u32 v4, 504, v4""")
    wave0(lambda: spin_tag(f"global_load_dwordx2 v[14:15], v7, {WSP} sc1", 14, 1))
    e.raw("s_barrier")
    stamp("p0_flag")
    for m in range(4):
        e(f"buffer_load_dwordx4 {v(16+4*m,4)}, v10, {WS}, {T[0]} offen sc1", tag=f"u{m}")
        if m < 3: e(f"s_add_u32 {T[0]}, {T[0]}, {16*10240}")
    ql = q_prefetch(218)
    all_addr(216, 217)
    e(f"""v_lshrrev_b32 v10, 1, v8
    v_mul_u32_u24 v10, 72, v10
    v_and_b32 v12, 1, v8
    v_lshl_add_u32 v10, v12, 4, v10
    v_lshl_add_u32 v10, v9, 2, v10
    s_mul_i32 {T[1]}, {sWV}, {YCS}
    s_add_u32 {T[1]}, {T[1]}, {YA}
    v_add_u32 v10, {T[1]}, v10
    v_lshrrev_b32 v14, 2, v8
    v_mul_u32_u24 v14, {YCS}, v14
    v_mul_u32_u24 v12, 72, v9
    v_add_u32 v14, v14, v12
    v_and_b32 v12, 3, v8
    v_lshl_add_u32 v14, v12, 3, v14
    s_mul_i32 {T[1]}, {sWV}, {72*16}
    s_add_u32 {T[1]}, {T[1]}, {YA}
    v_add_u32 v14, {T[1]}, v14
    v_lshrrev_b32 v12, 3, v0
    v_mul_u32_u24 v12, 20480, v12
    v_and_b32 v13, 7, v0
    v_lshl_add_u32 v12, v13, 4, v12
    s_mul_i32 {T[0]}, {sWV}, {32*20480}
    s_lshl_b32 {T[1]}, {sCI}, 7
    s_add_u32 {T[0]}, {T[0]}, {T[1]}
    s_add_u32 {T[0]}, {T[0]}, {YB}
    s_lshl_b32 {T[1]}, {sCGP}, 12
    s_add_u32 {T[1]}, {T[1]}, {CNT}""")
    seq = []
    for r in range(8):
        for aa in range(8):
            for b in range(7 - aa, -1, -1):
                seq.append((r, aa, b))
    first = {}; last = {}; fin = {}
    for t, (r, aa, b) in enumerate(seq):
        fin[aa + b] = t
        for key in (("F", r, aa), ("G", r, b)):
            first.setdefault(key, t); last[key] = t
    reads = []
    for key, t in first.items():
        kind, r, i = key
        prev = (kind, r - (1 if kind == "F" else 2), i)
        earliest = last[prev] + 1 if prev in last else -99
        if kind == "F":
            for h in range(2):
                reads.append((t, earliest, f"ds_read_b64 {v(FB+4*i+2*h,2)}, v2 offset:{512*i+64*r+8*h}", key))
        else:
            reads.append((t, earliest, f"ds_read_b128 {v(GB[r&1]+4*i,4)}, v3 offset:{512*(7-i)+64*r}", key))
    reads.sort(key=lambda x: x[0])
    early = [x for x in reads if x[3][0] == "F" and x[3][1] == 0]
    for x in early:
        e(x[2], tag=x[3]); reads.remove(x)
    for m in range(4):
        e.wait(vm=f"u{m}")
        e(f"ds_write_b128 v11, {v(16+4*m,4)} offset:{256*m}", tag="w")
    e.wait_all(vm=False)
    e.raw("s_barrier")
    if OPT["go"]:
        L = e.uid("go")
        e.raw(f"""s_or_b32 {T[2]}, {sSLOT}, {sWV}
        s_cmp_lg_u32 {T[2]}, 0
        s_cbranch_scc1 {L}
        s_lshl_b32 {T[2]}, {sX}, 7
        s_add_u32 {T[2]}, {T[2]}, {GOF}
        s_mov_b64 exec, 1
        v_mov_b32 v220, {T[2]}
        v_mov_b32 v222, {sTAG}
        v_mov_b32 v223, {sNTAG}
        global_store_dwordx2 v220, v[222:223], {WSP} sc1
        s_mov_b64 exec, -1
        {L}:""")
    fstamp("u_ready")
    S = Sched()
    S.at(20, ql)
    S.at(200, [(l, "all") for l in all_loads(216, 217, 208).split("\n")])
    for n in range(8):
        S.at(150 + 4 * n, [(f"ds_read_b64 {v(KV+2*n,2)}, v4 offset:{512*(7-n)}", f"kv{n}")])
        d0, d1 = KV + 2 * n, KV + 2 * n + 1
        S.add(205, [f"v_and_b32 v{KU+4*n}, {sMASK}, v{d1}", f"v_lshlrev_b32 v{KU+4*n+1}, 16, v{d1}",
                    f"v_and_b32 v{KU+4*n+2}, {sMASK}, v{d0}", f"v_lshlrev_b32 v{KU+4*n+3}, 16, v{d0}"])
    for n in range(8):
        S.add(fin[n] + 6, [f"v_fmac_f32 v{AC+4*n+k}, {sDV}, v{KU+4*n+k}" for k in range(4)] +
              [f"v_cvt_pk_bf16_f32 v{YP+2*n}, v{AC+4*n}, v{AC+4*n+2}", f"v_cvt_pk_bf16_f32 v{YP+2*n+1}, v{AC+4*n+1}, v{AC+4*n+3}",
               (f"ds_write_b32 v10, v{YP+2*n} offset:{576*n}", "w"), (f"ds_write_b32 v10, v{YP+2*n+1} offset:{576*n+32}", "w")])
    LOOK = 22; ri = 0
    done_acc = set()
    for t, (r, aa, b) in enumerate(seq):
        n = 0
        while ri < len(reads) and reads[ri][1] <= t and (reads[ri][0] - t <= 6 or (n < 1 and reads[ri][0] - t <= LOOK)):
            e(reads[ri][2], tag=reads[ri][3]); ri += 1; n += 1
        need = [("F", r, aa), ("G", r, b)]
        S.gap(t, n + (1 if e.would_wait(lg=need) else 0))
        e.wait(lg=need)
        acc = v(AC + 4 * (aa + b), 4)
        c = acc if (aa + b) in done_acc else "0"
        done_acc.add(aa + b)
        e(f"v_mfma_f32_16x16x32_bf16 {acc}, {v(FB+4*aa,4)}, {v(GB[r&1]+4*b,4)}, {c}")
    assert ri == len(reads) and not S.side
    print(f"conv: {len(S.fill)} epilogue instructions left after the last MFMA", file=sys.stderr)
    fstamp("conv_mfma")
    while S.fill: put(S.fill.pop(0)[1])
    e.wait_all(vm=False)
    e.raw("s_barrier")
    for m in range(4):
        for par in range(2):
            e(f"ds_read_b64_tr_b16 {v(48+4*m+2*par,2)}, v14 offset:{288*m+32*par}", tag=f"t{m}")
    for m in range(4):
        e.wait(lg=f"t{m}")
        e(f"buffer_store_dwordx4 {v(48+4*m,4)}, v12, {WS}, {T[0]} offen sc1", tag="st")
        if m < 3: e(f"s_add_u32 {T[0]}, {T[0]}, {8*20480}")
    all_check()
    e.wait_all()
    e.raw("s_barrier")
    replica_add(T[1])
    stamp("conv_done")

def go_wait():
    if not OPT["go"]: return
    e(f"s_lshl_b32 {T[10]}, {sX}, 7\ns_add_u32 {T[10]}, {T[10]}, {GOF}\nv_mov_b32 v220, {T[10]}")
    e.wait_all()
    spin_tag(f"global_load_dwordx2 v[222:223], v220, {WSP} sc1\ns_sleep 2", 222, 1)

def shuffle():
    e.label("L_shuf")
    e(f"""s_mul_i32 {sCI}, {sX}, 12
    s_add_u32 {sCI}, {sCI}, {sSLOT}
    s_sub_u32 {sCI}, {sCI}, 20""")
    args_ready()
    ffn_ids()
    for it in q_prefetch(8): put(it)
    e(f"s_lshl_b32 {T[0]}, {sCI}, 2\ns_add_u32 {T[0]}, {T[0]}, {sWV}")
    if OPT["warm"]:
        e(f"""s_getpc_b64 s[96:97]
        L_pc:
        s_sub_u32 s96, s96, L_pc-{NAME}
        s_subb_u32 s97, s97, 0
        s_sub_u32 {T[1]}, {sSLOT}, 20
        s_lshl_b32 {T[1]}, {T[1]}, 2
        s_add_u32 {T[1]}, {T[1]}, {sWV}
        s_lshl_b32 {T[1]}, {T[1]}, 11
        v_and_b32 v8, 15, v0
        v_lshlrev_b32 v8, 7, v8
        v_add_u32 v8, {T[1]}, v8
        v_min_u32 v8, L_exit-{NAME}, v8
        global_load_dword v254, v8, s[96:97]""", tag="warm")
    L = e.uid("nz")
    e.raw(f"""s_cmp_ge_u32 {T[0]}, 160
    s_cbranch_scc1 {L}
    s_mul_i32 {T[1]}, {T[0]}, 1639
    s_lshr_b32 {T[1]}, {T[1]}, 16
    s_mul_i32 {T[2]}, {T[1]}, 40
    s_sub_u32 {T[2]}, {T[0]}, {T[2]}
    s_lshl_b32 {T[2]}, {T[2]}, 10
    s_mul_i32 {T[3]}, {T[1]}, {WT}
    s_add_u32 {T[3]}, {T[3]}, {T[2]}
    s_add_u32 {T[3]}, {T[3]}, {WGU + 12*WT + 240*1024}
    v_mov_b32 v16, 0
    v_mov_b32 v17, 0
    v_mov_b32 v18, 0
    v_mov_b32 v19, 0
    buffer_store_dwordx4 v[16:19], v1, {WS}, {T[3]} offen sc1
    {L}:""")
    tag_ready()
    e(f"""s_mul_i32 {T[1]}, {sWV}, {SHST}
    v_lshrrev_b32 v2, 3, v0
    v_and_b32 v3, 7, v0
    v_lshrrev_b32 v8, 4, v0
    v_bfe_u32 v9, v0, 2, 2
    v_and_b32 v10, 3, v0
    v_lshl_add_u32 v8, v8, 3, v9""")
    if OPT["shufwait"]:
        e.wait_all()
    fstamp("shuf_go")
    e(f"s_cmp_ge_u32 {T[0]}, 270\ns_cbranch_scc1 L_shuf_wd")
    srd(SA, P_WG, 640 * 3456); srd(SB, P_WU, 640 * 3456)
    e(f"""s_mul_i32 {T[2]}, {T[0]}, 6554
    s_lshr_b32 {T[2]}, {T[2]}, 16
    s_mul_i32 {T[3]}, {T[2]}, 10
    s_sub_u32 {T[3]}, {T[0]}, {T[3]}
    s_mul_i32 {T[4]}, {T[3]}, {64*3456}
    s_lshl_b32 {T[5]}, {T[2]}, 7
    s_add_u32 {T[4]}, {T[4]}, {T[5]}
    v_mul_u32_u24 v4, 3456, v2
    v_lshl_add_u32 v4, v3, 4, v4""")
    for m in range(8):
        e(f"buffer_load_dwordx4 {v(16+8*m,4)}, v4, {SA}, {T[4]} offen{NT_W}", tag=f"l{m}")
        e(f"buffer_load_dwordx4 {v(20+8*m,4)}, v4, {SB}, {T[4]} offen{NT_W}", tag=f"l{m}")
        if m < 7: e(f"s_add_u32 {T[4]}, {T[4]}, {8*3456}")
    e(f"""v_mul_u32_u24 v11, 272, v2
    v_lshl_add_u32 v11, v3, 4, v11
    v_add_u32 v11, {T[1]}, v11
    v_mul_u32_u24 v12, 272, v8
    v_add_u32 v12, {T[1]}, v12
    s_cmp_lt_u32 {T[2]}, 24
    s_cselect_b32 {T[4]}, 4, 3
    v_lshlrev_b32 v10, {T[4]}, v10
    v_add_u32 v12, v12, v10
    s_cselect_b32 {T[4]}, 8, 32
    v_add_u32 v13, {T[4]}, v12
    v_add_u32 v14, 64, v12
    v_add_u32 v15, 64, v13
    s_cselect_b32 {T[8]}, 4, 2
    s_lshl_b32 {T[8]}, {T[8]}, 10""")
    for m in range(8):
        e.wait(vm=f"l{m}")
        e(f"ds_write_b128 v11, {v(16+8*m,4)} offset:{m*2176}\nds_write_b128 v11, {v(20+8*m,4)} offset:{m*2176+128}", tag="w")
    e.wait(lg="w")
    go_wait()
    for fi in range(4):
        for ss in range(2):
            for mat in range(2):
                for hh in range(2):
                    e(f"ds_read_b64_tr_b16 {v(16+16*fi+8*ss+4*mat+2*hh,2)}, v{12+fi} offset:{(32*ss+4*hh)*272+128*mat}", tag=f"t{fi}")
        e(f"""s_lshl_b32 {T[4]}, {T[2]}, 1
        s_add_u32 {T[4]}, {T[4]}, {fi >> 1}
        s_mul_i32 {T[5]}, {T[4]}, 21846
        s_lshr_b32 {T[5]}, {T[5]}, 16
        s_mul_i32 {T[6]}, {T[5]}, 3
        s_sub_u32 {T[6]}, {T[4]}, {T[6]}
        s_mul_i32 {T[6]}, {T[6]}, 80
        s_add_u32 {T[6]}, {T[6]}, {2 * (fi & 1)}
        s_lshl_b32 {T[4]}, {T[2]}, 2
        s_sub_u32 {T[4]}, {T[4]}, {96 - fi}
        s_cmp_lt_u32 {T[2]}, 24
        s_cselect_b32 {T[5]}, {T[5]}, {T[4]}
        s_cselect_b32 {T[6]}, {T[6]}, 240
        s_mul_i32 {T[5]}, {T[5]}, {WT}
        s_lshl_b32 {T[6]}, {T[6]}, 10
        s_add_u32 {T[7]}, {T[5]}, {T[6]}
        s_lshl_b32 {T[9]}, {T[3]}, 1
        s_mul_i32 {T[9]}, {T[9]}, {T[8]}
        s_add_u32 {T[7]}, {T[7]}, {T[9]}
        s_add_u32 {T[7]}, {T[7]}, {WGU}""")
        e.wait(lg=f"t{fi}")
        for ss in range(2):
            for mat in range(2):
                e(f"buffer_store_dwordx4 {v(16+16*fi+8*ss+4*mat,4)}, v1, {WS}, {T[7]} offen offset:{1024*mat} sc1", tag="st")
            if ss == 0: e(f"s_add_u32 {T[7]}, {T[7]}, {T[8]}")
    e("s_branch L_shuf_end")
    e.vm = []; e.lg = []
    e.label("L_shuf_wd")
    e(f"s_cmp_ge_u32 {T[0]}, 382\ns_cbranch_scc1 L_shuf_end")
    srd(SA, P_WD, 1728 * 1280)
    e(f"""s_sub_u32 {T[2]}, {T[0]}, 270
    s_and_b32 {T[3]}, {T[2]}, 1
    s_lshr_b32 {T[2]}, {T[2]}, 1
    s_mul_i32 {T[4]}, {T[2]}, 4682
    s_lshr_b32 {T[4]}, {T[4]}, 16
    s_mul_i32 {T[5]}, {T[4]}, 14
    s_sub_u32 {T[5]}, {T[2]}, {T[5]}
    s_and_b32 {T[6]}, {T[5]}, 3
    s_lshl_b32 {T[9]}, {T[4]}, 2
    s_add_u32 {T[7]}, {T[9]}, {T[6]}
    s_mul_i32 {T[7]}, {T[7]}, 3
    s_lshr_b32 {T[8]}, {T[5]}, 2
    s_add_u32 {T[7]}, {T[7]}, {T[8]}
    s_lshl_b32 {T[8]}, {T[4]}, 1
    s_add_u32 {T[8]}, {T[8]}, {T[6]}
    s_add_u32 {T[8]}, {T[8]}, 48
    s_cmp_ge_u32 {T[5]}, 12
    s_cselect_b32 {T[7]}, {T[8]}, {T[7]}
    s_mul_i32 {T[6]}, {T[7]}, {32*1280}
    s_mul_i32 {T[9]}, {T[3]}, 640
    s_add_u32 {T[6]}, {T[6]}, {T[9]}
    v_mul_u32_u24 v4, 1280, v2
    v_lshl_add_u32 v4, v3, 4, v4
    v_add_u32 v11, {T[6]}, v4
    v_add_u32 v12, 10240, v11
    v_add_u32 v13, 20480, v11
    v_add_u32 v14, 30720, v11""")
    for rb4 in range(4):
        for ln in range(5):
            e(f"buffer_load_dwordx4 {v(16+20*rb4+4*ln,4)}, v{11+rb4}, {SA}, 0 offen offset:{128*ln}{NT_W}", tag=f"l{rb4}")
    e(f"""v_mul_u32_u24 v4, 656, v2
    v_lshl_add_u32 v4, v3, 4, v4
    v_add_u32 v4, {T[1]}, v4
    v_mul_u32_u24 v15, 656, v8
    v_add_u32 v15, {T[1]}, v15
    v_lshl_add_u32 v2, v10, 4, v15
    v_lshl_add_u32 v3, v10, 3, v15
    s_mul_i32 {T[6]}, {T[3]}, {4*WT}
    s_mul_i32 {T[7]}, {T[4]}, 71680
    s_add_u32 {T[6]}, {T[6]}, {T[7]}
    s_mul_i32 {T[7]}, {T[5]}, 5120
    s_add_u32 {T[6]}, {T[6]}, {T[7]}
    s_add_u32 {T[6]}, {T[6]}, {WDP}""")
    for rb4 in range(4):
        e.wait(vm=f"l{rb4}")
        for ln in range(5):
            e(f"ds_write_b128 v4, {v(16+20*rb4+4*ln,4)} offset:{rb4*8*656+128*ln}", tag="w")
    e.wait(lg="w")
    go_wait()
    for ct in range(4):
        for tau in range(5):
            base = 32 * (tau >> 1) + 4 * (tau & 1) if tau < 4 else 64
            for hh in range(2):
                e(f"ds_read_b64_tr_b16 {v(16+20*ct+4*tau+2*hh,2)}, v{2 if tau < 4 else 3} offset:{4*hh*656+2*(80*ct+base)}", tag=f"t{ct}")
        e.wait(lg=f"t{ct}")
        for tau in range(4):
            e(f"buffer_store_dwordx4 {v(16+20*ct+4*tau,4)}, v1, {WS}, {T[6]} offen offset:{1024*tau} sc1", tag="st")
        e(f"s_add_u32 {T[7]}, {T[6]}, 4096")
        e(f"buffer_store_dwordx4 {v(16+20*ct+16,4)}, v1, {WS}, {T[7]} offen sc1", tag="st")
        e(f"s_add_u32 {T[6]}, {T[6]}, {WT}")
    e.label("L_shuf_end")
    all_addr(216, 217)
    e(all_loads(216, 217, 208), tag="all")
    all_check()
    e.wait_all()
    e.raw("s_barrier")
    e(f"s_lshr_b32 {T[1]}, {sCI}, 4\ns_lshl_b32 {T[1]}, {T[1]}, 12\ns_add_u32 {T[1]}, {T[1]}, {CNT + 2048}")
    replica_add(T[1])
    fstamp("shuf_done")
    if OPT["wtouch"]:
        e(f"""s_lshl_b32 {T[4]}, {sX}, 8
        s_add_u32 {T[4]}, {T[4]}, {CNT + 2048}
        v_min_u32 v7, 5, v0
        v_lshlrev_b32 v7, 12, v7
        v_add_u32 v7, {T[4]}, v7
        s_sub_u32 {T[1]}, {sSLOT}, 20
        s_lshl_b32 {T[1]}, {T[1]}, 2
        s_add_u32 {T[1]}, {T[1]}, {sWV}
        s_mul_i32 {T[1]}, {T[1]}, {6*8192}
        s_mul_i32 {T[2]}, {sHF}, {8*WT}
        s_add_u32 {T[2]}, {T[2]}, {T[1]}
        s_add_u32 {T[2]}, {T[2]}, {WGU}
        v_lshlrev_b32 v8, 7, v0""")
        wait_flag(7, WSP, 16)
        for k in range(6):
            e(f"buffer_load_dword v254, v8, {WS}, {T[2]} offen sc1\ns_add_u32 {T[2]}, {T[2]}, 8192", tag="touch")

class Bg:
    q = []; every = 8; n = 0
def ev(text, tag=None):
    for l in text.split("\n"):
        if not l.strip(): continue
        e(l, tag=tag)
        if l.strip().startswith("v_"):
            Bg.n += 1
            if Bg.q and Bg.n % Bg.every == 0:
                put(Bg.q.pop(0))
                while Bg.q and isinstance(Bg.q[0], str): put(Bg.q.pop(0))
def bg_flush():
    while Bg.q: put(Bg.q.pop(0))

XV, YV, RAW, NV = 16, 40, 64, 88
def unpack24(dst, src):
    for c in range(24):
        if c & 1: ev(f"v_and_b32 v{dst+c}, {sMASK}, v{src+(c>>1)}")
        else: ev(f"v_lshlrev_b32 v{dst+c}, 16, v{src+(c>>1)}")

def row_stats(x, area, scale=None):
    ev(f"v_pk_add_f32 v[112:113], {v(x,2)}, {v(x+2,2)}\nv_pk_mul_f32 v[114:115], {v(x,2)}, {v(x,2)}")
    ev(f"v_pk_fma_f32 v[114:115], {v(x+2,2)}, {v(x+2,2)}, v[114:115]")
    for p in range(2, 12):
        ev(f"v_pk_add_f32 v[112:113], v[112:113], {v(x+2*p,2)}")
        ev(f"v_pk_fma_f32 v[114:115], {v(x+2*p,2)}, {v(x+2*p,2)}, v[114:115]")
    ev("""v_add_f32 v112, v112, v113
    v_add_f32 v113, v114, v115
    v_add_f32_dpp v112, v112, v112 row_ror:8 row_mask:0xf bank_mask:0xf
    v_add_f32_dpp v113, v113, v113 row_ror:8 row_mask:0xf bank_mask:0xf""")
    for sw in ("v_permlane16_swap_b32", "v_permlane32_swap_b32"):
        ev(f"""v_mov_b32 v114, v112
        v_mov_b32 v115, v113
        {sw} v112, v114
        {sw} v113, v115
        v_add_f32 v112, v112, v114
        v_add_f32 v113, v113, v115""")
    e(f"s_mov_b64 exec, 0xff\nds_write_b64 v13, v[112:113] offset:{area}\ns_mov_b64 exec, -1", tag="w")
    e.wait_all(vm=False)
    e.raw("s_barrier")
    e(f"ds_read_b128 v[112:115], v14 offset:{area}\nds_read_b128 v[116:119], v14 offset:{area+16}", tag="r")
    e.wait(lg="r")
    ev(f"""v_pk_add_f32 v[112:113], v[112:113], v[114:115]
    v_pk_add_f32 v[116:117], v[116:117], v[118:119]
    v_pk_add_f32 v[112:113], v[112:113], v[116:117]
    v_mul_f32 v112, {f32(1/640)}, v112
    v_mul_f32 v113, {f32(1/640)}, v113
    v_fma_f32 v113, -v112, v112, v113
    v_max_f32 v113, 0, v113
    v_add_f32 v113, {f32(1e-5)}, v113
    v_rsq_f32 v120, v113""")
    if scale: ev(f"v_mul_f32 v120, {f32(scale)}, v120")
    ev("v_mul_f32_e64 v121, -v112, v120")

def normalise(dst, x):
    for p in range(12):
        ev(f"v_pk_fma_f32 {v(dst+2*p,2)}, {v(x+2*p,2)}, v[120:121], v[120:121] op_sel:[0,0,1] op_sel_hi:[1,0,1]")

def r_addr():
    e(f"""v_and_b32 v8, 7, v0
    v_lshrrev_b32 v9, 3, v0
    s_mul_i32 {T[0]}, {sWV}, 20
    v_add_u32 v9, {T[0]}, v9
    v_lshlrev_b32 v10, 8, v9
    v_lshl_add_u32 v10, v8, 4, v10
    v_add_u32 v11, 2048, v10
    v_add_u32 v12, 4096, v10
    v_mov_b32 v15, {BIG}
    v_cmp_gt_u32 vcc, 32, v0
    v_cndmask_b32 v12, v15, v12, vcc
    v_lshlrev_b32 v14, 5, v8
    v_add_u32 v14, {RED}, v14
    s_lshl_b32 {T[0]}, {sWV}, 3
    v_add_u32 v13, {T[0]}, v14
    s_lshr_b32 {T[1]}, {sRB}, 1
    s_mul_i32 {T[1]}, {T[1]}, 20480
    s_and_b32 {T[2]}, {sRB}, 1
    s_lshl_b32 {T[2]}, {T[2]}, 7
    s_add_u32 {T[1]}, {T[1]}, {T[2]}
    s_lshl_b32 {T[2]}, {sWV}, 10
    v_add_u32 v4, {T[2]}, v1""")

def r_finish(layer):
    row_stats(XV, 256, ALPHA)
    normalise(NV, XV)
    e(f"s_add_u32 {T[2]}, {T[1]}, {XN[layer]}")
    for it in range(3):
        for p in range(4 * it, 4 * it + 4):
            e(f"v_cvt_pk_bf16_f32 v{RAW+p}, v{NV+2*p}, v{NV+2*p+1}")
        e(f"buffer_store_dwordx4 {v(RAW+4*it,4)}, v{10+it}, {WS}, {T[2]} offen sc1", tag="st")
    for p in range(12):
        e(f"v_cvt_pk_bf16_f32 v{RAW+12+p}, v{XV+2*p}, v{XV+2*p+1}")
    if layer == 0:
        for it in range(3):
            e(f"ds_write_b128 v4, {v(RAW+12+4*it,4)} offset:{ST_X-131072+4096*it}", tag="w")
    else:
        e(f"s_add_u32 {T[2]}, {T[1]}, {X3}")
        for it in range(3):
            e(f"buffer_store_dwordx4 {v(RAW+12+4*it,4)}, v{10+it}, {WS}, {T[2]} offen sc1", tag="st")
    cnt_off(T[0], sG, 16 * layer)
    rstamp(f"r_st{layer}")
    e.wait(vm="st")
    rstamp(f"r_dr{layer}")
    e.raw("s_barrier")
    signal(T[0], WSP)
    e(f"v_mov_b32 v7, {T[0]}")
    bg_flush()
    prefill(range(OPT["pre_r"], 8))

def r_prefill():
    Bg.n = 0; Bg.every = OPT["pre_every"]
    for sg in range(OPT["pre_r"]): Bg.q += dma_stage(sg)
    while Bg.q and isinstance(Bg.q[0], str): put(Bg.q.pop(0))

def r1():
    e.label("L_r1")
    ffn_setup()
    r_addr()
    e.wait_all()
    e(f"""v_add_u32 v4, 131072, v4
    v_lshlrev_b32 v2, 8, v9
    v_lshl_add_u32 v2, v8, 3, v2
    v_add_u32 v3, 4096, v2
    v_cmp_gt_u32 vcc, 32, v0
    v_cndmask_b32 v3, v15, v3, vcc
    s_lshr_b32 {T[3]}, {sRB}, 1
    s_mul_i32 {T[3]}, {T[3]}, 20480
    s_and_b32 {T[4]}, {sRB}, 1
    s_lshl_b32 {T[4]}, {T[4]}, 6
    s_add_u32 {T[3]}, {T[3]}, {T[4]}
    s_add_u32 {T[3]}, {T[3]}, {YB}""")
    for i in range(12):
        e(f"v_accvgpr_read_b32 v{RAW+i}, a{240+i}")
    unpack24(XV, RAW)
    row_stats(XV, 0)
    normalise(NV, XV)
    e(f"""s_lshl_b32 {T[4]}, {sX}, 8
    s_add_u32 {T[4]}, {T[4]}, {CNT}
    v_and_b32 v7, 15, v0
    v_lshlrev_b32 v6, 12, v7
    v_subrev_u32 v122, {10*4096 - 2048}, v6
    v_cmp_gt_u32 vcc, 10, v7
    v_cndmask_b32 v7, v122, v6, vcc
    v_add_u32 v7, {T[4]}, v7""")
    wait_flag(7, WSP, 16)
    stamp("conv_flag")
    for it in range(3):
        for h in range(2):
            va, off = (2, 2048 * it + 128 * h) if it < 2 else (3, 128 * h)
            e(f"buffer_load_dwordx2 {v(RAW+4*it+2*h,2)}, v{va}, {WS}, {T[3]} offen offset:{off} sc1", tag="y")
    r_prefill()
    for _ in range(OPT["pre_now"]): put(Bg.q.pop(0))
    e.wait(vm="y")
    rstamp("y_arr")
    unpack24(YV, RAW)
    for p in range(12):
        ev(f"v_pk_fma_f32 {v(XV+2*p,2)}, {v(NV+2*p,2)}, {v(YV+2*p,2)}, {v(XV+2*p,2)}")
    for it in range(3):
        e(f"ds_write_b128 v4, {v(RAW+4*it,4)} offset:{ST_Y-131072+4096*it}", tag="w")
    r_finish(0)
    stamp("r1_done")

def r2_pre():
    r_addr()
    e("v_add_u32 v4, 131072, v4")
    for it in range(3):
        e(f"ds_read_b128 {v(RAW+4*it,4)}, v4 offset:{ST_X-131072+4096*it}", tag="x")
    for it in range(3):
        e(f"ds_read_b128 {v(RAW+12+4*it,4)}, v4 offset:{ST_Y-131072+4096*it}", tag="x")
    e.wait(lg="x")
    unpack24(XV, RAW)
    unpack24(YV, RAW + 12)
    e(f"s_add_u32 {T[2]}, {T[1]}, {F1}")

def r2():
    wait_flag(7, WSP, 8)
    stamp("f_flag")
    e(f"s_mov_b32 s96, {f32(INVA2)}")
    for it in range(3):
        e(f"buffer_load_dwordx4 {v(RAW+4*it,4)}, v{10+it}, {WS}, {T[2]} offen sc1", tag="f")
    r_prefill()
    for _ in range(OPT["pre_now"]): put(Bg.q.pop(0))
    e.wait(vm="f")
    rstamp("f_arr")
    unpack24(NV, RAW)
    for p in range(12):
        ev(f"v_pk_fma_f32 {v(XV+2*p,2)}, {v(NV+2*p,2)}, s[96:97], {v(XV+2*p,2)} op_sel_hi:[1,0,1]")
    row_stats(XV, 0)
    normalise(NV, XV)
    for p in range(12):
        ev(f"v_pk_fma_f32 {v(XV+2*p,2)}, {v(NV+2*p,2)}, {v(YV+2*p,2)}, {v(XV+2*p,2)}")
    r_finish(1)
    stamp("r2_done")

XR = 16; ACC = (176, 208); WB0 = 220; NWB = 9; PD = OPT["pd"]; NRES = 11

def dma_stage(sg):
    out = [f"s_add_u32 {sWO}, {sWB}, {sg*16384}", f"s_add_u32 m0, {sM0}, {(sg & 7)*16384}"]
    out += [(f"buffer_load_dwordx4 v1, {WS}, {sWO} offen offset:{1024*d} sc1 lds", f"dma{sg}") for d in range(4)]
    return out

def put(item):
    if isinstance(item, tuple): e(item[0], tag=item[1])
    elif callable(item): item()
    else: e(item)

def prefill(stages):
    for sg in stages:
        for it in dma_stage(sg): put(it)

def ffn_setup():
    e(f"""s_mul_i32 {sWB}, {sJT}, {WT}
    s_lshl_b32 {sM0}, {sWV}, 12
    s_add_u32 {sWB}, {sWB}, {sM0}
    s_add_u32 {sWB}, {sWB}, {WGU}
    s_mul_i32 {sWD}, {sMI}, {WT}
    s_mul_i32 {T[0]}, {sWV}, 71680
    s_add_u32 {sWD}, {sWD}, {T[0]}
    s_add_u32 {sWD}, {sWD}, {WDP}""")

def geglu(g, u, n, outq):
    L = []
    if OPT["x_nofill"]: return L
    for z in range(n):
        L += [f"v_fma_f32 v{8+(z&3)}, v{g+z}, v{g+z}, v4", f"v_mul_f32 v{u+z}, v{g+z}, v{u+z}",
              f"v_mul_f32_e64 v{g+z}, -v{g+z}, v{8+(z&3)}", f"v_exp_f32 v{g+z}, v{g+z}", f"v_add_f32 v{g+z}, 1.0, v{g+z}",
              f"v_rcp_f32 v{g+z}, v{g+z}", f"v_mul_f32 v{u+z}, v{u+z}, v{g+z}"]
        if z & 1: L.append(f"v_cvt_pk_bf16_f32 v{outq+(z>>1)}, v{u+z-1}, v{u+z}")
    return L

def text_of(item): return item[0] if isinstance(item, tuple) else item
def slots(item):
    t = text_of(item)
    if callable(t): return 9
    return 2 if t.startswith(("v_exp", "v_rcp")) else 1
def is_mem(item):
    t = text_of(item)
    return not callable(t) and t.startswith(("buffer_", "global_", "ds_"))

class Sched:
    def __init__(self):
        self.side = []; self.fill = []; self.seq = 0; self.over = 0; self.hook = None
    def at(self, slot, items):
        for it in items:
            self.seq += 1; self.side.append((slot, self.seq, it))
        self.side.sort(key=lambda x: x[:2])
    def add(self, slot, items):
        for it in items: self.fill.append((slot, it, Ins(text_of(it))))
    def pending(self, tag): return any(isinstance(it, tuple) and it[1] == tag for _, it, _ in self.fill)
    def gap(self, n, used, extra=0):
        room = 2 + extra - used; valu = False; m0 = False
        while self.side and self.side[0][0] <= n:
            slot, _, it = self.side[0]
            late = n - slot >= OPT["slack"]
            dma = is_mem(it) and text_of(it).endswith("lds")
            if not late and (slots(it) > room or (dma and m0)) and slots(it) < 9: break
            self.side.pop(0); put(it); room -= slots(it)
            m0 = not callable(it) and " m0," in text_of(it)
        k = 0
        while room > 0 and k < min(len(self.fill), 20):
            slot, it, ins = self.fill[k]
            ok = slot <= n and slots(it) <= room and not (is_mem(it) and valu)
            for _, _, o in self.fill[:k]:
                if (o.dst & (ins.src | ins.dst)) or (o.src & ins.dst) or (o.kind in ("vmem", "ds") and ins.kind in ("vmem", "ds", "salu")) or (o.kind == "salu"):
                    ok = False; break
            if ok and ins.op.startswith("v_permlane") and valu: ok = False
            if ok:
                self.fill.pop(k); put(it); room -= slots(it); valu = valu or ins.kind == "valu"
                if self.hook: self.hook(it, n)
                if ins.op.startswith(("v_exp", "v_rcp")): break
                k = 0
            else:
                k += 1
        if room < 0: self.over -= room

def check_or_spin(vt, vaddr, target):
    def fn():
        L = e.uid("rdy")
        e.wait(vm=f"poll{vt}")
        keep = list(e.vm)
        e.raw(f"v_cmp_gt_u32 vcc, {target}, v{vt}\ns_cbranch_vccz {L}")
        spin(vaddr, WSP, target, vt)
        e.raw(f"{L}:")
        e.vm = keep
    return fn

HF = 16
WNQ = list(range(224, 240, 4)) + list(range(160, 176, 4)) + list(range(176, 204, 4))
def acc2(tau, ri): return 80 + 4 * (ri * 5 + tau)
def wdreg(fr): return a(4 * fr, 4) if fr < 5 * NRES else v(WNQ[fr - 5 * NRES], 4)
sX0, sX1, sHC, sWDO, sTMP, sHT = T[10], T[11], T[12], T[13], T[14], T[15]
sHS1, sWNO = T[16], T[17]

def ffn(layer):
    H = HB[layer]
    e(f"""v_add_u32 v2, 0x10000, v1
    v_mov_b32 v4, {f32(KAPPA)}
    v_bfe_u32 v8, v0, 4, 1
    v_mul_u32_u24 v3, 57344, v8
    v_lshrrev_b32 v8, 5, v0
    v_lshl_add_u32 v3, v8, 8, v3
    v_and_b32 v8, 15, v0
    v_lshl_add_u32 v3, v8, 4, v3
    s_lshl_b32 {T[0]}, {sG}, 3
    s_lshl_b32 {T[1]}, {sWV}, 1
    s_add_u32 {T[1]}, {T[1]}, {T[0]}
    s_mul_i32 {sX0}, {T[1]}, 20480
    s_add_u32 {sX0}, {sX0}, {XN[layer]}
    s_add_u32 {sX1}, {sX0}, 20480
    s_mul_i32 {T[1]}, {T[1]}, 57344
    s_lshr_b32 {T[2]}, {sJT}, 2
    s_mul_i32 {T[2]}, {T[2]}, 14336
    s_add_u32 {T[1]}, {T[1]}, {T[2]}
    s_add_u32 {T[1]}, {T[1]}, {H}
    s_and_b32 {T[2]}, {sJT}, 3
    s_lshl_b32 {T[3]}, {T[2]}, 10
    s_add_u32 {sHS}, {T[1]}, {T[3]}
    s_add_u32 {sHS1}, {sHS}, 57344
    s_lshl_b32 {T[3]}, {T[2]}, 9
    s_add_u32 {sHS3}, {T[1]}, {T[3]}
    s_add_u32 {sHS3}, {sHS3}, 12288
    s_lshl_b32 {T[1]}, {sHF}, 2
    s_add_u32 {T[0]}, {T[0]}, {T[1]}
    s_mul_i32 {T[2]}, {sWV}, 14336
    s_add_u32 {T[2]}, {T[2]}, {H}""")
    for ri in range(4):
        e(f"""s_add_u32 {T[1]}, {sWV}, {ri}
        s_and_b32 {T[1]}, {T[1]}, 3
        s_add_u32 {T[1]}, {T[1]}, {T[0]}
        s_mul_i32 {T[1]}, {T[1]}, 57344
        s_add_u32 {sH[ri]}, {T[1]}, {T[2]}""")
    e(f"""s_and_b32 {T[1]}, {sMI}, 1
    s_lshl_b32 {T[1]}, {T[1]}, 1
    s_add_u32 {T[1]}, {T[1]}, {T[0]}
    s_lshr_b32 {T[2]}, {sWV}, 1
    s_add_u32 {T[1]}, {T[1]}, {T[2]}
    s_mul_i32 {sHT}, {T[1]}, 57344
    s_lshr_b32 {T[1]}, {sMI}, 1
    s_mul_i32 {T[1]}, {T[1]}, 14336
    s_add_u32 {sHT}, {sHT}, {T[1]}
    s_add_u32 {sHT}, {sHT}, {H}
    s_and_b32 {T[1]}, {sWV}, 1
    s_lshl_b32 {T[2]}, {T[1]}, 11
    v_lshlrev_b32 v250, 7, v8
    v_and_b32 v251, 0x380, v250
    v_add_u32 v250, {T[2]}, v250
    s_lshl_b32 {T[2]}, {T[1]}, 10
    v_add_u32 v251, {T[2]}, v251
    s_mul_i32 {sHC}, {sG}, 3""")
    cnt_off(sHC, sHC, 64 + 48 * layer)
    e(f"v_mov_b32 v244, {sHC}\nv_add_u32 v245, 64, v244\nv_add_u32 v246, 256, v244\nv_add_u32 v248, 512, v244")
    wait_flag(7, WSP, 16)
    stamp(f"xn_flag{layer}")

    def xload(i):
        s_, rt = i >> 1, i & 1
        L = [(f"buffer_load_dwordx4 {v(XR+4*i,4)}, v1, {WS}, {(sX0, sX1)[rt]} offen offset:{1024*(s_&3)} sc1", f"x{i}")]
        if s_ & 3 == 3 and s_ < 19: L.append(f"s_add_u32 {(sX0, sX1)[rt]}, {(sX0, sX1)[rt]}, 4096")
        return L
    def wread(fr):
        addr = (fr & 127) * 1024
        e(f"ds_read_b128 {a(WB0+4*(fr%NWB),4)}, v{1 if addr < 65536 else 2} offset:{addr & 65535}", tag=f"w{fr}")
    def hload(ks, ri):
        return (f"buffer_load_dwordx4 {v(HF+16*(ks&3)+4*ri,4)}, v1, {WS}, {sH[ri]} offen offset:{1024*(ks&3)} sc1", f"h{ks}_{ri}")
    def wdload(fr):
        L = []
        so = sWDO if fr < 5 * NRES else sWNO
        if fr & 3 == 0 or fr == 5 * NRES: L.append(f"s_add_u32 {so}, {sWD}, {(fr & ~3)*1024}")
        L.append((f"buffer_load_dwordx4 {wdreg(fr)}, v1, {WS}, {so} offen offset:{1024*(fr&3)} sc1", f"wd{fr}"))
        return L
    def htouch(p):
        if not OPT["htouch"]: return []
        return [f"s_add_u32 {sTMP}, {sHT}, {4096*p}", (f"buffer_load_dword v249, v{250 if p < 3 else 251}, {WS}, {sTMP} offen sc1", "touch")]
    def sig_h(pi):
        e(f"s_add_u32 {sTMP}, {sHC}, {(0, 64, 256, 512)[pi]}")
        signal(sTMP, WSP)

    G2 = 560
    S = Sched(); at, add = S.at, S.add
    for p in range(3):
        s0 = 160 * (p + 1) + 4
        for rt in range(2):
            base = ACC[p & 1] + 16 * rt; q = (12, 240)[rt]
            add(s0, geglu(base, base + 8, 8, q))
            add(s0, [(f"buffer_store_dwordx4 {v(q,4)}, v1, {WS}, {(sHS, sHS1)[rt]} offen sc1", f"hs{p}")])
        if p < 2: add(s0, [f"s_add_u32 {sHS}, {sHS}, 4096", f"s_add_u32 {sHS1}, {sHS1}, 4096"])
    add(G2 + 4, geglu(ACC[1], ACC[1] + 4, 4, 12) + geglu(ACC[1] + 8, ACC[1] + 12, 4, 14))
    add(G2 + 4, ["v_permlane16_swap_b32 v12, v14", "v_permlane16_swap_b32 v13, v15",
                 (f"buffer_store_dwordx4 v[12:15], v3, {WS}, {sHS3} offen sc1", "hs3")])
    add(G2 + 120, f"""v_lshrrev_b32 v8, 4, v0
    v_and_b32 v9, 15, v0
    v_lshrrev_b32 v11, 1, v8
    v_lshlrev_b32 v11, 8, v11
    v_lshl_add_u32 v11, v9, 4, v11
    v_add_u32 v11, 2048, v11
    v_mov_b32 v15, {BIG}
    v_and_b32 v12, 16, v0
    v_cmp_eq_u32 s[98:99], 0, v12
    s_lshl_b32 {T[8]}, {sG}, 3
    s_lshl_b32 {T[9]}, {sHF}, 2
    s_add_u32 {T[8]}, {T[8]}, {T[9]}
    s_add_u32 {T[8]}, {T[8]}, {sWV}
    v_cndmask_b32 v11, v15, v11, s[98:99]
    s_mul_i32 {T[7]}, {T[8]}, {16*1280}
    s_mul_i32 {T[8]}, {T[8]}, 20480
    s_mul_i32 {T[9]}, {sMI}, 2560
    s_add_u32 {T[8]}, {T[8]}, {T[9]}
    s_add_u32 {T[8]}, {T[8]}, {F1 if layer == 0 else X3}
    s_mul_i32 {T[0]}, {sWV}, 15360
    v_add_u32 v204, {T[0]}, v1""".replace("    ", "").split("\n"))
    for ri in range(1, 4):
        add(G2 + 120, [f"s_add_u32 {T[0]}, {sWV}, {ri}", f"s_and_b32 {T[0]}, {T[0]}, 3", f"s_mul_i32 {T[0]}, {T[0]}, 15360", f"v_add_u32 v{204+ri}, {T[0]}, v1"])
    if layer == 1:
        add(G2 + 120, f"""s_mul_i32 {T[9]}, {sMI}, 160
        s_add_u32 {T[7]}, {T[7]}, {T[9]}
        v_mul_u32_u24 v10, 1280, v9
        v_lshrrev_b32 v13, 1, v8
        v_lshl_add_u32 v13, v13, 4, v10
        v_lshl_add_u32 v10, v8, 4, v10
        v_cndmask_b32 v13, v15, v13, s[98:99]
        s_mov_b32 s12, s{P_OUT}
        s_mov_b32 s13, s{P_OUT+1}
        s_mov_b32 s14, {ACT}
        s_mov_b32 s15, 0x20000
        s_mov_b32 s96, {f32(INVA2)}""".replace("    ", "").split("\n"))
        add(G2 + 224, [(f"buffer_load_dwordx4 v[48:51], v1, {WS}, {T[8]} offen sc1", "x3"),
                       (f"buffer_load_dwordx4 v[52:55], v1, {WS}, {T[8]} offen offset:1024 sc1", "x3"),
                       (f"buffer_load_dwordx4 v[56:59], v11, {WS}, {T[8]} offen sc1", "x3")])
    else:
        add(G2 + 120, [f"s_lshl_b32 {T[7]}, {sG}, 1", f"s_add_u32 {T[7]}, {T[7]}, {sHF}", f"s_lshl_b32 {T[7]}, {T[7]}, 8",
                       f"s_add_u32 {T[7]}, {T[7]}, {CNT + 32 * 256 + 128}"])
    for ri in range(1, 3):
        add(G2 + 260 + 5 * ri + 4, [(f"ds_write_b128 v{204+ri}, {v(acc2(tau,ri),4)} offset:{(ri-1)*5120+1024*tau}", "rw") for tau in range(5)])
    for i in range(OPT["xup"]):
        for it in xload(i): put(it)
    for i in range(OPT["xup"], 40):
        at(4 * (i - OPT["xup"]) + 1, xload(i))
    if layer == 0:
        n = 5 * NRES
        for fr in range(n):
            at(OPT["wd0"] + (fr * (OPT["wd1"] - OPT["wd0"])) // n, wdload(fr))
    for k, fr in enumerate(range(5 * NRES, 70)):
        at(485 + 16 * k if k < 4 else G2 + OPT["wn0"] + OPT["wn_gap"] * (k - 4) + 2, wdload(fr))
    chk = [OPT["chk0"], OPT["chk1"], OPT["chk2"], OPT["chk3"]]
    for p, va in enumerate((244, 245, 246, 248)):
        at(chk[p] - OPT["poll_lead"], [(f"global_load_dword v247, v{va}, {WSP} sc1", "poll247")])
        at(chk[p], [check_or_spin(247, va, 16)] + htouch(p))
    for ks in range(4):
        for ri in range(4):
            at(489 + 16 * ks + 2 * ri, [hload(ks, ri)])
    for ks in range(4, 14):
        t0 = G2 + 20 * (ks - (OPT["hd1"] if ks < 8 else OPT["hd"]))
        assert t0 > chk[ks >> 2] and OPT["hd"] <= 3
        if ks & 3 == 0: at(t0, [f"s_add_u32 {sH[ri]}, {sH[ri]}, 4096" for ri in range(4)])
        for ri in range(4):
            at(t0 + 4 * ri + 2, [hload(ks, ri)])
    sig_after = {"hs0": 0, "hs1": 1, "hs2": 2, "hs3": 3}
    issued = {}
    def hook(it, slot):
        if isinstance(it, tuple) and it[1] in sig_after and not S.pending(it[1]): issued[it[1]] = slot
    S.hook = hook
    order = []
    for ks in range(14):
        for ri in ((0, 1, 2, 3) if ks < 13 else (1, 2, 3, 0)):
            for tau in range(5): order.append((ks, ri, tau))
    dma_t = 4 * (40 - OPT["xup"]) + 3
    for n in range(-2 * PD, G2 + 280):
        ready = [t for t in sig_after if t in issued and n - issued[t] >= OPT["lag"]]
        used = 0
        if n < G2 and n % 2 == 0:
            nxt = n // 2 + PD
            if nxt < 280 and nxt % 32 == 0:
                sg = nxt // 16
                e.wait(vm=[f"dma{sg}", f"dma{sg + 1}"] + ready)
                if not OPT["x_nobar"] or ready: e.raw("s_barrier")
                for t in ready:
                    assert n < chk[sig_after[t]] - 20, (t, n)
                    sig_h(sig_after.pop(t))
                used += 2
                for k in (sg + 4, sg + 5):
                    if 8 <= k <= 17 and not OPT["x_nodma"]:
                        st = dma_stage(k)
                        dma_t = max(dma_t, n + 1)
                        at(dma_t, st[:2])
                        for d in range(4): at(dma_t + OPT["dma_gap"] * d + 2, [st[2 + d]])
                        dma_t += 4 * OPT["dma_gap"]
            if nxt < 280: wread(nxt); used += 1
        elif n >= OPT["pub_from"] and ready:
            e.wait(vm=ready)
            e.raw("s_barrier")
            for t in ready:
                assert n < chk[sig_after[t]], (t, n)
                print(f"layer {layer}: {t} issued at {issued[t]} published at {n}", file=sys.stderr)
                sig_h(sig_after.pop(t))
            used += 2
        if n < 0: continue
        if n < G2:
            fr, rt = n >> 1, n & 1
            p = min(fr // 80, 3); fi = fr - 80 * p
            if p < 3: s_, acc = fi >> 2, ACC[p & 1] + 16 * rt + 8 * (fi & 1) + 4 * ((fi >> 1) & 1)
            else: s_, acc = fi >> 1, ACC[1] + 8 * rt + 4 * (fi & 1)
            if fi == 0 and p >= 2: assert f"hs{p-2}" in issued
            wv_, wl_ = [f"x{2*s_}", f"x{2*s_+1}"], [f"w{k}" for k in range(fr, fr - fr % OPT["lgw"] + OPT["lgw"])]
            mf = f"v_mfma_f32_16x16x32_bf16 {v(acc,4)}, {a(WB0+4*(fr%NWB),4)}, {v(XR+8*s_+4*rt,4)}, {v(acc,4) if s_ else 0}"
        else:
            ks, ri, tau = order[n - G2]
            fr = 5 * ks + tau
            if fr >= 5 * NRES: assert "hs3" in issued
            wv_, wl_ = [f"h{ks}_{k}" for k in (range(4) if OPT["ksw"] else [ri])] + [f"wd{k}" for k in range(5 * ks, 5 * ks + 5)], []
            acc = v(acc2(tau, ri), 4)
            mf = f"v_mfma_f32_16x16x32_bf16 {acc}, {wdreg(fr)}, {v(HF+16*(ks&3)+4*ri,4)}, {acc if ks else 0}"
        if e.would_wait(wv_, wl_): used += 1
        extra = OPT["x3"] if 484 <= n < G2 and n & 1 else OPT["x2"] if G2 <= n < G2 + 60 and n & 1 else 0
        S.gap(n, used, extra)
        if OPT["ksprof"] == layer + 1 and n >= G2 and (n - G2) % 20 == 0: lstamp(f"ks{(n-G2)//20}")
        if OPT["ksprof"] == layer + 1 and n == G2 + 268: lstamp(None)
        if n == G2 and not OPT["ksprof"]: stamp(f"g1_done{layer}")
        if OPT["passprof"] == 1 and n in (1, 160, 320, 480): stamp(f"L{layer}_at{n}")
        if OPT["passprof"] == 1 and n - G2 in (80, 160): stamp(f"L{layer}_g2at{n-G2}")
        e.wait(vm=wv_, lg=wl_)
        e(mf)
    while S.fill: put(S.fill.pop(0)[1])
    assert not S.side and not sig_after, (S.side, sig_after)
    print(f"layer {layer}: {S.over} issue slots over budget", file=sys.stderr)
    stamp(f"g2_mfma{layer}")
    for tau in range(5):
        e(f"ds_write_b128 v207, {v(acc2(tau,3),4)} offset:{2*5120+1024*tau}", tag="rw")
    e.wait_all(vm=False)
    e.raw("s_barrier")
    RD = 160
    for k in range(11):
        e(f"ds_read_b128 {v(RD+4*k,4)}, v204 offset:{1024*k}", tag=f"r{k}")
    for k in range(11, 15):
        e(f"ds_read_b128 {v(RD+4*k+4,4)}, v204 offset:{1024*k}", tag=f"r{k}")
    if layer == 1:
        e.wait(vm="x3")
        for i in range(24):
            e(f"v_and_b32 v{16+i}, {sMASK}, v{48+(i>>1)}" if i & 1 else f"v_lshlrev_b32 v{16+i}, 16, v{48+(i>>1)}")
    for k in range(15):
        e.wait(lg=f"r{k}")
        d = acc2(k % 5, 0); r = RD + 4 * k + (4 if k >= 11 else 0)
        for h in range(2):
            e(f"v_pk_add_f32 {v(d+2*h,2)}, {v(d+2*h,2)}, {v(r+2*h,2)}")
    d = acc2(4, 0)
    if layer == 0:
        for g in range(2):
            for i in range(4):
                dd = acc2(2 * g + (i >> 1), 0) + 2 * (i & 1)
                e(f"v_cvt_pk_bf16_f32 v{16+4*g+i}, v{dd}, v{dd+1}")
            e(f"buffer_store_dwordx4 {v(16+4*g,4)}, v1, {WS}, {T[8]} offen offset:{1024*g} sc1", tag="st")
        e(f"""v_cvt_pk_bf16_f32 v24, v{d}, v{d+1}
        v_cvt_pk_bf16_f32 v25, v{d+2}, v{d+3}
        v_mov_b32 v26, v24
        v_mov_b32 v27, v25
        v_permlane16_swap_b32 v24, v26
        v_permlane16_swap_b32 v25, v27
        buffer_store_dwordx4 v[24:27], v11, {WS}, {T[8]} offen sc1""", tag="st")
        r2_pre()
        e.wait_all()
        e.raw("s_barrier")
        signal(T[7], WSP)
        e(f"v_mov_b32 v7, {T[7]}")
    else:
        for g in range(2):
            for i in range(4):
                dd = acc2(2 * g + (i >> 1), 0) + 2 * (i & 1)
                e(f"v_pk_fma_f32 {v(dd,2)}, {v(dd,2)}, s[96:97], {v(16+8*g+2*i,2)} op_sel_hi:[1,0,1]")
            for i in range(4):
                dd = acc2(2 * g + (i >> 1), 0) + 2 * (i & 1)
                e(f"v_cvt_pk_bf16_f32 v{60+4*g+i}, v{dd}, v{dd+1}")
            e(f"buffer_store_dwordx4 {v(60+4*g,4)}, v10, {SA}, {T[7]} offen offset:{64*g}{OUTP}", tag="st")
        for i in range(4):
            e(f"v_mov_b32 v{44+i}, v{d+i}")
        for i in range(4):
            e(f"v_permlane16_swap_b32 v{d+i}, v{44+i}")
        for i in range(4):
            dd = d + 2 * i if i < 2 else 44 + 2 * (i - 2)
            e(f"v_pk_fma_f32 {v(dd,2)}, {v(dd,2)}, s[96:97], {v(32+2*i,2)} op_sel_hi:[1,0,1]")
        e(f"""v_cvt_pk_bf16_f32 v68, v{d}, v{d+1}
        v_cvt_pk_bf16_f32 v69, v{d+2}, v{d+3}
        v_cvt_pk_bf16_f32 v70, v44, v45
        v_cvt_pk_bf16_f32 v71, v46, v47
        buffer_store_dwordx4 v[68:71], v13, {SA}, {T[7]} offen offset:128{OUTP}""", tag="st")
        L = e.uid("epo")
        e.raw(f"""s_or_b32 {T[0]}, s2, {sWV}
        s_cmp_lg_u32 {T[0]}, 0
        s_cbranch_scc1 {L}
        s_mov_b64 exec, 1
        v_mov_b32 v6, {EPO}
        v_mov_b32 v7, {sTAG}
        global_store_dword v6, v7, {WSP} sc1
        s_mov_b64 exec, -1
        {L}:""")
    stamp(f"g2_done{layer}")

def finish():
    if OPT["prof"]:
        e.wait_all()
        stamp("end")
        e(f"""s_lshl_b32 {T[0]}, s2, 2
        s_add_u32 {T[0]}, {T[0]}, {sWV}
        s_lshl_b32 {T[0]}, {T[0]}, 8
        s_add_u32 {T[0]}, {T[0]}, {PROF}
        v_lshlrev_b32 v1, 2, v0
        buffer_store_dword v{VST}, v1, {WS}, {T[0]} offen""")
    e.label("L_exit")
    e("s_endpgm")

entry()
p0()
conv()
e("s_branch L_r1")
e.vm = []; e.lg = []
shuffle()
r1()
ffn(0)
r2()
ffn(1)
finish()
nops = e.pad()

hdr = open("interleave_layers__ssm_conv_h3__glu_gated_geglu__prompt.s.ref").read().split("; Override launch")[0]
out = hdr + f"""; Single persistent launch: 256 workgroups, one per CU, phases chained by counters in d_debug / d_ws.
; @launch grid=(256,1,1) block=(256,1,1) lds={LDS_BYTES}
.amdgcn_target "amdgcn-amd-amdhsa--gfx950"
.text
.globl {NAME}
.p2align 8
.type {NAME},@function
{NAME}:
""" + e.text() + f""".section .rodata,"a"
.p2align 6
.amdhsa_kernel {NAME}
  .amdhsa_next_free_vgpr 512
  .amdhsa_next_free_sgpr 102
  .amdhsa_accum_offset 256
  .amdhsa_group_segment_fixed_size 0
  .amdhsa_kernarg_size 104
  .amdhsa_user_sgpr_count 2
  .amdhsa_user_sgpr_kernarg_segment_ptr 1
  .amdhsa_system_sgpr_workgroup_id_x 1
  .amdhsa_float_denorm_mode_32 3
.end_amdhsa_kernel
"""
open(sys.argv[1], "w").write(out)
import json
json.dump(dict(stamps=stamp_names, KVT=KVT, YB=YB, XN=XN, X3=X3, F1=F1, HB=HB, WGU=WGU, WDP=WDP, PROF=PROF, CNT=CNT), open(sys.argv[1] + ".json", "w"))
print(f"{len(e.ins)} lines, {nops} padded wait states", file=sys.stderr)
```

```python
import sys, math, struct
from emit import Emit, Ins

NAME = "interleave_layers__ssm_conv_h3__glu_gated_geglu__prompt_kernel"
OPT = dict(prof=0, nt_in=0, nt_w=0, stop=99, warm=1, shufwait=0, bud=7, bud3=12, bud2=12, lag=50, poll_lead=45, chk0=480, chk1=578, chk2=678, chk3=758, hd=2, wn0=10, wn_gap=15, x_nodma=0, x_nobar=0, x_nofill=0, passprof=0, ksprof=0, xup=10, wd0=100, wd1=640, htouch=0, dbgspin=0, pre_r=5, pre_every=8, pre_now=4, bar2=1, dma_gap=7, pd=8, lgw=4, slack=3, x3=4, x2=2, pub_from=480, hd1=3, ksw=0, sig_q=2, wtouch=0, go=1, outpol=0, dbgout=0, xtouch=0)
for a in sys.argv[2:]:
    k, v = a.split("="); OPT[k] = int(v)

C1 = 2.0 * math.sqrt(2.0 / math.pi) * math.log2(math.e); C2 = C1 * 0.044715
ALPHA = C2 ** (1.0 / 3.0); KAPPA = C1 / ALPHA; INVA2 = 1.0 / (ALPHA * ALPHA)
ACT = 0x280000
CNT = 0; EPO = 0xA000; P0F = 0xA080; GOF = 0xA800; PROF = 0x10000
KVT = 0x100000; YB = KVT + ACT; XN = [YB + ACT, YB + 2 * ACT]; X3 = YB + 3 * ACT; F1 = YB + 4 * ACT
HB = [F1 + ACT, F1 + ACT + 0x700000]
WGU = HB[1] + 0x700000; WDP = WGU + 0x460000; WS_END = WDP + 0x230000
WT = 286720
RING = 0; ST_X = 131072; ST_Y = ST_X + 12288; RED = ST_Y + 12288
P0L = 0; F0 = 16384; FCH = 16640; FCP = 4160; U0 = F0 + 4 * FCH; UCH = 4640; YA = U0 + 4 * UCH; YCS = 4624
SHST = 20992
LDS_BYTES = 163840
SPIN_LIMIT = 400000
WS = "s[8:11]"; SA = "s[12:15]"; SB = "s[44:47]"; SC = "s[48:51]"
P_Q, P_K, P_V, P_SHK, P_SSM, P_D, P_WG, P_WU, P_WD, P_OUT, P_DBG, P_WS = 16, 18, 20, 22, 24, 26, 30, 32, 34, 36, 38, 40
sWV, sX, sSLOT, sG, sHF, sMI, sCI, sCGP, sMASK, sRB, sJT = "s52", "s53", "s54", "s55", "s56", "s57", "s58", "s59", "s60", "s61", "s62"
sDV = "s63"; sTAG = "s42"; sNTAG = "s43"
T = [f"s{i}" for i in range(64, 84)]
sSPIN = "s84"; sWB = "s85"; sWO = "s86"; sM0 = "s87"; sH = ["s88", "s89", "s90", "s91"]; sHS = "s92"; sHS3 = "s93"; sWD = "s94"
DBG = f"s[{P_DBG}:{P_DBG+1}]"; WSP = f"s[{P_WS}:{P_WS+1}]"
NT_IN = " nt" if OPT["nt_in"] else ""
NT_W = " nt" if OPT["nt_w"] else ""
BIG = "0x80000000"
OUTP = ("", " sc1", " nt", " sc0 sc1")[OPT["outpol"]]

e = Emit()
def v(i, n=1): return f"v{i}" if n == 1 else f"v[{i}:{i+n-1}]"
def a(i, n=1): return f"a{i}" if n == 1 else f"a[{i}:{i+n-1}]"
def f32(x): return "0x%08x" % struct.unpack("<I", struct.pack("<f", x))[0]

def srd(dst, ptr, nbytes, add=None):
    d = int(dst[2:dst.index(":")])
    if add is None:
        e(f"s_mov_b32 s{d}, s{ptr}\ns_mov_b32 s{d+1}, s{ptr+1}")
    else:
        e(f"s_add_u32 s{d}, s{ptr}, {add}\ns_addc_u32 s{d+1}, s{ptr+1}, 0")
    e(f"s_mov_b32 s{d+2}, {nbytes}\ns_mov_b32 s{d+3}, 0x20000")

VST = 5
stamp_names = []
def stamp(name):
    if not OPT["prof"]:
        return
    i = stamp_names.index(name) if name in stamp_names else len(stamp_names)
    if name not in stamp_names: stamp_names.append(name)
    e.raw("s_memrealtime s[4:5]\ns_memtime s[6:7]")
    e.wait_all(vm=False)
    e(f"v_writelane_b32 v{VST}, s4, {i}\nv_writelane_b32 v{VST}, s6, {32+i}")

light_prev = [None]
def lstamp(name):
    if light_prev[0] is not None:
        i, r = light_prev[0]
        e.raw(f"s_waitcnt lgkmcnt(0)\nv_writelane_b32 v{VST}, s{r}, {32+i}\nv_writelane_b32 v{VST}, 1, {i}")
        light_prev[0] = None
    if name:
        stamp_names.append(name); i = len(stamp_names) - 1
        e.raw("s_memtime s[6:7]"); light_prev[0] = (i, 6)

def rstamp(name):
    if OPT['passprof'] == 3: stamp(name)

def fstamp(name):
    if not OPT['passprof'] and not OPT['ksprof']: stamp(name)

spin_sites = []
def spin_report(vt):
    if not OPT["dbgspin"]:
        return
    site = len(spin_sites); spin_sites.append(site)
    L = e.uid("rep")
    e.raw(f"""s_cmp_lt_u32 {sSPIN}, 3000
    s_cbranch_scc1 {L}
    s_mov_b64 exec, 1
    v_mov_b32 v252, {128 + 4 * site}
    v_mov_b32 v253, 1
    global_atomic_add v252, v253, {DBG} sc1
    s_mov_b64 exec, -1
    s_waitcnt vmcnt(0)
    {L}:""")

def spin(vaddr, base, target, vt=6):
    L = e.uid("spin"); D = e.uid("spun")
    e.raw(f"""s_mov_b32 {sSPIN}, 0
    {L}:
    global_load_dword v{vt}, v{vaddr}, {base} sc1
    s_add_u32 {sSPIN}, {sSPIN}, 1
    s_cmp_gt_u32 {sSPIN}, {SPIN_LIMIT}
    s_cbranch_scc1 {D}
    s_waitcnt vmcnt(0)
    v_cmp_gt_u32 vcc, {target}, v{vt}
    s_cbranch_vccnz {L}
    {D}:
    s_waitcnt vmcnt(0)""")
    spin_report(vt)

def tag_ready():
    e.wait_all(vm=False)
    e(f"s_add_u32 {sTAG}, {sTAG}, 1\ns_not_b32 {sNTAG}, {sTAG}")

def tag_bad(r, n):
    e.raw(f"v_xor_b32 v{r}, {sTAG}, v{r}\nv_xor_b32 v{r+1}, {sNTAG}, v{r+1}\nv_or_b32 v{r}, v{r}, v{r+1}")
    for k in range(1, n):
        e.raw(f"v_xor_b32 v{r+2*k}, {sTAG}, v{r+2*k}\nv_xor_b32 v{r+2*k+1}, {sNTAG}, v{r+2*k+1}\nv_or3_b32 v{r}, v{r}, v{r+2*k}, v{r+2*k+1}")
    e.raw(f"v_cmp_ne_u32 vcc, 0, v{r}")

def spin_tag(loads, r, n):
    L = e.uid("spin"); D = e.uid("spun")
    e.raw(f"s_mov_b32 {sSPIN}, 0\n{L}:\n{loads}")
    e.raw(f"""s_add_u32 {sSPIN}, {sSPIN}, 1
    s_cmp_gt_u32 {sSPIN}, {SPIN_LIMIT}
    s_cbranch_scc1 {D}
    s_waitcnt vmcnt(0)""")
    tag_bad(r, n)
    e.raw(f"s_cbranch_vccnz {L}\n{D}:\ns_waitcnt vmcnt(0)")
    spin_report(r)

def all_loads(va, vb, r):
    return f"global_load_dwordx4 v[{r}:{r+3}], v{va}, {WSP} sc1\nglobal_load_dwordx4 v[{r+4}:{r+7}], v{vb}, {WSP} sc1"

def all_addr(va, vb):
    e(f"v_add_u32 v{va}, {P0F}, v1\nv_and_b32 v{vb}, 0xf0, v1\nv_add_u32 v{vb}, {P0F+1024}, v{vb}")

def wave0(fn):
    L = e.uid("w0")
    e.raw(f"s_cmp_lg_u32 {sWV}, 0\ns_cbranch_scc1 {L}")
    fn()
    e.raw(f"{L}:")

def wait_flag(vaddr, base, target):
    wave0(lambda: spin(vaddr, base, target))
    e.raw("s_barrier")

def signal(soff, base, vt=6):
    def fn():
        e.raw(f"""s_mov_b64 exec, 1
        v_mov_b32 v{vt}, {soff}
        v_mov_b32 v{vt+1}, 1
        global_atomic_add v{vt}, v{vt+1}, {base} sc1
        s_mov_b64 exec, -1""")
    wave0(fn)

def cnt_off(dst, idx_expr_s, const):
    e(f"s_lshl_b32 {dst}, {idx_expr_s}, 8\ns_add_u32 {dst}, {dst}, {CNT + const * 256 + 128}")

def entry():
    e(f"""s_cmp_ge_u32 s2, 256
    s_cbranch_scc1 L_exit
    s_load_dwordx16 s[16:31], s[0:1], 0
    s_load_dwordx8 s[32:39], s[0:1], 64
    s_load_dwordx2 s[40:41], s[0:1], 96
    v_lshrrev_b32 v2, 6, v0
    v_and_b32 v0, 63, v0
    v_readfirstlane_b32 {sWV}, v2
    s_and_b32 {sX}, s2, 7
    s_lshr_b32 {sSLOT}, s2, 3
    s_mov_b32 {sMASK}, 0xffff0000
    v_lshlrev_b32 v1, 4, v0""")
    if OPT["prof"]:
        e(f"v_mov_b32 v{VST}, 0")
    e(f"s_cmp_ge_u32 {sSLOT}, 20\ns_cbranch_scc1 L_shuf")

def args_ready():
    e.wait_all(vm=False)
    stamp("start")
    e.raw(f"s_load_dword {sTAG}, {WSP}, {EPO}")

def ffn_ids():
    srd(WS, P_WS, WS_END)
    e(f"""s_lshr_b32 {T[0]}, {sX}, 1
    s_lshl_b32 {T[0]}, {T[0]}, 2
    s_lshr_b32 {T[1]}, {sSLOT}, 3
    s_add_u32 {sG}, {T[0]}, {T[1]}
    s_and_b32 {sHF}, {sX}, 1
    s_and_b32 {sMI}, {sSLOT}, 7
    s_lshl_b32 {T[0]}, {sHF}, 3
    s_add_u32 {sJT}, {T[0]}, {sMI}
    s_lshl_b32 {sRB}, {sG}, 4
    s_add_u32 {sRB}, {sRB}, {sJT}""")

def q_prefetch(t):
    srd(SC, P_Q, ACT)
    e(f"""v_and_b32 v{t}, 7, v0
    v_lshrrev_b32 v{t+1}, 3, v0
    v_mul_u32_u24 v{t}, 1280, v{t}
    v_lshl_add_u32 v{t}, v{t+1}, 4, v{t}
    s_mul_i32 {T[18]}, {sRB}, 10240
    s_mul_i32 {T[19]}, {sWV}, 320
    s_add_u32 {T[18]}, {T[18]}, {T[19]}
    v_mov_b32 v{t+1}, {BIG}
    v_cmp_gt_u32 vcc, 32, v0
    v_cndmask_b32 v{t+1}, v{t+1}, v{t}, vcc""")
    return [(f"buffer_load_dwordx4 a[240:243], v{t}, {SC}, {T[18]} offen{NT_IN}", "q"),
            (f"buffer_load_dwordx4 a[244:247], v{t}, {SC}, {T[18]} offen offset:128{NT_IN}", "q"),
            (f"buffer_load_dwordx4 a[248:251], v{t+1}, {SC}, {T[18]} offen offset:256{NT_IN}", "q")]

def replica_add(line0):
    def fn():
        e.raw(f"""s_mov_b64 exec, 0xff
        v_lshlrev_b32 v6, 8, v0
        v_add_u32 v6, {line0}, v6
        v_mov_b32 v7, 1
        global_atomic_add v6, v7, {WSP} sc1
        s_mov_b64 exec, -1""")
    wave0(fn)

def all_check():
    L = e.uid("allok")
    e.wait(vm="all")
    keep = list(e.vm)
    tag_bad(208, 4)
    e.raw(f"s_cbranch_vccz {L}")
    spin_tag(all_loads(216, 217, 208), 208, 4)
    e.raw(f"{L}:")
    e.vm = keep

def p0():
    KR, VR, WR, WF, KF, AC, VF, PK, HR = 16, 44, 60, 76, 108, 164, 196, 200, 216
    e(f"""s_mul_i32 {sCI}, {sX}, 20
    s_add_u32 {sCI}, {sCI}, {sSLOT}
    s_lshr_b32 {sCGP}, {sCI}, 4
    s_and_b32 {T[0]}, {sCI}, 15
    s_lshl_b32 {T[0]}, {T[0]}, 7
    s_lshl_b32 {T[1]}, {sWV}, 5
    s_add_u32 {T[2]}, {T[0]}, {T[1]}
    s_mul_i32 {T[3]}, {T[2]}, 1280
    s_lshl_b32 {T[4]}, {sCGP}, 7
    s_add_u32 {T[3]}, {T[3]}, {T[4]}
    v_and_b32 v2, 7, v0
    v_lshrrev_b32 v3, 3, v0
    v_mul_u32_u24 v4, 5120, v3
    v_lshl_add_u32 v4, v2, 4, v4
    v_add_u32 v4, {T[3]}, v4
    v_subrev_u32 v8, 3840, v4
    v_mov_b32 v9, {BIG}
    v_cmp_gt_u32 vcc, 1280, v4
    s_lshl_b32 {T[4]}, {sCGP}, 9
    s_lshl_b32 {T[5]}, {sCI}, 2
    v_cndmask_b32 v8, v8, v9, vcc
    v_lshlrev_b32 v9, 6, v2
    s_add_u32 {T[5]}, {T[5]}, {sWV}
    s_lshl_b32 {T[6]}, {T[5]}, 12
    s_lshr_b32 {T[7]}, {T[5]}, 1
    s_lshl_b32 {T[7]}, {T[7]}, 2
    v_subrev_u32 v10, 32, v1
    v_subrev_u32 v11, 16, v1
    v_add_u32 v12, 992, v1""")
    args_ready()
    srd(SA, P_K, ACT)
    for i in range(3):
        e(f"buffer_load_dwordx4 {v(KR+4*i,4)}, v8, {SA}, 0 offen offset:{1280*i}{NT_IN}", tag=f"k{i}")
    for i in range(4):
        e(f"buffer_load_dwordx4 {v(KR+12+4*i,4)}, v4, {SA}, 0 offen offset:{1280*i}{NT_IN}", tag=f"k{i+3}")
    srd(SC, P_SHK, 5120)
    for i in range(4):
        e(f"buffer_load_dwordx4 {v(WR+4*i,4)}, v9, {SC}, {T[4]} offen offset:{16*i}", tag="shk")
    srd(SB, P_V, ACT)
    for i in range(4):
        e(f"buffer_load_dwordx4 {v(VR+4*i,4)}, v4, {SB}, 0 offen offset:{1280*i}{NT_IN}", tag=f"v{i}")
    e.raw(f"s_load_dword {sDV}, s[{P_D}:{P_D+1}], {T[7]}")
    srd(SA, P_SSM, 4096, add=T[6])
    e(f"buffer_load_dwordx4 {v(HR,4)}, v10, {SA}, 0 offen{NT_IN}\nbuffer_load_dwordx2 {v(HR+4,2)}, v11, {SA}, 0 offen{NT_IN}", tag="h0")
    for q in range(1, 5):
        e(f"buffer_load_dwordx4 {v(HR+8*q,4)}, v12, {SA}, 0 offen offset:{1024*(q-1)}{NT_IN}", tag=f"h{q}")
        e(f"buffer_load_dwordx2 {v(HR+8*q+4,2)}, v12, {SA}, 0 offen offset:{1024*(q-1)+16}{NT_IN}", tag=f"h{q}")
    ffn_ids()
    def clr():
        e.raw(f"""s_lshl_b32 {T[8]}, {sCI}, 8
        s_mov_b64 exec, 0xffff
        v_mov_b32 v196, 0
        v_mov_b32 v197, 0
        v_mov_b32 v198, 0
        v_mov_b32 v199, 0
        buffer_store_dwordx4 v[196:199], v1, {WS}, {T[8]} offen sc1
        s_mov_b64 exec, -1""")
    wave0(clr)
    e(f"""s_lshl_b32 {T[8]}, {sWV}, 12
    v_lshlrev_b32 v13, 9, v3
    v_sub_u32 v13, {P0L + 28*128}, v13
    v_lshl_add_u32 v13, v2, 4, v13
    v_add_u32 v13, {T[8]}, v13
    v_bfe_u32 v14, v0, 2, 2
    v_lshlrev_b32 v14, 7, v14
    v_lshrrev_b32 v15, 4, v0
    v_lshl_add_u32 v14, v15, 5, v14
    v_and_b32 v15, 3, v0
    v_lshl_add_u32 v14, v15, 3, v14
    v_add_u32 v14, {T[8]}, v14
    s_sub_u32 {T[8]}, 2016, {T[2]}
    s_lshr_b32 {T[8]}, {T[8]}, 3
    s_mul_i32 {T[8]}, {T[8]}, 10240
    s_lshl_b32 {T[9]}, {sCGP}, 10
    s_add_u32 {T[8]}, {T[8]}, {T[9]}
    s_add_u32 {T[8]}, {T[8]}, {KVT}""")
    def unpack(dst, src, n):
        for c in range(n):
            if c & 1: e(f"v_and_b32 v{dst+c}, {sMASK}, v{src+(c>>1)}")
            else: e(f"v_lshlrev_b32 v{dst+c}, 16, v{src+(c>>1)}")
    for i in range(7):
        e.wait(vm=f"k{i}")
        unpack(KF + 8 * i, KR + 4 * i, 8)
    e.wait(vm="shk")
    for c in range(8):
        for tau in range(4):
            src = WR + 2 * c + (tau >> 1)
            if tau & 1: e(f"v_and_b32 v{WF+8*tau+c}, {sMASK}, v{src}")
            else: e(f"v_lshlrev_b32 v{WF+8*tau+c}, 16, v{src}")
    fstamp("k_done")
    for i in range(4):
        for p in range(4):
            d = v(AC + 8 * i + 2 * p, 2)
            e(f"v_pk_mul_f32 {d}, {v(KF+8*(i+3)+2*p,2)}, {v(WF+2*p,2)}")
        for tau in range(1, 4):
            for p in range(4):
                d = v(AC + 8 * i + 2 * p, 2)
                e(f"v_pk_fma_f32 {d}, {v(KF+8*(i+3-tau)+2*p,2)}, {v(WF+8*tau+2*p,2)}, {d}")
        e.wait(vm=f"v{i}")
        unpack(KF + 8 * i, VR + 4 * i, 8)
        for p in range(4):
            d = v(AC + 8 * i + 2 * p, 2)
            e(f"v_pk_mul_f32 {d}, {d}, {v(KF+8*i+2*p,2)}")
        for p in range(4):
            e(f"v_cvt_pk_bf16_f32 v{PK+4*i+p}, v{AC+8*i+2*p}, v{AC+8*i+2*p+1}")
        e(f"ds_write_b128 v13, {v(PK+4*i,4)} offset:{128*(3-i)}", tag="w")
    for m in range(4):
        for hh in range(2):
            e(f"ds_read_b64_tr_b16 {v(16+4*m+2*hh,2)}, v14 offset:{(8*m+4*hh)*128}", tag=f"t{m}")
    tag_ready()
    for m in range(4):
        e(f"buffer_store_dwordx4 {v(16+4*m,4)}, v1, {WS}, {T[8]} offen sc1", tag="st")
        if m < 3: e(f"s_add_u32 {T[8]}, {T[8]}, 10240")
    fstamp("p0_st")
    e(f"s_mul_i32 {T[9]}, {sWV}, {FCH}\ns_add_u32 {T[9]}, {T[9]}, {F0}\nv_add_u32 v13, {T[9]}, v1")
    for q in range(5):
        d = HR + 8 * q; t = 108 + 12 * q
        e.wait(vm=f"h{q}")
        for j in range(4):
            e(f"v_alignbit_b32 v{t+j}, v{d+j+1}, v{d+j}, 16")
            e(f"v_mov_b32 v{t+4+j}, v{d+j+1}")
            e(f"v_alignbit_b32 v{t+8+j}, v{d+j+2}, v{d+j+1}, 16")
        if q == 4: e("s_mov_b64 exec, 3")
        e(f"ds_write_b128 v13, {v(d,4)} offset:{1024*q}", tag="w")
        for sg in range(1, 4):
            e(f"ds_write_b128 v13, {v(t+4*sg-4,4)} offset:{sg*FCP+1024*q}", tag="w")
        if q == OPT["sig_q"]:
            e("s_mov_b64 exec, -1")
            p0_signal()
    e(f"""s_mul_i32 {T[9]}, {sWV}, {UCH}
    s_add_u32 {T[9]}, {T[9]}, {U0}
    s_mov_b64 exec, -1
    v_add_u32 v13, {T[9]}, v1
    v_mov_b32 v32, 0
    v_mov_b32 v33, 0
    v_mov_b32 v34, 0
    v_mov_b32 v35, 0
    s_mov_b32 exec_lo, -1
    s_mov_b32 exec_hi, 3
    ds_write_b128 v13, v[32:35] offset:4096
    s_mov_b64 exec, -1""", tag="w")
    e(f"""s_and_b32 {T[7]}, {T[5]}, 1
    s_lshl_b32 {T[6]}, {sDV}, 16
    s_and_b32 {sDV}, {sDV}, {sMASK}
    s_cmp_eq_u32 {T[7]}, 0
    s_cselect_b32 {sDV}, {T[6]}, {sDV}
    s_lshl_b32 {T[8]}, {sCGP}, 7
    s_add_u32 {T[8]}, {T[8]}, {P0F}
    v_and_b32 v7, 15, v0
    v_lshlrev_b32 v7, 3, v7
    v_add_u32 v7, {T[8]}, v7""")

def p0_signal():
    e.wait_all(lg=False)
    fstamp("p0_drain")
    e.raw("s_barrier")
    def sig():
        e.raw(f"""s_lshl_b32 {T[8]}, {sCI}, 3
        s_add_u32 {T[8]}, {T[8]}, {P0F}
        s_mov_b64 exec, 1
        v_mov_b32 v6, {T[8]}
        v_mov_b32 v8, {sTAG}
        v_mov_b32 v9, {sNTAG}
        global_store_dwordx2 v6, v[8:9], {WSP} sc1
        s_mov_b64 exec, -1""")
    wave0(sig)

def conv():
    AC, GB, FB, KV, KU, YP = 16, (48, 80), 112, 144, 160, 192
    e(f"""v_lshrrev_b32 v8, 2, v0
    v_and_b32 v9, 3, v0
    v_mul_u32_u24 v10, 10240, v8
    v_lshl_add_u32 v10, v9, 4, v10
    v_mul_u32_u24 v11, {UCH}, v9
    v_lshl_add_u32 v11, v8, 4, v11
    s_lshl_b32 {T[0]}, {sWV}, 10
    s_add_u32 {T[0]}, {T[0]}, {U0}
    v_add_u32 v11, {T[0]}, v11
    s_mul_i32 {T[0]}, {sWV}, {64*10240}
    s_lshl_b32 {T[1]}, {sCI}, 6
    s_add_u32 {T[0]}, {T[0]}, {T[1]}
    s_add_u32 {T[0]}, {T[0]}, {KVT}
    v_and_b32 v8, 15, v0
    v_lshrrev_b32 v9, 4, v0
    v_add_u32 v12, 1, v8
    v_and_b32 v13, 3, v12
    v_sub_u32 v12, v12, v13
    v_mul_u32_u24 v13, {FCP}, v13
    v_lshl_add_u32 v12, v12, 1, v13
    v_lshl_add_u32 v12, v9, 4, v12
    s_mul_i32 {T[1]}, {sWV}, {FCH}
    s_add_u32 {T[1]}, {T[1]}, {F0}
    v_add_u32 v2, {T[1]}, v12
    s_mul_i32 {T[1]}, {sWV}, {UCH}
    s_add_u32 {T[1]}, {T[1]}, {U0}
    v_lshlrev_b32 v12, 5, v8
    v_sub_u32 v12, {T[1]}, v12
    v_lshl_add_u32 v3, v9, 4, v12
    v_add_u32 v3, 480, v3
    v_lshlrev_b32 v13, 3, v9
    v_sub_u32 v4, v12, v13
    v_add_u32 v4, 504, v4""")
    wave0(lambda: spin_tag(f"global_load_dwordx2 v[14:15], v7, {WSP} sc1", 14, 1))
    e.raw("s_barrier")
    stamp("p0_flag")
    for m in range(4):
        e(f"buffer_load_dwordx4 {v(16+4*m,4)}, v10, {WS}, {T[0]} offen sc1", tag=f"u{m}")
        if m < 3: e(f"s_add_u32 {T[0]}, {T[0]}, {16*10240}")
    ql = q_prefetch(218)
    all_addr(216, 217)
    e(f"""v_lshrrev_b32 v10, 1, v8
    v_mul_u32_u24 v10, 72, v10
    v_and_b32 v12, 1, v8
    v_lshl_add_u32 v10, v12, 4, v10
    v_lshl_add_u32 v10, v9, 2, v10
    s_mul_i32 {T[1]}, {sWV}, {YCS}
    s_add_u32 {T[1]}, {T[1]}, {YA}
    v_add_u32 v10, {T[1]}, v10
    v_lshrrev_b32 v14, 2, v8
    v_mul_u32_u24 v14, {YCS}, v14
    v_mul_u32_u24 v12, 72, v9
    v_add_u32 v14, v14, v12
    v_and_b32 v12, 3, v8
    v_lshl_add_u32 v14, v12, 3, v14
    s_mul_i32 {T[1]}, {sWV}, {72*16}
    s_add_u32 {T[1]}, {T[1]}, {YA}
    v_add_u32 v14, {T[1]}, v14
    v_lshrrev_b32 v12, 3, v0
    v_mul_u32_u24 v12, 20480, v12
    v_and_b32 v13, 7, v0
    v_lshl_add_u32 v12, v13, 4, v12
    s_mul_i32 {T[0]}, {sWV}, {32*20480}
    s_lshl_b32 {T[1]}, {sCI}, 7
    s_add_u32 {T[0]}, {T[0]}, {T[1]}
    s_add_u32 {T[0]}, {T[0]}, {YB}
    s_lshl_b32 {T[1]}, {sCGP}, 12
    s_add_u32 {T[1]}, {T[1]}, {CNT}""")
    seq = []
    for r in range(8):
        for aa in range(8):
            for b in range(7 - aa, -1, -1):
                seq.append((r, aa, b))
    first = {}; last = {}; fin = {}
    for t, (r, aa, b) in enumerate(seq):
        fin[aa + b] = t
        for key in (("F", r, aa), ("G", r, b)):
            first.setdefault(key, t); last[key] = t
    reads = []
    for key, t in first.items():
        kind, r, i = key
        prev = (kind, r - (1 if kind == "F" else 2), i)
        earliest = last[prev] + 1 if prev in last else -99
        if kind == "F":
            for h in range(2):
                reads.append((t, earliest, f"ds_read_b64 {v(FB+4*i+2*h,2)}, v2 offset:{512*i+64*r+8*h}", key))
        else:
            reads.append((t, earliest, f"ds_read_b128 {v(GB[r&1]+4*i,4)}, v3 offset:{512*(7-i)+64*r}", key))
    reads.sort(key=lambda x: x[0])
    early = [x for x in reads if x[3][0] == "F" and x[3][1] == 0]
    for x in early:
        e(x[2], tag=x[3]); reads.remove(x)
    for m in range(4):
        e.wait(vm=f"u{m}")
        e(f"ds_write_b128 v11, {v(16+4*m,4)} offset:{256*m}", tag="w")
    e.wait_all(vm=False)
    e.raw("s_barrier")
    if OPT["go"]:
        L = e.uid("go")
        e.raw(f"""s_or_b32 {T[2]}, {sSLOT}, {sWV}
        s_cmp_lg_u32 {T[2]}, 0
        s_cbranch_scc1 {L}
        s_lshl_b32 {T[2]}, {sX}, 7
        s_add_u32 {T[2]}, {T[2]}, {GOF}
        s_mov_b64 exec, 1
        v_mov_b32 v220, {T[2]}
        v_mov_b32 v222, {sTAG}
        v_mov_b32 v223, {sNTAG}
        global_store_dwordx2 v220, v[222:223], {WSP} sc1
        s_mov_b64 exec, -1
        {L}:""")
    fstamp("u_ready")
    S = Sched()
    S.at(20, ql)
    S.at(200, [(l, "all") for l in all_loads(216, 217, 208).split("\n")])
    for n in range(8):
        S.at(150 + 4 * n, [(f"ds_read_b64 {v(KV+2*n,2)}, v4 offset:{512*(7-n)}", f"kv{n}")])
        d0, d1 = KV + 2 * n, KV + 2 * n + 1
        S.add(205, [f"v_and_b32 v{KU+4*n}, {sMASK}, v{d1}", f"v_lshlrev_b32 v{KU+4*n+1}, 16, v{d1}",
                    f"v_and_b32 v{KU+4*n+2}, {sMASK}, v{d0}", f"v_lshlrev_b32 v{KU+4*n+3}, 16, v{d0}"])
    for n in range(8):
        S.add(fin[n] + 6, [f"v_fmac_f32 v{AC+4*n+k}, {sDV}, v{KU+4*n+k}" for k in range(4)] +
              [f"v_cvt_pk_bf16_f32 v{YP+2*n}, v{AC+4*n}, v{AC+4*n+2}", f"v_cvt_pk_bf16_f32 v{YP+2*n+1}, v{AC+4*n+1}, v{AC+4*n+3}",
               (f"ds_write_b32 v10, v{YP+2*n} offset:{576*n}", "w"), (f"ds_write_b32 v10, v{YP+2*n+1} offset:{576*n+32}", "w")])
    LOOK = 22; ri = 0
    done_acc = set()
    for t, (r, aa, b) in enumerate(seq):
        n = 0
        while ri < len(reads) and reads[ri][1] <= t and (reads[ri][0] - t <= 6 or (n < 1 and reads[ri][0] - t <= LOOK)):
            e(reads[ri][2], tag=reads[ri][3]); ri += 1; n += 1
        need = [("F", r, aa), ("G", r, b)]
        S.gap(t, n + (1 if e.would_wait(lg=need) else 0))
        e.wait(lg=need)
        acc = v(AC + 4 * (aa + b), 4)
        c = acc if (aa + b) in done_acc else "0"
        done_acc.add(aa + b)
        e(f"v_mfma_f32_16x16x32_bf16 {acc}, {v(FB+4*aa,4)}, {v(GB[r&1]+4*b,4)}, {c}")
    assert ri == len(reads) and not S.side
    print(f"conv: {len(S.fill)} epilogue instructions left after the last MFMA", file=sys.stderr)
    fstamp("conv_mfma")
    while S.fill: put(S.fill.pop(0)[1])
    e.wait_all(vm=False)
    e.raw("s_barrier")
    for m in range(4):
        for par in range(2):
            e(f"ds_read_b64_tr_b16 {v(48+4*m+2*par,2)}, v14 offset:{288*m+32*par}", tag=f"t{m}")
    for m in range(4):
        e.wait(lg=f"t{m}")
        e(f"buffer_store_dwordx4 {v(48+4*m,4)}, v12, {WS}, {T[0]} offen sc1", tag="st")
        if m < 3: e(f"s_add_u32 {T[0]}, {T[0]}, {8*20480}")
    all_check()
    e.wait_all()
    e.raw("s_barrier")
    replica_add(T[1])
    stamp("conv_done")

def go_wait():
    if not OPT["go"]: return
    e(f"s_lshl_b32 {T[10]}, {sX}, 7\ns_add_u32 {T[10]}, {T[10]}, {GOF}\nv_mov_b32 v220, {T[10]}")
    e.wait_all()
    spin_tag(f"global_load_dwordx2 v[222:223], v220, {WSP} sc1\ns_sleep 2", 222, 1)

def shuffle():
    e.label("L_shuf")
    e(f"""s_mul_i32 {sCI}, {sX}, 12
    s_add_u32 {sCI}, {sCI}, {sSLOT}
    s_sub_u32 {sCI}, {sCI}, 20""")
    args_ready()
    ffn_ids()
    for it in q_prefetch(8): put(it)
    e(f"s_lshl_b32 {T[0]}, {sCI}, 2\ns_add_u32 {T[0]}, {T[0]}, {sWV}")
    if OPT["warm"]:
        e(f"""s_getpc_b64 s[96:97]
        L_pc:
        s_sub_u32 s96, s96, L_pc-{NAME}
        s_subb_u32 s97, s97, 0
        s_sub_u32 {T[1]}, {sSLOT}, 20
        s_lshl_b32 {T[1]}, {T[1]}, 2
        s_add_u32 {T[1]}, {T[1]}, {sWV}
        s_lshl_b32 {T[1]}, {T[1]}, 11
        v_and_b32 v8, 15, v0
        v_lshlrev_b32 v8, 7, v8
        v_add_u32 v8, {T[1]}, v8
        v_min_u32 v8, L_exit-{NAME}, v8
        global_load_dword v254, v8, s[96:97]""", tag="warm")
    L = e.uid("nz")
    e.raw(f"""s_cmp_ge_u32 {T[0]}, 160
    s_cbranch_scc1 {L}
    s_mul_i32 {T[1]}, {T[0]}, 1639
    s_lshr_b32 {T[1]}, {T[1]}, 16
    s_mul_i32 {T[2]}, {T[1]}, 40
    s_sub_u32 {T[2]}, {T[0]}, {T[2]}
    s_lshl_b32 {T[2]}, {T[2]}, 10
    s_mul_i32 {T[3]}, {T[1]}, {WT}
    s_add_u32 {T[3]}, {T[3]}, {T[2]}
    s_add_u32 {T[3]}, {T[3]}, {WGU + 12*WT + 240*1024}
    v_mov_b32 v16, 0
    v_mov_b32 v17, 0
    v_mov_b32 v18, 0
    v_mov_b32 v19, 0
    buffer_store_dwordx4 v[16:19], v1, {WS}, {T[3]} offen sc1
    {L}:""")
    tag_ready()
    e(f"""s_mul_i32 {T[1]}, {sWV}, {SHST}
    v_lshrrev_b32 v2, 3, v0
    v_and_b32 v3, 7, v0
    v_lshrrev_b32 v8, 4, v0
    v_bfe_u32 v9, v0, 2, 2
    v_and_b32 v10, 3, v0
    v_lshl_add_u32 v8, v8, 3, v9""")
    if OPT["shufwait"]:
        e.wait_all()
    fstamp("shuf_go")
    e(f"s_cmp_ge_u32 {T[0]}, 270\ns_cbranch_scc1 L_shuf_wd")
    srd(SA, P_WG, 640 * 3456); srd(SB, P_WU, 640 * 3456)
    e(f"""s_mul_i32 {T[2]}, {T[0]}, 6554
    s_lshr_b32 {T[2]}, {T[2]}, 16
    s_mul_i32 {T[3]}, {T[2]}, 10
    s_sub_u32 {T[3]}, {T[0]}, {T[3]}
    s_mul_i32 {T[4]}, {T[3]}, {64*3456}
    s_lshl_b32 {T[5]}, {T[2]}, 7
    s_add_u32 {T[4]}, {T[4]}, {T[5]}
    v_mul_u32_u24 v4, 3456, v2
    v_lshl_add_u32 v4, v3, 4, v4""")
    for m in range(8):
        e(f"buffer_load_dwordx4 {v(16+8*m,4)}, v4, {SA}, {T[4]} offen{NT_W}", tag=f"l{m}")
        e(f"buffer_load_dwordx4 {v(20+8*m,4)}, v4, {SB}, {T[4]} offen{NT_W}", tag=f"l{m}")
        if m < 7: e(f"s_add_u32 {T[4]}, {T[4]}, {8*3456}")
    e(f"""v_mul_u32_u24 v11, 272, v2
    v_lshl_add_u32 v11, v3, 4, v11
    v_add_u32 v11, {T[1]}, v11
    v_mul_u32_u24 v12, 272, v8
    v_add_u32 v12, {T[1]}, v12
    s_cmp_lt_u32 {T[2]}, 24
    s_cselect_b32 {T[4]}, 4, 3
    v_lshlrev_b32 v10, {T[4]}, v10
    v_add_u32 v12, v12, v10
    s_cselect_b32 {T[4]}, 8, 32
    v_add_u32 v13, {T[4]}, v12
    v_add_u32 v14, 64, v12
    v_add_u32 v15, 64, v13
    s_cselect_b32 {T[8]}, 4, 2
    s_lshl_b32 {T[8]}, {T[8]}, 10""")
    for m in range(8):
        e.wait(vm=f"l{m}")
        e(f"ds_write_b128 v11, {v(16+8*m,4)} offset:{m*2176}\nds_write_b128 v11, {v(20+8*m,4)} offset:{m*2176+128}", tag="w")
    e.wait(lg="w")
    go_wait()
    for fi in range(4):
        for ss in range(2):
            for mat in range(2):
                for hh in range(2):
                    e(f"ds_read_b64_tr_b16 {v(16+16*fi+8*ss+4*mat+2*hh,2)}, v{12+fi} offset:{(32*ss+4*hh)*272+128*mat}", tag=f"t{fi}")
        e(f"""s_lshl_b32 {T[4]}, {T[2]}, 1
        s_add_u32 {T[4]}, {T[4]}, {fi >> 1}
        s_mul_i32 {T[5]}, {T[4]}, 21846
        s_lshr_b32 {T[5]}, {T[5]}, 16
        s_mul_i32 {T[6]}, {T[5]}, 3
        s_sub_u32 {T[6]}, {T[4]}, {T[6]}
        s_mul_i32 {T[6]}, {T[6]}, 80
        s_add_u32 {T[6]}, {T[6]}, {2 * (fi & 1)}
        s_lshl_b32 {T[4]}, {T[2]}, 2
        s_sub_u32 {T[4]}, {T[4]}, {96 - fi}
        s_cmp_lt_u32 {T[2]}, 24
        s_cselect_b32 {T[5]}, {T[5]}, {T[4]}
        s_cselect_b32 {T[6]}, {T[6]}, 240
        s_mul_i32 {T[5]}, {T[5]}, {WT}
        s_lshl_b32 {T[6]}, {T[6]}, 10
        s_add_u32 {T[7]}, {T[5]}, {T[6]}
        s_lshl_b32 {T[9]}, {T[3]}, 1
        s_mul_i32 {T[9]}, {T[9]}, {T[8]}
        s_add_u32 {T[7]}, {T[7]}, {T[9]}
        s_add_u32 {T[7]}, {T[7]}, {WGU}""")
        e.wait(lg=f"t{fi}")
        for ss in range(2):
            for mat in range(2):
                e(f"buffer_store_dwordx4 {v(16+16*fi+8*ss+4*mat,4)}, v1, {WS}, {T[7]} offen offset:{1024*mat} sc1", tag="st")
            if ss == 0: e(f"s_add_u32 {T[7]}, {T[7]}, {T[8]}")
    e("s_branch L_shuf_end")
    e.vm = []; e.lg = []
    e.label("L_shuf_wd")
    e(f"s_cmp_ge_u32 {T[0]}, 382\ns_cbranch_scc1 L_shuf_end")
    srd(SA, P_WD, 1728 * 1280)
    e(f"""s_sub_u32 {T[2]}, {T[0]}, 270
    s_and_b32 {T[3]}, {T[2]}, 1
    s_lshr_b32 {T[2]}, {T[2]}, 1
    s_mul_i32 {T[4]}, {T[2]}, 4682
    s_lshr_b32 {T[4]}, {T[4]}, 16
    s_mul_i32 {T[5]}, {T[4]}, 14
    s_sub_u32 {T[5]}, {T[2]}, {T[5]}
    s_and_b32 {T[6]}, {T[5]}, 3
    s_lshl_b32 {T[9]}, {T[4]}, 2
    s_add_u32 {T[7]}, {T[9]}, {T[6]}
    s_mul_i32 {T[7]}, {T[7]}, 3
    s_lshr_b32 {T[8]}, {T[5]}, 2
    s_add_u32 {T[7]}, {T[7]}, {T[8]}
    s_lshl_b32 {T[8]}, {T[4]}, 1
    s_add_u32 {T[8]}, {T[8]}, {T[6]}
    s_add_u32 {T[8]}, {T[8]}, 48
    s_cmp_ge_u32 {T[5]}, 12
    s_cselect_b32 {T[7]}, {T[8]}, {T[7]}
    s_mul_i32 {T[6]}, {T[7]}, {32*1280}
    s_mul_i32 {T[9]}, {T[3]}, 640
    s_add_u32 {T[6]}, {T[6]}, {T[9]}
    v_mul_u32_u24 v4, 1280, v2
    v_lshl_add_u32 v4, v3, 4, v4
    v_add_u32 v11, {T[6]}, v4
    v_add_u32 v12, 10240, v11
    v_add_u32 v13, 20480, v11
    v_add_u32 v14, 30720, v11""")
    for rb4 in range(4):
        for ln in range(5):
            e(f"buffer_load_dwordx4 {v(16+20*rb4+4*ln,4)}, v{11+rb4}, {SA}, 0 offen offset:{128*ln}{NT_W}", tag=f"l{rb4}")
    e(f"""v_mul_u32_u24 v4, 656, v2
    v_lshl_add_u32 v4, v3, 4, v4
    v_add_u32 v4, {T[1]}, v4
    v_mul_u32_u24 v15, 656, v8
    v_add_u32 v15, {T[1]}, v15
    v_lshl_add_u32 v2, v10, 4, v15
    v_lshl_add_u32 v3, v10, 3, v15
    s_mul_i32 {T[6]}, {T[3]}, {4*WT}
    s_mul_i32 {T[7]}, {T[4]}, 71680
    s_add_u32 {T[6]}, {T[6]}, {T[7]}
    s_mul_i32 {T[7]}, {T[5]}, 5120
    s_add_u32 {T[6]}, {T[6]}, {T[7]}
    s_add_u32 {T[6]}, {T[6]}, {WDP}""")
    for rb4 in range(4):
        e.wait(vm=f"l{rb4}")
        for ln in range(5):
            e(f"ds_write_b128 v4, {v(16+20*rb4+4*ln,4)} offset:{rb4*8*656+128*ln}", tag="w")
    e.wait(lg="w")
    go_wait()
    for ct in range(4):
        for tau in range(5):
            base = 32 * (tau >> 1) + 4 * (tau & 1) if tau < 4 else 64
            for hh in range(2):
                e(f"ds_read_b64_tr_b16 {v(16+20*ct+4*tau+2*hh,2)}, v{2 if tau < 4 else 3} offset:{4*hh*656+2*(80*ct+base)}", tag=f"t{ct}")
        e.wait(lg=f"t{ct}")
        for tau in range(4):
            e(f"buffer_store_dwordx4 {v(16+20*ct+4*tau,4)}, v1, {WS}, {T[6]} offen offset:{1024*tau} sc1", tag="st")
        e(f"s_add_u32 {T[7]}, {T[6]}, 4096")
        e(f"buffer_store_dwordx4 {v(16+20*ct+16,4)}, v1, {WS}, {T[7]} offen sc1", tag="st")
        e(f"s_add_u32 {T[6]}, {T[6]}, {WT}")
    e.label("L_shuf_end")
    all_addr(216, 217)
    e(all_loads(216, 217, 208), tag="all")
    all_check()
    e.wait_all()
    e.raw("s_barrier")
    e(f"s_lshr_b32 {T[1]}, {sCI}, 4\ns_lshl_b32 {T[1]}, {T[1]}, 12\ns_add_u32 {T[1]}, {T[1]}, {CNT + 2048}")
    replica_add(T[1])
    fstamp("shuf_done")
    if OPT["wtouch"]:
        e(f"""s_lshl_b32 {T[4]}, {sX}, 8
        s_add_u32 {T[4]}, {T[4]}, {CNT + 2048}
        v_min_u32 v7, 5, v0
        v_lshlrev_b32 v7, 12, v7
        v_add_u32 v7, {T[4]}, v7
        s_sub_u32 {T[1]}, {sSLOT}, 20
        s_lshl_b32 {T[1]}, {T[1]}, 2
        s_add_u32 {T[1]}, {T[1]}, {sWV}
        s_mul_i32 {T[1]}, {T[1]}, {6*8192}
        s_mul_i32 {T[2]}, {sHF}, {8*WT}
        s_add_u32 {T[2]}, {T[2]}, {T[1]}
        s_add_u32 {T[2]}, {T[2]}, {WGU}
        v_lshlrev_b32 v8, 7, v0""")
        wait_flag(7, WSP, 16)
        for k in range(6):
            e(f"buffer_load_dword v254, v8, {WS}, {T[2]} offen sc1\ns_add_u32 {T[2]}, {T[2]}, 8192", tag="touch")

class Bg:
    q = []; every = 8; n = 0
def ev(text, tag=None):
    for l in text.split("\n"):
        if not l.strip(): continue
        e(l, tag=tag)
        if l.strip().startswith("v_"):
            Bg.n += 1
            if Bg.q and Bg.n % Bg.every == 0:
                put(Bg.q.pop(0))
                while Bg.q and isinstance(Bg.q[0], str): put(Bg.q.pop(0))
def bg_flush():
    while Bg.q: put(Bg.q.pop(0))

XV, YV, RAW, NV = 16, 40, 64, 88
def unpack24(dst, src):
    for c in range(24):
        if c & 1: ev(f"v_and_b32 v{dst+c}, {sMASK}, v{src+(c>>1)}")
        else: ev(f"v_lshlrev_b32 v{dst+c}, 16, v{src+(c>>1)}")

def row_stats(x, area, scale=None):
    ev(f"v_pk_add_f32 v[112:113], {v(x,2)}, {v(x+2,2)}\nv_pk_mul_f32 v[114:115], {v(x,2)}, {v(x,2)}")
    ev(f"v_pk_fma_f32 v[114:115], {v(x+2,2)}, {v(x+2,2)}, v[114:115]")
    for p in range(2, 12):
        ev(f"v_pk_add_f32 v[112:113], v[112:113], {v(x+2*p,2)}")
        ev(f"v_pk_fma_f32 v[114:115], {v(x+2*p,2)}, {v(x+2*p,2)}, v[114:115]")
    ev("""v_add_f32 v112, v112, v113
    v_add_f32 v113, v114, v115
    v_add_f32_dpp v112, v112, v112 row_ror:8 row_mask:0xf bank_mask:0xf
    v_add_f32_dpp v113, v113, v113 row_ror:8 row_mask:0xf bank_mask:0xf""")
    for sw in ("v_permlane16_swap_b32", "v_permlane32_swap_b32"):
        ev(f"""v_mov_b32 v114, v112
        v_mov_b32 v115, v113
        {sw} v112, v114
        {sw} v113, v115
        v_add_f32 v112, v112, v114
        v_add_f32 v113, v113, v115""")
    e(f"s_mov_b64 exec, 0xff\nds_write_b64 v13, v[112:113] offset:{area}\ns_mov_b64 exec, -1", tag="w")
    e.wait_all(vm=False)
    e.raw("s_barrier")
    e(f"ds_read_b128 v[112:115], v14 offset:{area}\nds_read_b128 v[116:119], v14 offset:{area+16}", tag="r")
    e.wait(lg="r")
    ev(f"""v_pk_add_f32 v[112:113], v[112:113], v[114:115]
    v_pk_add_f32 v[116:117], v[116:117], v[118:119]
    v_pk_add_f32 v[112:113], v[112:113], v[116:117]
    v_mul_f32 v112, {f32(1/640)}, v112
    v_mul_f32 v113, {f32(1/640)}, v113
    v_fma_f32 v113, -v112, v112, v113
    v_max_f32 v113, 0, v113
    v_add_f32 v113, {f32(1e-5)}, v113
    v_rsq_f32 v120, v113""")
    if scale: ev(f"v_mul_f32 v120, {f32(scale)}, v120")
    ev("v_mul_f32_e64 v121, -v112, v120")

def normalise(dst, x):
    for p in range(12):
        ev(f"v_pk_fma_f32 {v(dst+2*p,2)}, {v(x+2*p,2)}, v[120:121], v[120:121] op_sel:[0,0,1] op_sel_hi:[1,0,1]")

def r_addr():
    e(f"""v_and_b32 v8, 7, v0
    v_lshrrev_b32 v9, 3, v0
    s_mul_i32 {T[0]}, {sWV}, 20
    v_add_u32 v9, {T[0]}, v9
    v_lshlrev_b32 v10, 8, v9
    v_lshl_add_u32 v10, v8, 4, v10
    v_add_u32 v11, 2048, v10
    v_add_u32 v12, 4096, v10
    v_mov_b32 v15, {BIG}
    v_cmp_gt_u32 vcc, 32, v0
    v_cndmask_b32 v12, v15, v12, vcc
    v_lshlrev_b32 v14, 5, v8
    v_add_u32 v14, {RED}, v14
    s_lshl_b32 {T[0]}, {sWV}, 3
    v_add_u32 v13, {T[0]}, v14
    s_lshr_b32 {T[1]}, {sRB}, 1
    s_mul_i32 {T[1]}, {T[1]}, 20480
    s_and_b32 {T[2]}, {sRB}, 1
    s_lshl_b32 {T[2]}, {T[2]}, 7
    s_add_u32 {T[1]}, {T[1]}, {T[2]}
    s_lshl_b32 {T[2]}, {sWV}, 10
    v_add_u32 v4, {T[2]}, v1""")

def r_finish(layer):
    row_stats(XV, 256, ALPHA)
    normalise(NV, XV)
    e(f"s_add_u32 {T[2]}, {T[1]}, {XN[layer]}")
    for it in range(3):
        for p in range(4 * it, 4 * it + 4):
            e(f"v_cvt_pk_bf16_f32 v{RAW+p}, v{NV+2*p}, v{NV+2*p+1}")
        e(f"buffer_store_dwordx4 {v(RAW+4*it,4)}, v{10+it}, {WS}, {T[2]} offen sc1", tag="st")
    for p in range(12):
        e(f"v_cvt_pk_bf16_f32 v{RAW+12+p}, v{XV+2*p}, v{XV+2*p+1}")
    if layer == 0:
        for it in range(3):
            e(f"ds_write_b128 v4, {v(RAW+12+4*it,4)} offset:{ST_X-131072+4096*it}", tag="w")
    else:
        e(f"s_add_u32 {T[2]}, {T[1]}, {X3}")
        for it in range(3):
            e(f"buffer_store_dwordx4 {v(RAW+12+4*it,4)}, v{10+it}, {WS}, {T[2]} offen sc1", tag="st")
    cnt_off(T[0], sG, 16 * layer)
    rstamp(f"r_st{layer}")
    e.wait(vm="st")
    rstamp(f"r_dr{layer}")
    e.raw("s_barrier")
    signal(T[0], WSP)
    e(f"v_mov_b32 v7, {T[0]}")
    bg_flush()
    prefill(range(OPT["pre_r"], 8))

def r_prefill():
    Bg.n = 0; Bg.every = OPT["pre_every"]
    for sg in range(OPT["pre_r"]): Bg.q += dma_stage(sg)
    while Bg.q and isinstance(Bg.q[0], str): put(Bg.q.pop(0))

def r1():
    e.label("L_r1")
    ffn_setup()
    r_addr()
    e.wait_all()
    e(f"""v_add_u32 v4, 131072, v4
    v_lshlrev_b32 v2, 8, v9
    v_lshl_add_u32 v2, v8, 3, v2
    v_add_u32 v3, 4096, v2
    v_cmp_gt_u32 vcc, 32, v0
    v_cndmask_b32 v3, v15, v3, vcc
    s_lshr_b32 {T[3]}, {sRB}, 1
    s_mul_i32 {T[3]}, {T[3]}, 20480
    s_and_b32 {T[4]}, {sRB}, 1
    s_lshl_b32 {T[4]}, {T[4]}, 6
    s_add_u32 {T[3]}, {T[3]}, {T[4]}
    s_add_u32 {T[3]}, {T[3]}, {YB}""")
    for i in range(12):
        e(f"v_accvgpr_read_b32 v{RAW+i}, a{240+i}")
    unpack24(XV, RAW)
    row_stats(XV, 0)
    normalise(NV, XV)
    e(f"""s_lshl_b32 {T[4]}, {sX}, 8
    s_add_u32 {T[4]}, {T[4]}, {CNT}
    v_and_b32 v7, 15, v0
    v_lshlrev_b32 v6, 12, v7
    v_subrev_u32 v122, {10*4096 - 2048}, v6
    v_cmp_gt_u32 vcc, 10, v7
    v_cndmask_b32 v7, v122, v6, vcc
    v_add_u32 v7, {T[4]}, v7""")
    wait_flag(7, WSP, 16)
    stamp("conv_flag")
    for it in range(3):
        for h in range(2):
            va, off = (2, 2048 * it + 128 * h) if it < 2 else (3, 128 * h)
            e(f"buffer_load_dwordx2 {v(RAW+4*it+2*h,2)}, v{va}, {WS}, {T[3]} offen offset:{off} sc1", tag="y")
    r_prefill()
    for _ in range(OPT["pre_now"]): put(Bg.q.pop(0))
    e.wait(vm="y")
    rstamp("y_arr")
    unpack24(YV, RAW)
    for p in range(12):
        ev(f"v_pk_fma_f32 {v(XV+2*p,2)}, {v(NV+2*p,2)}, {v(YV+2*p,2)}, {v(XV+2*p,2)}")
    for it in range(3):
        e(f"ds_write_b128 v4, {v(RAW+4*it,4)} offset:{ST_Y-131072+4096*it}", tag="w")
    r_finish(0)
    stamp("r1_done")

def r2_pre():
    r_addr()
    e("v_add_u32 v4, 131072, v4")
    for it in range(3):
        e(f"ds_read_b128 {v(RAW+4*it,4)}, v4 offset:{ST_X-131072+4096*it}", tag="x")
    for it in range(3):
        e(f"ds_read_b128 {v(RAW+12+4*it,4)}, v4 offset:{ST_Y-131072+4096*it}", tag="x")
    e.wait(lg="x")
    unpack24(XV, RAW)
    unpack24(YV, RAW + 12)
    e(f"s_add_u32 {T[2]}, {T[1]}, {F1}")

def r2():
    wait_flag(7, WSP, 8)
    stamp("f_flag")
    e(f"s_mov_b32 s96, {f32(INVA2)}")
    for it in range(3):
        e(f"buffer_load_dwordx4 {v(RAW+4*it,4)}, v{10+it}, {WS}, {T[2]} offen sc1", tag="f")
    r_prefill()
    for _ in range(OPT["pre_now"]): put(Bg.q.pop(0))
    e.wait(vm="f")
    rstamp("f_arr")
    unpack24(NV, RAW)
    for p in range(12):
        ev(f"v_pk_fma_f32 {v(XV+2*p,2)}, {v(NV+2*p,2)}, s[96:97], {v(XV+2*p,2)} op_sel_hi:[1,0,1]")
    row_stats(XV, 0)
    normalise(NV, XV)
    for p in range(12):
        ev(f"v_pk_fma_f32 {v(XV+2*p,2)}, {v(NV+2*p,2)}, {v(YV+2*p,2)}, {v(XV+2*p,2)}")
    r_finish(1)
    stamp("r2_done")

XR = 16; ACC = (176, 208); WB0 = 220; NWB = 9; PD = OPT["pd"]; NRES = 11

def dma_stage(sg):
    out = [f"s_add_u32 {sWO}, {sWB}, {sg*16384}", f"s_add_u32 m0, {sM0}, {(sg & 7)*16384}"]
    out += [(f"buffer_load_dwordx4 v1, {WS}, {sWO} offen offset:{1024*d} sc1 lds", f"dma{sg}") for d in range(4)]
    return out

def put(item):
    if isinstance(item, tuple): e(item[0], tag=item[1])
    elif callable(item): item()
    else: e(item)

def prefill(stages):
    for sg in stages:
        for it in dma_stage(sg): put(it)

def ffn_setup():
    e(f"""s_mul_i32 {sWB}, {sJT}, {WT}
    s_lshl_b32 {sM0}, {sWV}, 12
    s_add_u32 {sWB}, {sWB}, {sM0}
    s_add_u32 {sWB}, {sWB}, {WGU}
    s_mul_i32 {sWD}, {sMI}, {WT}
    s_mul_i32 {T[0]}, {sWV}, 71680
    s_add_u32 {sWD}, {sWD}, {T[0]}
    s_add_u32 {sWD}, {sWD}, {WDP}""")

def geglu(g, u, n, outq):
    L = []
    if OPT["x_nofill"]: return L
    for z in range(n):
        L += [f"v_fma_f32 v{8+(z&3)}, v{g+z}, v{g+z}, v4", f"v_mul_f32 v{u+z}, v{g+z}, v{u+z}",
              f"v_mul_f32_e64 v{g+z}, -v{g+z}, v{8+(z&3)}", f"v_exp_f32 v{g+z}, v{g+z}", f"v_add_f32 v{g+z}, 1.0, v{g+z}",
              f"v_rcp_f32 v{g+z}, v{g+z}", f"v_mul_f32 v{u+z}, v{u+z}, v{g+z}"]
        if z & 1: L.append(f"v_cvt_pk_bf16_f32 v{outq+(z>>1)}, v{u+z-1}, v{u+z}")
    return L

def text_of(item): return item[0] if isinstance(item, tuple) else item
def slots(item):
    t = text_of(item)
    if callable(t): return 9
    return 2 if t.startswith(("v_exp", "v_rcp")) else 1
def is_mem(item):
    t = text_of(item)
    return not callable(t) and t.startswith(("buffer_", "global_", "ds_"))

class Sched:
    def __init__(self):
        self.side = []; self.fill = []; self.seq = 0; self.over = 0; self.hook = None
    def at(self, slot, items):
        for it in items:
            self.seq += 1; self.side.append((slot, self.seq, it))
        self.side.sort(key=lambda x: x[:2])
    def add(self, slot, items):
        for it in items: self.fill.append((slot, it, Ins(text_of(it))))
    def pending(self, tag): return any(isinstance(it, tuple) and it[1] == tag for _, it, _ in self.fill)
    def gap(self, n, used, extra=0):
        room = 2 + extra - used; valu = False; m0 = False
        while self.side and self.side[0][0] <= n:
            slot, _, it = self.side[0]
            late = n - slot >= OPT["slack"]
            dma = is_mem(it) and text_of(it).endswith("lds")
            if not late and (slots(it) > room or (dma and m0)) and slots(it) < 9: break
            self.side.pop(0); put(it); room -= slots(it)
            m0 = not callable(it) and " m0," in text_of(it)
        k = 0
        while room > 0 and k < min(len(self.fill), 20):
            slot, it, ins = self.fill[k]
            ok = slot <= n and slots(it) <= room and not (is_mem(it) and valu)
            for _, _, o in self.fill[:k]:
                if (o.dst & (ins.src | ins.dst)) or (o.src & ins.dst) or (o.kind in ("vmem", "ds") and ins.kind in ("vmem", "ds", "salu")) or (o.kind == "salu"):
                    ok = False; break
            if ok and ins.op.startswith("v_permlane") and valu: ok = False
            if ok:
                self.fill.pop(k); put(it); room -= slots(it); valu = valu or ins.kind == "valu"
                if self.hook: self.hook(it, n)
                if ins.op.startswith(("v_exp", "v_rcp")): break
                k = 0
            else:
                k += 1
        if room < 0: self.over -= room

def check_or_spin(vt, vaddr, target):
    def fn():
        L = e.uid("rdy")
        e.wait(vm=f"poll{vt}")
        keep = list(e.vm)
        e.raw(f"v_cmp_gt_u32 vcc, {target}, v{vt}\ns_cbranch_vccz {L}")
        spin(vaddr, WSP, target, vt)
        e.raw(f"{L}:")
        e.vm = keep
    return fn

HF = 16
WNQ = list(range(224, 240, 4)) + list(range(160, 176, 4)) + list(range(176, 204, 4))
def acc2(tau, ri): return 80 + 4 * (ri * 5 + tau)
def wdreg(fr): return a(4 * fr, 4) if fr < 5 * NRES else v(WNQ[fr - 5 * NRES], 4)
sX0, sX1, sHC, sWDO, sTMP, sHT = T[10], T[11], T[12], T[13], T[14], T[15]
sHS1, sWNO = T[16], T[17]

def ffn(layer):
    H = HB[layer]
    e(f"""v_add_u32 v2, 0x10000, v1
    v_mov_b32 v4, {f32(KAPPA)}
    v_bfe_u32 v8, v0, 4, 1
    v_mul_u32_u24 v3, 57344, v8
    v_lshrrev_b32 v8, 5, v0
    v_lshl_add_u32 v3, v8, 8, v3
    v_and_b32 v8, 15, v0
    v_lshl_add_u32 v3, v8, 4, v3
    s_lshl_b32 {T[0]}, {sG}, 3
    s_lshl_b32 {T[1]}, {sWV}, 1
    s_add_u32 {T[1]}, {T[1]}, {T[0]}
    s_mul_i32 {sX0}, {T[1]}, 20480
    s_add_u32 {sX0}, {sX0}, {XN[layer]}
    s_add_u32 {sX1}, {sX0}, 20480
    s_mul_i32 {T[1]}, {T[1]}, 57344
    s_lshr_b32 {T[2]}, {sJT}, 2
    s_mul_i32 {T[2]}, {T[2]}, 14336
    s_add_u32 {T[1]}, {T[1]}, {T[2]}
    s_add_u32 {T[1]}, {T[1]}, {H}
    s_and_b32 {T[2]}, {sJT}, 3
    s_lshl_b32 {T[3]}, {T[2]}, 10
    s_add_u32 {sHS}, {T[1]}, {T[3]}
    s_add_u32 {sHS1}, {sHS}, 57344
    s_lshl_b32 {T[3]}, {T[2]}, 9
    s_add_u32 {sHS3}, {T[1]}, {T[3]}
    s_add_u32 {sHS3}, {sHS3}, 12288
    s_lshl_b32 {T[1]}, {sHF}, 2
    s_add_u32 {T[0]}, {T[0]}, {T[1]}
    s_mul_i32 {T[2]}, {sWV}, 14336
    s_add_u32 {T[2]}, {T[2]}, {H}""")
    for ri in range(4):
        e(f"""s_add_u32 {T[1]}, {sWV}, {ri}
        s_and_b32 {T[1]}, {T[1]}, 3
        s_add_u32 {T[1]}, {T[1]}, {T[0]}
        s_mul_i32 {T[1]}, {T[1]}, 57344
        s_add_u32 {sH[ri]}, {T[1]}, {T[2]}""")
    e(f"""s_and_b32 {T[1]}, {sMI}, 1
    s_lshl_b32 {T[1]}, {T[1]}, 1
    s_add_u32 {T[1]}, {T[1]}, {T[0]}
    s_lshr_b32 {T[2]}, {sWV}, 1
    s_add_u32 {T[1]}, {T[1]}, {T[2]}
    s_mul_i32 {sHT}, {T[1]}, 57344
    s_lshr_b32 {T[1]}, {sMI}, 1
    s_mul_i32 {T[1]}, {T[1]}, 14336
    s_add_u32 {sHT}, {sHT}, {T[1]}
    s_add_u32 {sHT}, {sHT}, {H}
    s_and_b32 {T[1]}, {sWV}, 1
    s_lshl_b32 {T[2]}, {T[1]}, 11
    v_lshlrev_b32 v250, 7, v8
    v_and_b32 v251, 0x380, v250
    v_add_u32 v250, {T[2]}, v250
    s_lshl_b32 {T[2]}, {T[1]}, 10
    v_add_u32 v251, {T[2]}, v251
    s_mul_i32 {sHC}, {sG}, 3""")
    cnt_off(sHC, sHC, 64 + 48 * layer)
    e(f"v_mov_b32 v244, {sHC}\nv_add_u32 v245, 64, v244\nv_add_u32 v246, 256, v244\nv_add_u32 v248, 512, v244")
    wait_flag(7, WSP, 16)
    stamp(f"xn_flag{layer}")

    def xload(i):
        s_, rt = i >> 1, i & 1
        L = [(f"buffer_load_dwordx4 {v(XR+4*i,4)}, v1, {WS}, {(sX0, sX1)[rt]} offen offset:{1024*(s_&3)} sc1", f"x{i}")]
        if s_ & 3 == 3 and s_ < 19: L.append(f"s_add_u32 {(sX0, sX1)[rt]}, {(sX0, sX1)[rt]}, 4096")
        return L
    def wread(fr):
        addr = (fr & 127) * 1024
        e(f"ds_read_b128 {a(WB0+4*(fr%NWB),4)}, v{1 if addr < 65536 else 2} offset:{addr & 65535}", tag=f"w{fr}")
    def hload(ks, ri):
        return (f"buffer_load_dwordx4 {v(HF+16*(ks&3)+4*ri,4)}, v1, {WS}, {sH[ri]} offen offset:{1024*(ks&3)} sc1", f"h{ks}_{ri}")
    def wdload(fr):
        L = []
        so = sWDO if fr < 5 * NRES else sWNO
        if fr & 3 == 0 or fr == 5 * NRES: L.append(f"s_add_u32 {so}, {sWD}, {(fr & ~3)*1024}")
        L.append((f"buffer_load_dwordx4 {wdreg(fr)}, v1, {WS}, {so} offen offset:{1024*(fr&3)} sc1", f"wd{fr}"))
        return L
    def htouch(p):
        if not OPT["htouch"]: return []
        return [f"s_add_u32 {sTMP}, {sHT}, {4096*p}", (f"buffer_load_dword v249, v{250 if p < 3 else 251}, {WS}, {sTMP} offen sc1", "touch")]
    def sig_h(pi):
        e(f"s_add_u32 {sTMP}, {sHC}, {(0, 64, 256, 512)[pi]}")
        signal(sTMP, WSP)

    G2 = 560
    S = Sched(); at, add = S.at, S.add
    for p in range(3):
        s0 = 160 * (p + 1) + 4
        for rt in range(2):
            base = ACC[p & 1] + 16 * rt; q = (12, 240)[rt]
            add(s0, geglu(base, base + 8, 8, q))
            add(s0, [(f"buffer_store_dwordx4 {v(q,4)}, v1, {WS}, {(sHS, sHS1)[rt]} offen sc1", f"hs{p}")])
        if p < 2: add(s0, [f"s_add_u32 {sHS}, {sHS}, 4096", f"s_add_u32 {sHS1}, {sHS1}, 4096"])
    add(G2 + 4, geglu(ACC[1], ACC[1] + 4, 4, 12) + geglu(ACC[1] + 8, ACC[1] + 12, 4, 14))
    add(G2 + 4, ["v_permlane16_swap_b32 v12, v14", "v_permlane16_swap_b32 v13, v15",
                 (f"buffer_store_dwordx4 v[12:15], v3, {WS}, {sHS3} offen sc1", "hs3")])
    add(G2 + 120, f"""v_lshrrev_b32 v8, 4, v0
    v_and_b32 v9, 15, v0
    v_lshrrev_b32 v11, 1, v8
    v_lshlrev_b32 v11, 8, v11
    v_lshl_add_u32 v11, v9, 4, v11
    v_add_u32 v11, 2048, v11
    v_mov_b32 v15, {BIG}
    v_and_b32 v12, 16, v0
    v_cmp_eq_u32 s[98:99], 0, v12
    s_lshl_b32 {T[8]}, {sG}, 3
    s_lshl_b32 {T[9]}, {sHF}, 2
    s_add_u32 {T[8]}, {T[8]}, {T[9]}
    s_add_u32 {T[8]}, {T[8]}, {sWV}
    v_cndmask_b32 v11, v15, v11, s[98:99]
    s_mul_i32 {T[7]}, {T[8]}, {16*1280}
    s_mul_i32 {T[8]}, {T[8]}, 20480
    s_mul_i32 {T[9]}, {sMI}, 2560
    s_add_u32 {T[8]}, {T[8]}, {T[9]}
    s_add_u32 {T[8]}, {T[8]}, {F1 if layer == 0 else X3}
    s_mul_i32 {T[0]}, {sWV}, 15360
    v_add_u32 v204, {T[0]}, v1""".replace("    ", "").split("\n"))
    for ri in range(1, 4):
        add(G2 + 120, [f"s_add_u32 {T[0]}, {sWV}, {ri}", f"s_and_b32 {T[0]}, {T[0]}, 3", f"s_mul_i32 {T[0]}, {T[0]}, 15360", f"v_add_u32 v{204+ri}, {T[0]}, v1"])
    if layer == 1:
        add(G2 + 120, f"""s_mul_i32 {T[9]}, {sMI}, 160
        s_add_u32 {T[7]}, {T[7]}, {T[9]}
        v_mul_u32_u24 v10, 1280, v9
        v_lshrrev_b32 v13, 1, v8
        v_lshl_add_u32 v13, v13, 4, v10
        v_lshl_add_u32 v10, v8, 4, v10
        v_cndmask_b32 v13, v15, v13, s[98:99]
        s_mov_b32 s12, s{P_OUT}
        s_mov_b32 s13, s{P_OUT+1}
        s_mov_b32 s14, {ACT}
        s_mov_b32 s15, 0x20000
        s_mov_b32 s96, {f32(INVA2)}""".replace("    ", "").split("\n"))
        add(G2 + 224, [(f"buffer_load_dwordx4 v[48:51], v1, {WS}, {T[8]} offen sc1", "x3"),
                       (f"buffer_load_dwordx4 v[52:55], v1, {WS}, {T[8]} offen offset:1024 sc1", "x3"),
                       (f"buffer_load_dwordx4 v[56:59], v11, {WS}, {T[8]} offen sc1", "x3")])
    else:
        add(G2 + 120, [f"s_lshl_b32 {T[7]}, {sG}, 1", f"s_add_u32 {T[7]}, {T[7]}, {sHF}", f"s_lshl_b32 {T[7]}, {T[7]}, 8",
                       f"s_add_u32 {T[7]}, {T[7]}, {CNT + 32 * 256 + 128}"])
    for ri in range(1, 3):
        add(G2 + 260 + 5 * ri + 4, [(f"ds_write_b128 v{204+ri}, {v(acc2(tau,ri),4)} offset:{(ri-1)*5120+1024*tau}", "rw") for tau in range(5)])
    for i in range(OPT["xup"]):
        for it in xload(i): put(it)
    for i in range(OPT["xup"], 40):
        at(4 * (i - OPT["xup"]) + 1, xload(i))
    if layer == 0:
        n = 5 * NRES
        for fr in range(n):
            at(OPT["wd0"] + (fr * (OPT["wd1"] - OPT["wd0"])) // n, wdload(fr))
    for k, fr in enumerate(range(5 * NRES, 70)):
        at(485 + 16 * k if k < 4 else G2 + OPT["wn0"] + OPT["wn_gap"] * (k - 4) + 2, wdload(fr))
    chk = [OPT["chk0"], OPT["chk1"], OPT["chk2"], OPT["chk3"]]
    for p, va in enumerate((244, 245, 246, 248)):
        at(chk[p] - OPT["poll_lead"], [(f"global_load_dword v247, v{va}, {WSP} sc1", "poll247")])
        at(chk[p], [check_or_spin(247, va, 16)] + htouch(p))
    for ks in range(4):
        for ri in range(4):
            at(489 + 16 * ks + 2 * ri, [hload(ks, ri)])
    for ks in range(4, 14):
        t0 = G2 + 20 * (ks - (OPT["hd1"] if ks < 8 else OPT["hd"]))
        assert t0 > chk[ks >> 2] and OPT["hd"] <= 3
        if ks & 3 == 0: at(t0, [f"s_add_u32 {sH[ri]}, {sH[ri]}, 4096" for ri in range(4)])
        for ri in range(4):
            at(t0 + 4 * ri + 2, [hload(ks, ri)])
    sig_after = {"hs0": 0, "hs1": 1, "hs2": 2, "hs3": 3}
    issued = {}
    def hook(it, slot):
        if isinstance(it, tuple) and it[1] in sig_after and not S.pending(it[1]): issued[it[1]] = slot
    S.hook = hook
    order = []
    for ks in range(14):
        for ri in ((0, 1, 2, 3) if ks < 13 else (1, 2, 3, 0)):
            for tau in range(5): order.append((ks, ri, tau))
    dma_t = 4 * (40 - OPT["xup"]) + 3
    for n in range(-2 * PD, G2 + 280):
        ready = [t for t in sig_after if t in issued and n - issued[t] >= OPT["lag"]]
        used = 0
        if n < G2 and n % 2 == 0:
            nxt = n // 2 + PD
            if nxt < 280 and nxt % 32 == 0:
                sg = nxt // 16
                e.wait(vm=[f"dma{sg}", f"dma{sg + 1}"] + ready)
                if not OPT["x_nobar"] or ready: e.raw("s_barrier")
                for t in ready:
                    assert n < chk[sig_after[t]] - 20, (t, n)
                    sig_h(sig_after.pop(t))
                used += 2
                for k in (sg + 4, sg + 5):
                    if 8 <= k <= 17 and not OPT["x_nodma"]:
                        st = dma_stage(k)
                        dma_t = max(dma_t, n + 1)
                        at(dma_t, st[:2])
                        for d in range(4): at(dma_t + OPT["dma_gap"] * d + 2, [st[2 + d]])
                        dma_t += 4 * OPT["dma_gap"]
            if nxt < 280: wread(nxt); used += 1
        elif n >= OPT["pub_from"] and ready:
            e.wait(vm=ready)
            e.raw("s_barrier")
            for t in ready:
                assert n < chk[sig_after[t]], (t, n)
                print(f"layer {layer}: {t} issued at {issued[t]} published at {n}", file=sys.stderr)
                sig_h(sig_after.pop(t))
            used += 2
        if n < 0: continue
        if n < G2:
            fr, rt = n >> 1, n & 1
            p = min(fr // 80, 3); fi = fr - 80 * p
            if p < 3: s_, acc = fi >> 2, ACC[p & 1] + 16 * rt + 8 * (fi & 1) + 4 * ((fi >> 1) & 1)
            else: s_, acc = fi >> 1, ACC[1] + 8 * rt + 4 * (fi & 1)
            if fi == 0 and p >= 2: assert f"hs{p-2}" in issued
            wv_, wl_ = [f"x{2*s_}", f"x{2*s_+1}"], [f"w{k}" for k in range(fr, fr - fr % OPT["lgw"] + OPT["lgw"])]
            mf = f"v_mfma_f32_16x16x32_bf16 {v(acc,4)}, {a(WB0+4*(fr%NWB),4)}, {v(XR+8*s_+4*rt,4)}, {v(acc,4) if s_ else 0}"
        else:
            ks, ri, tau = order[n - G2]
            fr = 5 * ks + tau
            if fr >= 5 * NRES: assert "hs3" in issued
            wv_, wl_ = [f"h{ks}_{k}" for k in (range(4) if OPT["ksw"] else [ri])] + [f"wd{k}" for k in range(5 * ks, 5 * ks + 5)], []
            acc = v(acc2(tau, ri), 4)
            mf = f"v_mfma_f32_16x16x32_bf16 {acc}, {wdreg(fr)}, {v(HF+16*(ks&3)+4*ri,4)}, {acc if ks else 0}"
        if e.would_wait(wv_, wl_): used += 1
        extra = OPT["x3"] if 484 <= n < G2 and n & 1 else OPT["x2"] if G2 <= n < G2 + 60 and n & 1 else 0
        S.gap(n, used, extra)
        if OPT["ksprof"] == layer + 1 and n >= G2 and (n - G2) % 20 == 0: lstamp(f"ks{(n-G2)//20}")
        if OPT["ksprof"] == layer + 1 and n == G2 + 268: lstamp(None)
        if n == G2 and not OPT["ksprof"]: stamp(f"g1_done{layer}")
        if OPT["passprof"] == 1 and n in (1, 160, 320, 480): stamp(f"L{layer}_at{n}")
        if OPT["passprof"] == 1 and n - G2 in (80, 160): stamp(f"L{layer}_g2at{n-G2}")
        e.wait(vm=wv_, lg=wl_)
        e(mf)
    while S.fill: put(S.fill.pop(0)[1])
    assert not S.side and not sig_after, (S.side, sig_after)
    print(f"layer {layer}: {S.over} issue slots over budget", file=sys.stderr)
    stamp(f"g2_mfma{layer}")
    for tau in range(5):
        e(f"ds_write_b128 v207, {v(acc2(tau,3),4)} offset:{2*5120+1024*tau}", tag="rw")
    e.wait_all(vm=False)
    e.raw("s_barrier")
    RD = 160
    for k in range(11):
        e(f"ds_read_b128 {v(RD+4*k,4)}, v204 offset:{1024*k}", tag=f"r{k}")
    for k in range(11, 15):
        e(f"ds_read_b128 {v(RD+4*k+4,4)}, v204 offset:{1024*k}", tag=f"r{k}")
    if layer == 1:
        e.wait(vm="x3")
        for i in range(24):
            e(f"v_and_b32 v{16+i}, {sMASK}, v{48+(i>>1)}" if i & 1 else f"v_lshlrev_b32 v{16+i}, 16, v{48+(i>>1)}")
    for k in range(15):
        e.wait(lg=f"r{k}")
        d = acc2(k % 5, 0); r = RD + 4 * k + (4 if k >= 11 else 0)
        for h in range(2):
            e(f"v_pk_add_f32 {v(d+2*h,2)}, {v(d+2*h,2)}, {v(r+2*h,2)}")
    d = acc2(4, 0)
    if layer == 0:
        for g in range(2):
            for i in range(4):
                dd = acc2(2 * g + (i >> 1), 0) + 2 * (i & 1)
                e(f"v_cvt_pk_bf16_f32 v{16+4*g+i}, v{dd}, v{dd+1}")
            e(f"buffer_store_dwordx4 {v(16+4*g,4)}, v1, {WS}, {T[8]} offen offset:{1024*g} sc1", tag="st")
        e(f"""v_cvt_pk_bf16_f32 v24, v{d}, v{d+1}
        v_cvt_pk_bf16_f32 v25, v{d+2}, v{d+3}
        v_mov_b32 v26, v24
        v_mov_b32 v27, v25
        v_permlane16_swap_b32 v24, v26
        v_permlane16_swap_b32 v25, v27
        buffer_store_dwordx4 v[24:27], v11, {WS}, {T[8]} offen sc1""", tag="st")
        r2_pre()
        e.wait_all()
        e.raw("s_barrier")
        signal(T[7], WSP)
        e(f"v_mov_b32 v7, {T[7]}")
    else:
        for g in range(2):
            for i in range(4):
                dd = acc2(2 * g + (i >> 1), 0) + 2 * (i & 1)
                e(f"v_pk_fma_f32 {v(dd,2)}, {v(dd,2)}, s[96:97], {v(16+8*g+2*i,2)} op_sel_hi:[1,0,1]")
            for i in range(4):
                dd = acc2(2 * g + (i >> 1), 0) + 2 * (i & 1)
                e(f"v_cvt_pk_bf16_f32 v{60+4*g+i}, v{dd}, v{dd+1}")
            e(f"buffer_store_dwordx4 {v(60+4*g,4)}, v10, {SA}, {T[7]} offen offset:{64*g}{OUTP}", tag="st")
        for i in range(4):
            e(f"v_mov_b32 v{44+i}, v{d+i}")
        for i in range(4):
            e(f"v_permlane16_swap_b32 v{d+i}, v{44+i}")
        for i in range(4):
            dd = d + 2 * i if i < 2 else 44 + 2 * (i - 2)
            e(f"v_pk_fma_f32 {v(dd,2)}, {v(dd,2)}, s[96:97], {v(32+2*i,2)} op_sel_hi:[1,0,1]")
        e(f"""v_cvt_pk_bf16_f32 v68, v{d}, v{d+1}
        v_cvt_pk_bf16_f32 v69, v{d+2}, v{d+3}
        v_cvt_pk_bf16_f32 v70, v44, v45
        v_cvt_pk_bf16_f32 v71, v46, v47
        buffer_store_dwordx4 v[68:71], v13, {SA}, {T[7]} offen offset:128{OUTP}""", tag="st")
        L = e.uid("epo")
        e.raw(f"""s_or_b32 {T[0]}, s2, {sWV}
        s_cmp_lg_u32 {T[0]}, 0
        s_cbranch_scc1 {L}
        s_mov_b64 exec, 1
        v_mov_b32 v6, {EPO}
        v_mov_b32 v7, {sTAG}
        global_store_dword v6, v7, {WSP} sc1
        s_mov_b64 exec, -1
        {L}:""")
    stamp(f"g2_done{layer}")

def finish():
    if OPT["prof"]:
        e.wait_all()
        stamp("end")
        e(f"""s_lshl_b32 {T[0]}, s2, 2
        s_add_u32 {T[0]}, {T[0]}, {sWV}
        s_lshl_b32 {T[0]}, {T[0]}, 8
        s_add_u32 {T[0]}, {T[0]}, {PROF}
        v_lshlrev_b32 v1, 2, v0
        buffer_store_dword v{VST}, v1, {WS}, {T[0]} offen""")
        if OPT["dbgout"]:
            e(f"""s_cmp_lg_u32 s2, {OPT["dbgout"] - 1}
            s_cbranch_scc1 L_exit
            s_cmp_lg_u32 {sWV}, 0
            s_cbranch_scc1 L_exit
            v_readlane_b32 {T[1]}, v{VST}, 0
            s_mov_b64 exec, 0xffff
            v_subrev_u32 v6, {T[1]}, v{VST}
            global_store_dword v1, v6, {DBG}""")
    e.label("L_exit")
    e("s_endpgm")

entry()
p0()
conv()
e("s_branch L_r1")
e.vm = []; e.lg = []
shuffle()
r1()
ffn(0)
r2()
ffn(1)
finish()
nops = e.pad()

hdr = open("interleave_layers__ssm_conv_h3__glu_gated_geglu__prompt.s.ref").read().split("; Override launch")[0]
out = hdr + f"""; Single persistent launch: 256 workgroups, one per CU, phases chained by counters in d_debug / d_ws.
; @launch grid=(256,1,1) block=(256,1,1) lds={LDS_BYTES}
.amdgcn_target "amdgcn-amd-amdhsa--gfx950"
.text
.globl {NAME}
.p2align 8
.type {NAME},@function
{NAME}:
""" + e.text() + f""".section .rodata,"a"
.p2align 6
.amdhsa_kernel {NAME}
  .amdhsa_next_free_vgpr 512
  .amdhsa_next_free_sgpr 102
  .amdhsa_accum_offset 256
  .amdhsa_group_segment_fixed_size 0
  .amdhsa_kernarg_size 104
  .amdhsa_user_sgpr_count 2
  .amdhsa_user_sgpr_kernarg_segment_ptr 1
  .amdhsa_system_sgpr_workgroup_id_x 1
  .amdhsa_float_denorm_mode_32 3
.end_amdhsa_kernel
"""
open(sys.argv[1], "w").write(out)
import json
json.dump(dict(stamps=stamp_names, KVT=KVT, YB=YB, XN=XN, X3=X3, F1=F1, HB=HB, WGU=WGU, WDP=WDP, PROF=PROF, CNT=CNT), open(sys.argv[1] + ".json", "w"))
print(f"{len(e.ins)} lines, {nops} padded wait states", file=sys.stderr)
```

```python
import sys, math, struct
from emit import Emit, Ins

NAME = "interleave_layers__ssm_conv_h3__glu_gated_geglu__prompt_kernel"
OPT = dict(prof=0, nt_in=0, nt_w=0, stop=99, warm=1, shufwait=0, bud=7, bud3=12, bud2=12, lag=50, poll_lead=45, chk0=480, chk1=578, chk2=678, chk3=758, hd=2, wn0=10, wn_gap=15, x_nodma=0, x_nobar=0, x_nofill=0, passprof=0, ksprof=0, xup=10, wd0=10, wd1=600, htouch=0, dbgspin=0, pre_a1=0, pre_r1=4, pre_g2=0, pre_g2_at=238, pre_a2=3, pre_r2=1, pre_every=8, pre_now=4, bar2=1, dma_gap=7, pd=8, lgw=4, slack=3, x3=4, x2=2, pub_from=480, hd1=3, ksw=0, sig_q=2, wtouch=0, go=2, go_early=1, cx=0, stubs=1, redo=1, outpol=0, dbgout=0, sent_y=0, sent_f=0, pwave=0, x_nochk=0, x_nopub=0, x_nohload=0, x_nowd=0, wd_early=0, wd_chk=40, wd_gap=4, wd_n=55, xtouch=0)
for a in sys.argv[2:]:
    k, v = a.split("="); OPT[k] = int(v)

C1 = 2.0 * math.sqrt(2.0 / math.pi) * math.log2(math.e); C2 = C1 * 0.044715
ALPHA = C2 ** (1.0 / 3.0); KAPPA = C1 / ALPHA; INVA2 = 1.0 / (ALPHA * ALPHA)
ACT = 0x280000
CNT = 0; EPO = 0xA000; P0F = 0xA080; GOF = 0xA800; P0W = 0xB000; WDF = 0xD000; PROF = 0x10000
KVT = 0x100000; YB = KVT + ACT; XN = [YB + ACT, YB + 2 * ACT]; X3 = YB + 3 * ACT; F1 = YB + 4 * ACT
HB = [F1 + ACT, F1 + ACT + 0x700000]
WGU = HB[1] + 0x700000; WDP = WGU + 0x460000; WS_END = WDP + 0x230000
WT = 286720
RING = 0; ST_X = 131072; ST_Y = ST_X + 12288; RED = ST_Y + 12288
P0L = 0; F0 = 16384; FCH = 16640; FCP = 4160; U0 = F0 + 4 * FCH; UCH = 4640; YA = U0 + 4 * UCH; YCS = 4624
SHST = 20992
LDS_BYTES = 163840
SPIN_LIMIT = 400000
WS = "s[8:11]"; SA = "s[12:15]"; SB = "s[44:47]"; SC = "s[48:51]"
P_Q, P_K, P_V, P_SHK, P_SSM, P_D, P_WG, P_WU, P_WD, P_OUT, P_DBG, P_WS = 16, 18, 20, 22, 24, 26, 30, 32, 34, 36, 38, 40
sWV, sX, sSLOT, sG, sHF, sMI, sCI, sCGP, sMASK, sRB, sJT = "s52", "s53", "s54", "s55", "s56", "s57", "s58", "s59", "s60", "s61", "s62"
sDV = "s63"; sTAG = "s42"; sNTAG = "s43"
T = [f"s{i}" for i in range(64, 84)]
sSPIN = "s84"; sWB = "s85"; sWO = "s86"; sM0 = "s87"; sH = ["s88", "s89", "s90", "s91"]; sHS = "s92"; sHS3 = "s93"; sWD = "s94"
DBG = f"s[{P_DBG}:{P_DBG+1}]"; WSP = f"s[{P_WS}:{P_WS+1}]"
NT_IN = " nt" if OPT["nt_in"] else ""
NT_W = " nt" if OPT["nt_w"] else ""
BIG = "0x80000000"
OUTP = ("", " sc1", " nt", " sc0 sc1")[OPT["outpol"]]

e = Emit()
def v(i, n=1): return f"v{i}" if n == 1 else f"v[{i}:{i+n-1}]"
def a(i, n=1): return f"a{i}" if n == 1 else f"a[{i}:{i+n-1}]"
def f32(x): return "0x%08x" % struct.unpack("<I", struct.pack("<f", x))[0]

def srd(dst, ptr, nbytes, add=None):
    d = int(dst[2:dst.index(":")])
    if add is None:
        e(f"s_mov_b32 s{d}, s{ptr}\ns_mov_b32 s{d+1}, s{ptr+1}")
    else:
        e(f"s_add_u32 s{d}, s{ptr}, {add}\ns_addc_u32 s{d+1}, s{ptr+1}, 0")
    e(f"s_mov_b32 s{d+2}, {nbytes}\ns_mov_b32 s{d+3}, 0x20000")

VST = 5
stamp_names = []
def stamp(name):
    if not OPT["prof"]:
        return
    i = stamp_names.index(name) if name in stamp_names else len(stamp_names)
    if name not in stamp_names: stamp_names.append(name)
    e.raw("s_memrealtime s[4:5]\ns_memtime s[6:7]")
    e.wait_all(vm=False)
    e(f"v_writelane_b32 v{VST}, s4, {i}\nv_writelane_b32 v{VST}, s6, {32+i}")

light_prev = [None]
def lstamp(name):
    if light_prev[0] is not None:
        i, r = light_prev[0]
        e.raw(f"s_waitcnt lgkmcnt(0)\nv_writelane_b32 v{VST}, s{r}, {32+i}\nv_writelane_b32 v{VST}, 1, {i}")
        light_prev[0] = None
    if name:
        stamp_names.append(name); i = len(stamp_names) - 1
        e.raw("s_memtime s[6:7]"); light_prev[0] = (i, 6)

def rstamp(name):
    if OPT['passprof'] == 3: stamp(name)

def fstamp(name):
    if not OPT['passprof'] and not OPT['ksprof']: stamp(name)

spin_sites = []
def spin_report(vt):
    if not OPT["dbgspin"]:
        return
    site = len(spin_sites); spin_sites.append(site)
    L = e.uid("rep")
    e.raw(f"""s_cmp_lt_u32 {sSPIN}, 3000
    s_cbranch_scc1 {L}
    s_mov_b64 exec, 1
    v_mov_b32 v252, {128 + 4 * site}
    v_mov_b32 v253, 1
    global_atomic_add v252, v253, {DBG} sc1
    s_mov_b64 exec, -1
    s_waitcnt vmcnt(0)
    {L}:""")

def spin(vaddr, base, target, vt=6):
    L = e.uid("spin"); D = e.uid("spun")
    e.raw(f"""s_mov_b32 {sSPIN}, 0
    {L}:
    global_load_dword v{vt}, v{vaddr}, {base} sc1
    s_add_u32 {sSPIN}, {sSPIN}, 1
    s_cmp_gt_u32 {sSPIN}, {SPIN_LIMIT}
    s_cbranch_scc1 {D}
    s_waitcnt vmcnt(0)
    v_cmp_gt_u32 vcc, {target}, v{vt}
    s_cbranch_vccnz {L}
    {D}:
    s_waitcnt vmcnt(0)""")
    spin_report(vt)

def tag_ready():
    e.wait_all(vm=False)
    e(f"s_add_u32 {sTAG}, {sTAG}, 1\ns_not_b32 {sNTAG}, {sTAG}")

def tag_bad(r, n):
    e.raw(f"v_xor_b32 v{r}, {sTAG}, v{r}\nv_xor_b32 v{r+1}, {sNTAG}, v{r+1}\nv_or_b32 v{r}, v{r}, v{r+1}")
    for k in range(1, n):
        e.raw(f"v_xor_b32 v{r+2*k}, {sTAG}, v{r+2*k}\nv_xor_b32 v{r+2*k+1}, {sNTAG}, v{r+2*k+1}\nv_or3_b32 v{r}, v{r}, v{r+2*k}, v{r+2*k+1}")
    e.raw(f"v_cmp_ne_u32 vcc, 0, v{r}")

def spin_tag(loads, r, n):
    L = e.uid("spin"); D = e.uid("spun")
    e.raw(f"s_mov_b32 {sSPIN}, 0\n{L}:\n{loads}")
    e.raw(f"""s_add_u32 {sSPIN}, {sSPIN}, 1
    s_cmp_gt_u32 {sSPIN}, {SPIN_LIMIT}
    s_cbranch_scc1 {D}
    s_waitcnt vmcnt(0)""")
    tag_bad(r, n)
    e.raw(f"s_cbranch_vccnz {L}\n{D}:\ns_waitcnt vmcnt(0)")
    spin_report(r)

def all_loads(va, vb, r):
    return f"global_load_dwordx4 v[{r}:{r+3}], v{va}, {WSP} sc1\nglobal_load_dwordx4 v[{r+4}:{r+7}], v{vb}, {WSP} sc1"

def all_addr(va, vb):
    e(f"v_add_u32 v{va}, {P0F}, v1\nv_and_b32 v{vb}, 0xf0, v1\nv_add_u32 v{vb}, {P0F+1024}, v{vb}")

NPAGES = 12
def page_calls(waves):
    if not OPT["stubs"]: return
    D = e.uid("pg")
    for k, w in enumerate(waves):
        L = e.uid("pgw")
        e.raw(f"s_cmp_lg_u32 {sWV}, {w}\ns_cbranch_scc1 {L}")
        for p in range(1 + k, NPAGES, len(waves)):
            C = e.uid("pc")
            e.raw(f"""s_getpc_b64 s[96:97]
            {C}:
            s_add_u32 s96, s96, L_page{p}-{C}
            s_addc_u32 s97, s97, (L_page{p}-{C})>>32
            s_swappc_b64 s[98:99], s[96:97]""")
        e.raw(f"s_branch {D}\n{L}:")
    e.raw(f"{D}:")

def wave0(fn):
    L = e.uid("w0")
    e.raw(f"s_cmp_lg_u32 {sWV}, 0\ns_cbranch_scc1 {L}")
    fn()
    e.raw(f"{L}:")

def wait_flag(vaddr, base, target):
    wave0(lambda: spin(vaddr, base, target))
    e.raw("s_barrier")

def signal(soff, base, vt=6):
    def fn():
        e.raw(f"""s_mov_b64 exec, 1
        v_mov_b32 v{vt}, {soff}
        v_mov_b32 v{vt+1}, 1
        global_atomic_add v{vt}, v{vt+1}, {base} sc1
        s_mov_b64 exec, -1""")
    wave0(fn)

def cnt_off(dst, idx_expr_s, const):
    e(f"s_lshl_b32 {dst}, {idx_expr_s}, 8\ns_add_u32 {dst}, {dst}, {CNT + const * 256 + 128}")

def entry():
    e(f"""s_cmp_ge_u32 s2, 256
    s_cbranch_scc1 L_exit
    s_load_dwordx16 s[16:31], s[0:1], 0
    s_load_dwordx8 s[32:39], s[0:1], 64
    s_load_dwordx2 s[40:41], s[0:1], 96
    v_lshrrev_b32 v2, 6, v0
    v_and_b32 v0, 63, v0
    v_readfirstlane_b32 {sWV}, v2
    s_and_b32 {sX}, s2, 7
    s_lshr_b32 {sSLOT}, s2, 3
    s_mov_b32 {sMASK}, 0xffff0000
    v_lshlrev_b32 v1, 4, v0""")
    if OPT["prof"]:
        e(f"v_mov_b32 v{VST}, 0")
    e(f"s_cmp_ge_u32 {sSLOT}, 20\ns_cbranch_scc1 L_shuf")

def args_ready():
    e.wait_all(vm=False)
    stamp("start")
    e.raw(f"s_load_dword {sTAG}, {WSP}, {EPO}")

def ffn_ids():
    srd(WS, P_WS, WS_END)
    e(f"""s_lshr_b32 {T[0]}, {sX}, 1
    s_lshl_b32 {T[0]}, {T[0]}, 2
    s_lshr_b32 {T[1]}, {sSLOT}, 3
    s_add_u32 {sG}, {T[0]}, {T[1]}
    s_and_b32 {sHF}, {sX}, 1
    s_and_b32 {sMI}, {sSLOT}, 7
    s_lshl_b32 {T[0]}, {sHF}, 3
    s_add_u32 {sJT}, {T[0]}, {sMI}
    s_lshl_b32 {sRB}, {sG}, 4
    s_add_u32 {sRB}, {sRB}, {sJT}""")

def q_prefetch(t):
    srd(SC, P_Q, ACT)
    e(f"""v_and_b32 v{t}, 7, v0
    v_lshrrev_b32 v{t+1}, 3, v0
    v_mul_u32_u24 v{t}, 1280, v{t}
    v_lshl_add_u32 v{t}, v{t+1}, 4, v{t}
    s_mul_i32 {T[18]}, {sRB}, 10240
    s_mul_i32 {T[19]}, {sWV}, 320
    s_add_u32 {T[18]}, {T[18]}, {T[19]}
    v_mov_b32 v{t+1}, {BIG}
    v_cmp_gt_u32 vcc, 32, v0
    v_cndmask_b32 v{t+1}, v{t+1}, v{t}, vcc""")
    return [(f"buffer_load_dwordx4 a[240:243], v{t}, {SC}, {T[18]} offen{NT_IN}", "q"),
            (f"buffer_load_dwordx4 a[244:247], v{t}, {SC}, {T[18]} offen offset:128{NT_IN}", "q"),
            (f"buffer_load_dwordx4 a[248:251], v{t+1}, {SC}, {T[18]} offen offset:256{NT_IN}", "q")]

def replica_add(line0):
    def fn():
        e.raw(f"""s_mov_b64 exec, 0xff
        v_lshlrev_b32 v6, 8, v0
        v_add_u32 v6, {line0}, v6
        v_mov_b32 v7, 1
        global_atomic_add v6, v7, {WSP} sc1
        s_mov_b64 exec, -1""")
    wave0(fn)

def shuf_addr(r):
    e(f"s_lshl_b32 {T[4]}, {sX}, 8\ns_add_u32 {T[4]}, {T[4]}, {CNT + 2048}\nv_min_u32 v{r}, 5, v0\nv_lshlrev_b32 v{r}, 12, v{r}\nv_add_u32 v{r}, {T[4]}, v{r}")

def wd_base():
    e(f"""s_mul_i32 {sWD}, {sMI}, {WT}
    s_mul_i32 {T[12]}, {sWV}, 71680
    s_add_u32 {sWD}, {sWD}, {T[12]}
    s_add_u32 {sWD}, {sWD}, {WDP}
    v_min_u32 v226, 27, v0
    v_lshlrev_b32 v226, 3, v226
    s_lshl_b32 {T[12]}, {sX}, 8
    s_add_u32 {T[12]}, {T[12]}, {WDF}
    v_add_u32 v226, {T[12]}, v226""")
WD_POLL = f"global_load_dwordx2 v[228:229], v226, {WSP} sc1"
def wd_check():
    L = e.uid("wdok")
    e.wait(vm="wdf")
    keep = list(e.vm)
    tag_bad(228, 1)
    e.raw(f"s_cbranch_vccz {L}")
    spin_tag(WD_POLL, 228, 1)
    e.raw(f"{L}:")
    e.vm = keep
    fstamp("wd_ok")
def wd_resident(n):
    L = []
    for fr in range(n):
        if fr & 3 == 0: L.append(f"s_add_u32 {T[13]}, {sWD}, {fr*1024}")
        L.append((f"buffer_load_dwordx4 {a(4*fr,4)}, v1, {WS}, {T[13]} offen offset:{1024*(fr&3)} sc1", "wdres"))
    return L

def all_check():
    L = e.uid("allok")
    e.wait(vm="all")
    keep = list(e.vm)
    tag_bad(208, 4)
    e.raw(f"s_cbranch_vccz {L}")
    spin_tag(all_loads(216, 217, 208), 208, 4)
    e.raw(f"{L}:")
    e.vm = keep

def p0():
    KR, VR, WR, WF, KF, AC, VF, PK, HR = 16, 44, 60, 76, 108, 164, 196, 200, 216
    e(f"""s_mul_i32 {sCI}, {sX}, 20
    s_add_u32 {sCI}, {sCI}, {sSLOT}
    s_lshr_b32 {sCGP}, {sCI}, 4
    s_and_b32 {T[0]}, {sCI}, 15
    s_lshl_b32 {T[0]}, {T[0]}, 7
    s_lshl_b32 {T[1]}, {sWV}, 5
    s_add_u32 {T[2]}, {T[0]}, {T[1]}
    s_mul_i32 {T[3]}, {T[2]}, 1280
    s_lshl_b32 {T[4]}, {sCGP}, 7
    s_add_u32 {T[3]}, {T[3]}, {T[4]}
    v_and_b32 v2, 7, v0
    v_lshrrev_b32 v3, 3, v0
    v_mul_u32_u24 v4, 5120, v3
    v_lshl_add_u32 v4, v2, 4, v4
    v_add_u32 v4, {T[3]}, v4
    v_subrev_u32 v8, 3840, v4
    v_mov_b32 v9, {BIG}
    v_cmp_gt_u32 vcc, 1280, v4
    s_lshl_b32 {T[4]}, {sCGP}, 9
    s_lshl_b32 {T[5]}, {sCI}, 2
    v_cndmask_b32 v8, v8, v9, vcc
    v_lshlrev_b32 v9, 6, v2
    s_add_u32 {T[5]}, {T[5]}, {sWV}
    s_lshl_b32 {T[6]}, {T[5]}, 12
    s_lshr_b32 {T[7]}, {T[5]}, 1
    s_lshl_b32 {T[7]}, {T[7]}, 2
    v_subrev_u32 v10, 32, v1
    v_subrev_u32 v11, 16, v1
    v_add_u32 v12, 992, v1""")
    args_ready()
    srd(SA, P_K, ACT)
    for i in range(3):
        e(f"buffer_load_dwordx4 {v(KR+4*i,4)}, v8, {SA}, 0 offen offset:{1280*i}{NT_IN}", tag=f"k{i}")
    for i in range(4):
        e(f"buffer_load_dwordx4 {v(KR+12+4*i,4)}, v4, {SA}, 0 offen offset:{1280*i}{NT_IN}", tag=f"k{i+3}")
    srd(SC, P_SHK, 5120)
    for i in range(4):
        e(f"buffer_load_dwordx4 {v(WR+4*i,4)}, v9, {SC}, {T[4]} offen offset:{16*i}", tag="shk")
    srd(SB, P_V, ACT)
    for i in range(4):
        e(f"buffer_load_dwordx4 {v(VR+4*i,4)}, v4, {SB}, 0 offen offset:{1280*i}{NT_IN}", tag=f"v{i}")
    e.raw(f"s_load_dword {sDV}, s[{P_D}:{P_D+1}], {T[7]}")
    srd(SA, P_SSM, 4096, add=T[6])
    e(f"buffer_load_dwordx4 {v(HR,4)}, v10, {SA}, 0 offen{NT_IN}\nbuffer_load_dwordx2 {v(HR+4,2)}, v11, {SA}, 0 offen{NT_IN}", tag="h0")
    for q in range(1, 5):
        e(f"buffer_load_dwordx4 {v(HR+8*q,4)}, v12, {SA}, 0 offen offset:{1024*(q-1)}{NT_IN}", tag=f"h{q}")
        e(f"buffer_load_dwordx2 {v(HR+8*q+4,2)}, v12, {SA}, 0 offen offset:{1024*(q-1)+16}{NT_IN}", tag=f"h{q}")
    ffn_ids()
    def clr():
        e.raw(f"""s_lshl_b32 {T[8]}, {sCI}, 8
        s_mov_b64 exec, 0xffff
        v_mov_b32 v196, 0
        v_mov_b32 v197, 0
        v_mov_b32 v198, 0
        v_mov_b32 v199, 0
        buffer_store_dwordx4 v[196:199], v1, {WS}, {T[8]} offen sc1
        s_mov_b64 exec, -1""")
    wave0(clr)
    if OPT["sent_y"]:
        e(f"""v_mul_u32_u24 v12, 20480, v3
        v_lshl_add_u32 v12, v2, 4, v12
        s_mul_i32 {T[10]}, {sWV}, {32*20480}
        s_lshl_b32 {T[11]}, {sCI}, 7
        s_add_u32 {T[10]}, {T[10]}, {T[11]}
        s_add_u32 {T[10]}, {T[10]}, {YB}
        v_mov_b32 v196, -1
        v_mov_b32 v197, -1
        v_mov_b32 v198, -1
        v_mov_b32 v199, -1""")
        for m in range(4):
            e(f"buffer_store_dwordx4 v[196:199], v12, {WS}, {T[10]} offen sc1\ns_add_u32 {T[10]}, {T[10]}, {8*20480}", tag="clr")
    e(f"""s_lshl_b32 {T[8]}, {sWV}, 12
    v_lshlrev_b32 v13, 9, v3
    v_sub_u32 v13, {P0L + 28*128}, v13
    v_lshl_add_u32 v13, v2, 4, v13
    v_add_u32 v13, {T[8]}, v13
    v_bfe_u32 v14, v0, 2, 2
    v_lshlrev_b32 v14, 7, v14
    v_lshrrev_b32 v15, 4, v0
    v_lshl_add_u32 v14, v15, 5, v14
    v_and_b32 v15, 3, v0
    v_lshl_add_u32 v14, v15, 3, v14
    v_add_u32 v14, {T[8]}, v14
    s_sub_u32 {T[8]}, 2016, {T[2]}
    s_lshr_b32 {T[8]}, {T[8]}, 3
    s_mul_i32 {T[8]}, {T[8]}, 10240
    s_lshl_b32 {T[9]}, {sCGP}, 10
    s_add_u32 {T[8]}, {T[8]}, {T[9]}
    s_add_u32 {T[8]}, {T[8]}, {KVT}""")
    def unpack(dst, src, n):
        for c in range(n):
            if c & 1: e(f"v_and_b32 v{dst+c}, {sMASK}, v{src+(c>>1)}")
            else: e(f"v_lshlrev_b32 v{dst+c}, 16, v{src+(c>>1)}")
    for i in range(7):
        e.wait(vm=f"k{i}")
        unpack(KF + 8 * i, KR + 4 * i, 8)
    e.wait(vm="shk")
    for c in range(8):
        for tau in range(4):
            src = WR + 2 * c + (tau >> 1)
            if tau & 1: e(f"v_and_b32 v{WF+8*tau+c}, {sMASK}, v{src}")
            else: e(f"v_lshlrev_b32 v{WF+8*tau+c}, 16, v{src}")
    fstamp("k_done")
    for i in range(4):
        for p in range(4):
            d = v(AC + 8 * i + 2 * p, 2)
            e(f"v_pk_mul_f32 {d}, {v(KF+8*(i+3)+2*p,2)}, {v(WF+2*p,2)}")
        for tau in range(1, 4):
            for p in range(4):
                d = v(AC + 8 * i + 2 * p, 2)
                e(f"v_pk_fma_f32 {d}, {v(KF+8*(i+3-tau)+2*p,2)}, {v(WF+8*tau+2*p,2)}, {d}")
        e.wait(vm=f"v{i}")
        unpack(KF + 8 * i, VR + 4 * i, 8)
        for p in range(4):
            d = v(AC + 8 * i + 2 * p, 2)
            e(f"v_pk_mul_f32 {d}, {d}, {v(KF+8*i+2*p,2)}")
        for p in range(4):
            e(f"v_cvt_pk_bf16_f32 v{PK+4*i+p}, v{AC+8*i+2*p}, v{AC+8*i+2*p+1}")
        e(f"ds_write_b128 v13, {v(PK+4*i,4)} offset:{128*(3-i)}", tag="w")
    for m in range(4):
        for hh in range(2):
            e(f"ds_read_b64_tr_b16 {v(16+4*m+2*hh,2)}, v14 offset:{(8*m+4*hh)*128}", tag=f"t{m}")
    tag_ready()
    for m in range(4):
        e(f"buffer_store_dwordx4 {v(16+4*m,4)}, v1, {WS}, {T[8]} offen sc1", tag="st")
        if m < 3: e(f"s_add_u32 {T[8]}, {T[8]}, 10240")
    fstamp("p0_st")
    e(f"s_mul_i32 {T[9]}, {sWV}, {FCH}\ns_add_u32 {T[9]}, {T[9]}, {F0}\nv_add_u32 v13, {T[9]}, v1")
    for q in range(5):
        d = HR + 8 * q; t = 108 + 12 * q
        e.wait(vm=f"h{q}")
        for j in range(4):
            e(f"v_alignbit_b32 v{t+j}, v{d+j+1}, v{d+j}, 16")
            e(f"v_mov_b32 v{t+4+j}, v{d+j+1}")
            e(f"v_alignbit_b32 v{t+8+j}, v{d+j+2}, v{d+j+1}, 16")
        if q == 4: e("s_mov_b64 exec, 3")
        e(f"ds_write_b128 v13, {v(d,4)} offset:{1024*q}", tag="w")
        for sg in range(1, 4):
            e(f"ds_write_b128 v13, {v(t+4*sg-4,4)} offset:{sg*FCP+1024*q}", tag="w")
        if q == OPT["sig_q"]:
            e("s_mov_b64 exec, -1")
            p0_signal()
    e(f"""s_mul_i32 {T[9]}, {sWV}, {UCH}
    s_add_u32 {T[9]}, {T[9]}, {U0}
    s_mov_b64 exec, -1
    v_add_u32 v13, {T[9]}, v1
    v_mov_b32 v32, 0
    v_mov_b32 v33, 0
    v_mov_b32 v34, 0
    v_mov_b32 v35, 0
    s_mov_b32 exec_lo, -1
    s_mov_b32 exec_hi, 3
    ds_write_b128 v13, v[32:35] offset:4096
    s_mov_b64 exec, -1""", tag="w")
    e(f"""s_and_b32 {T[7]}, {T[5]}, 1
    s_lshl_b32 {T[6]}, {sDV}, 16
    s_and_b32 {sDV}, {sDV}, {sMASK}
    s_cmp_eq_u32 {T[7]}, 0
    s_cselect_b32 {sDV}, {T[6]}, {sDV}
    v_and_b32 v7, 15, v0
    v_lshlrev_b32 v7, 3, v7""")
    if OPT["pwave"]:
        e(f"s_lshl_b32 {T[8]}, {sCGP}, 2\ns_sub_u32 {T[8]}, {T[8]}, {sWV}\ns_lshl_b32 {T[8]}, {T[8]}, 7\ns_add_u32 {T[8]}, {T[8]}, {P0W + 384}")
    else:
        e(f"s_lshl_b32 {T[8]}, {sCGP}, 7\ns_add_u32 {T[8]}, {T[8]}, {P0F}")
    e(f"v_add_u32 v7, {T[8]}, v7")

def tag_store(soff, t):
    e.raw(f"""s_mov_b64 exec, 1
    v_mov_b32 v{t}, {soff}
    v_mov_b32 v{t+2}, {sTAG}
    v_mov_b32 v{t+3}, {sNTAG}
    global_store_dwordx2 v{t}, v[{t+2}:{t+3}], {WSP} sc1
    s_mov_b64 exec, -1""")

def wg_flag(t):
    e(f"s_lshl_b32 {T[8]}, {sCI}, 3\ns_add_u32 {T[8]}, {T[8]}, {P0F}")
    wave0(lambda: tag_store(T[8], t))

def p0_signal():
    if OPT["pwave"]:
        e(f"s_lshl_b32 {T[8]}, {sCI}, 5\ns_lshl_b32 {T[10]}, {sWV}, 3\ns_add_u32 {T[8]}, {T[8]}, {T[10]}\ns_add_u32 {T[8]}, {T[8]}, {P0W}")
    e.wait_all(lg=False)
    fstamp("p0_drain")
    if OPT["pwave"]:
        tag_store(T[8], 36)
    else:
        e.raw("s_barrier")
        wg_flag(36)

def sentinel_loop(loads, r, vt):
    L = e.uid("sent"); D = e.uid("sentok")
    def chk():
        e.raw("\n".join([f"v_max3_u32 v{vt}, v{r}, v{r+1}, v{r+2}"] + [f"v_max3_u32 v{vt}, v{vt}, v{r+k}, v{r+k+1}" for k in range(3, 11, 2)] +
                        [f"v_max_u32 v{vt}, v{vt}, v{r+11}", f"v_cmp_eq_u32 vcc, -1, v{vt}"]))
    keep = list(e.vm)
    chk()
    e.raw(f"s_cbranch_vccz {D}\ns_mov_b32 {sSPIN}, 0\n{L}:\n{loads}")
    e.raw(f"""s_add_u32 {sSPIN}, {sSPIN}, 1
    s_waitcnt vmcnt(0)
    s_cmp_gt_u32 {sSPIN}, {SPIN_LIMIT}
    s_cbranch_scc1 {D}""")
    chk()
    e.raw(f"s_cbranch_vccnz {L}\n{D}:")
    e.vm = keep

def go_raise():
    if True:
        L = e.uid("go")
        e.raw(f"""s_or_b32 {T[2]}, {sSLOT}, {sWV}
        s_cmp_lg_u32 {T[2]}, 0
        s_cbranch_scc1 {L}
        s_lshl_b32 {T[2]}, {sX}, 7
        s_add_u32 {T[2]}, {T[2]}, {GOF}
        s_mov_b64 exec, 1
        v_mov_b32 v220, {T[2]}
        v_mov_b32 v222, {sTAG}
        v_mov_b32 v223, {sNTAG}
        global_store_dwordx2 v220, v[222:223], {WSP} sc1
        s_mov_b64 exec, -1
        {L}:""")

def conv():
    AC, GB, FB, KV, KU, YP = 16, (48, 80), 112, 144, 160, 192
    e(f"""v_lshrrev_b32 v8, 2, v0
    v_and_b32 v9, 3, v0
    v_mul_u32_u24 v10, 10240, v8
    v_lshl_add_u32 v10, v9, 4, v10
    v_mul_u32_u24 v11, {UCH}, v9
    v_lshl_add_u32 v11, v8, 4, v11
    s_lshl_b32 {T[0]}, {sWV}, 10
    s_add_u32 {T[0]}, {T[0]}, {U0}
    v_add_u32 v11, {T[0]}, v11
    s_mul_i32 {T[0]}, {sWV}, {64*10240}
    s_lshl_b32 {T[1]}, {sCI}, 6
    s_add_u32 {T[0]}, {T[0]}, {T[1]}
    s_add_u32 {T[0]}, {T[0]}, {KVT}
    v_and_b32 v8, 15, v0
    v_lshrrev_b32 v9, 4, v0
    v_add_u32 v12, 1, v8
    v_and_b32 v13, 3, v12
    v_sub_u32 v12, v12, v13
    v_mul_u32_u24 v13, {FCP}, v13
    v_lshl_add_u32 v12, v12, 1, v13
    v_lshl_add_u32 v12, v9, 4, v12
    s_mul_i32 {T[1]}, {sWV}, {FCH}
    s_add_u32 {T[1]}, {T[1]}, {F0}
    v_add_u32 v2, {T[1]}, v12
    s_mul_i32 {T[1]}, {sWV}, {UCH}
    s_add_u32 {T[1]}, {T[1]}, {U0}
    v_lshlrev_b32 v12, 5, v8
    v_sub_u32 v12, {T[1]}, v12
    v_lshl_add_u32 v3, v9, 4, v12
    v_add_u32 v3, 480, v3
    v_lshlrev_b32 v13, 3, v9
    v_sub_u32 v4, v12, v13
    v_add_u32 v4, 504, v4""")
    if OPT["pwave"]:
        spin_tag(f"global_load_dwordx2 v[14:15], v7, {WSP} sc1", 14, 1)
    else:
        page_calls((1, 2, 3))
        wave0(lambda: spin_tag(f"global_load_dwordx2 v[14:15], v7, {WSP} sc1", 14, 1))
        e.raw("s_barrier")
    stamp("p0_flag")
    for m in range(4):
        e(f"buffer_load_dwordx4 {v(16+4*m,4)}, v10, {WS}, {T[0]} offen sc1", tag=f"u{m}")
        if m < 3: e(f"s_add_u32 {T[0]}, {T[0]}, {16*10240}")
    if OPT["go"] and OPT["go_early"]: go_raise()
    ql = q_prefetch(218)
    all_addr(216, 217)
    shuf_addr(224)
    if OPT["wd_early"]:
        wd_base()
    e(f"""v_lshrrev_b32 v10, 1, v8
    v_mul_u32_u24 v10, 72, v10
    v_and_b32 v12, 1, v8
    v_lshl_add_u32 v10, v12, 4, v10
    v_lshl_add_u32 v10, v9, 2, v10
    s_mul_i32 {T[1]}, {sWV}, {YCS}
    s_add_u32 {T[1]}, {T[1]}, {YA}
    v_add_u32 v10, {T[1]}, v10
    v_lshrrev_b32 v14, 2, v8
    v_mul_u32_u24 v14, {YCS}, v14
    v_mul_u32_u24 v12, 72, v9
    v_add_u32 v14, v14, v12
    v_and_b32 v12, 3, v8
    v_lshl_add_u32 v14, v12, 3, v14
    s_mul_i32 {T[1]}, {sWV}, {72*16}
    s_add_u32 {T[1]}, {T[1]}, {YA}
    v_add_u32 v14, {T[1]}, v14
    v_lshrrev_b32 v12, 3, v0
    v_mul_u32_u24 v12, 20480, v12
    v_and_b32 v13, 7, v0
    v_lshl_add_u32 v12, v13, 4, v12
    s_mul_i32 {T[0]}, {sWV}, {32*20480}
    s_lshl_b32 {T[1]}, {sCI}, 7
    s_add_u32 {T[0]}, {T[0]}, {T[1]}
    s_add_u32 {T[0]}, {T[0]}, {YB}
    s_lshl_b32 {T[1]}, {sCGP}, 12
    s_add_u32 {T[1]}, {T[1]}, {CNT}""")
    seq = []
    for r in range(8):
        for aa in range(8):
            for b in range(7 - aa, -1, -1):
                seq.append((r, aa, b))
    first = {}; last = {}; fin = {}
    for t, (r, aa, b) in enumerate(seq):
        fin[aa + b] = t
        for key in (("F", r, aa), ("G", r, b)):
            first.setdefault(key, t); last[key] = t
    reads = []
    for key, t in first.items():
        kind, r, i = key
        prev = (kind, r - (1 if kind == "F" else 2), i)
        earliest = last[prev] + 1 if prev in last else -99
        if kind == "F":
            for h in range(2):
                reads.append((t, earliest, f"ds_read_b64 {v(FB+4*i+2*h,2)}, v2 offset:{512*i+64*r+8*h}", key))
        else:
            reads.append((t, earliest, f"ds_read_b128 {v(GB[r&1]+4*i,4)}, v3 offset:{512*(7-i)+64*r}", key))
    reads.sort(key=lambda x: x[0])
    early = [x for x in reads if x[3][0] == "F" and x[3][1] == 0]
    for x in early:
        e(x[2], tag=x[3]); reads.remove(x)
    for m in range(4):
        e.wait(vm=f"u{m}")
        e(f"ds_write_b128 v11, {v(16+4*m,4)} offset:{256*m}", tag="w")
    e.wait_all(vm=False)
    e.raw("s_barrier")
    if OPT["pwave"]: wg_flag(220)
    if OPT["go"] and not OPT["go_early"]: go_raise()
    fstamp("u_ready")
    S = Sched()
    if OPT["wd_early"]:
        S.at(OPT["wd_chk"] - 40, [(WD_POLL, "wdf")])
        S.at(OPT["wd_chk"], [wd_check])
        t = OPT["wd_chk"] + 1
        for it in wd_resident(OPT["wd_n"]):
            S.at(t, [it])
            if isinstance(it, tuple): t += OPT["wd_gap"]
    S.at(20, ql)
    S.at(200, [(l, "all") for l in all_loads(216, 217, 208).split("\n")])
    for n in range(8):
        S.at(150 + 4 * n, [(f"ds_read_b64 {v(KV+2*n,2)}, v4 offset:{512*(7-n)}", f"kv{n}")])
        d0, d1 = KV + 2 * n, KV + 2 * n + 1
        S.add(205, [f"v_and_b32 v{KU+4*n}, {sMASK}, v{d1}", f"v_lshlrev_b32 v{KU+4*n+1}, 16, v{d1}",
                    f"v_and_b32 v{KU+4*n+2}, {sMASK}, v{d0}", f"v_lshlrev_b32 v{KU+4*n+3}, 16, v{d0}"])
    for n in range(8):
        S.add(fin[n] + 6, [f"v_fmac_f32 v{AC+4*n+k}, {sDV}, v{KU+4*n+k}" for k in range(4)] +
              [f"v_cvt_pk_bf16_f32 v{YP+2*n}, v{AC+4*n}, v{AC+4*n+2}", f"v_cvt_pk_bf16_f32 v{YP+2*n+1}, v{AC+4*n+1}, v{AC+4*n+3}",
               (f"ds_write_b32 v10, v{YP+2*n} offset:{576*n}", "w"), (f"ds_write_b32 v10, v{YP+2*n+1} offset:{576*n+32}", "w")])
    LOOK = 22; ri = 0
    done_acc = set()
    for t, (r, aa, b) in enumerate(seq):
        n = 0
        while ri < len(reads) and reads[ri][1] <= t and (reads[ri][0] - t <= 6 or (n < 1 and reads[ri][0] - t <= LOOK)):
            e(reads[ri][2], tag=reads[ri][3]); ri += 1; n += 1
        need = [("F", r, aa), ("G", r, b)]
        S.gap(t, n + (1 if e.would_wait(lg=need) else 0), OPT["cx"] if t >= 262 else 0)
        e.wait(lg=need)
        acc = v(AC + 4 * (aa + b), 4)
        c = acc if (aa + b) in done_acc else "0"
        done_acc.add(aa + b)
        e(f"v_mfma_f32_16x16x32_bf16 {acc}, {v(FB+4*aa,4)}, {v(GB[r&1]+4*b,4)}, {c}")
    assert ri == len(reads) and not S.side
    print(f"conv: {len(S.fill)} epilogue instructions left after the last MFMA", file=sys.stderr)
    fstamp("conv_mfma")
    while S.fill: put(S.fill.pop(0)[1])
    e.wait_all(vm=False)
    e.raw("s_barrier")
    for m in range(4):
        for par in range(2):
            e(f"ds_read_b64_tr_b16 {v(48+4*m+2*par,2)}, v14 offset:{288*m+32*par}", tag=f"t{m}")
    for m in range(4):
        e.wait(lg=f"t{m}")
        e(f"buffer_store_dwordx4 {v(48+4*m,4)}, v12, {WS}, {T[0]} offen sc1", tag="st")
        if m < 3: e(f"s_add_u32 {T[0]}, {T[0]}, {8*20480}")
    if not OPT["sent_y"]: e.wait(vm="st")
    e.raw("s_barrier")
    replica_add(T[1])
    all_check()
    e(f"global_load_dword v225, v224, {WSP} sc1", tag="shuf")
    if OPT["pre_a1"]:
        L = e.uid("shufok")
        e.wait_all()
        e.raw(f"v_cmp_gt_u32 vcc, 16, v225\ns_cbranch_vccz {L}")
        spin(224, WSP, 16, 225)
        e.raw(f"{L}:")
    stamp("conv_done")

def go_wait(early=False):
    if not OPT["go"] or (OPT["go"] == 2) != early: return
    e(f"s_lshl_b32 {T[10]}, {sX}, 7\ns_add_u32 {T[10]}, {T[10]}, {GOF}\nv_mov_b32 v220, {T[10]}")
    e.wait_all()
    spin_tag(f"global_load_dwordx2 v[222:223], v220, {WSP} sc1\ns_sleep 2", 222, 1)

def shuffle():
    e.label("L_shuf")
    e(f"s_sub_u32 {sCI}, s2, 160")
    args_ready()
    ffn_ids()
    for it in q_prefetch(8): put(it)
    e(f"s_lshl_b32 {T[0]}, {sCI}, 2\ns_add_u32 {T[0]}, {T[0]}, {sWV}")
    if OPT["warm"]:
        e(f"""s_getpc_b64 s[96:97]
        L_pc:
        s_sub_u32 s96, s96, L_pc-{NAME}
        s_subb_u32 s97, s97, 0
        s_sub_u32 {T[1]}, {sSLOT}, 20
        s_lshl_b32 {T[1]}, {T[1]}, 2
        s_add_u32 {T[1]}, {T[1]}, {sWV}
        s_lshl_b32 {T[1]}, {T[1]}, 11
        v_and_b32 v8, 15, v0
        v_lshlrev_b32 v8, 7, v8
        v_add_u32 v8, {T[1]}, v8
        v_min_u32 v8, L_exit-{NAME}, v8
        global_load_dword v254, v8, s[96:97]""", tag="warm")
    L = e.uid("nz")
    e.raw(f"""s_cmp_ge_u32 {T[0]}, 160
    s_cbranch_scc1 {L}
    s_mul_i32 {T[1]}, {T[0]}, 1639
    s_lshr_b32 {T[1]}, {T[1]}, 16
    s_mul_i32 {T[2]}, {T[1]}, 40
    s_sub_u32 {T[2]}, {T[0]}, {T[2]}
    s_lshl_b32 {T[2]}, {T[2]}, 10
    s_mul_i32 {T[3]}, {T[1]}, {WT}
    s_add_u32 {T[3]}, {T[3]}, {T[2]}
    s_add_u32 {T[3]}, {T[3]}, {WGU + 12*WT + 240*1024}
    v_mov_b32 v16, 0
    v_mov_b32 v17, 0
    v_mov_b32 v18, 0
    v_mov_b32 v19, 0
    buffer_store_dwordx4 v[16:19], v1, {WS}, {T[3]} offen sc1
    {L}:""")
    tag_ready()
    e(f"""s_mul_i32 {T[1]}, {sWV}, {SHST}
    v_lshrrev_b32 v2, 3, v0
    v_and_b32 v3, 7, v0
    v_lshrrev_b32 v8, 4, v0
    v_bfe_u32 v9, v0, 2, 2
    v_and_b32 v10, 3, v0
    v_lshl_add_u32 v8, v8, 3, v9""")
    if OPT["shufwait"]:
        e.wait_all()
    if OPT["stubs"]:
        e.wait_all()
        page_calls((1, 2, 3))
    if OPT["go"] == 2: go_wait(True)
    fstamp("shuf_go")
    e(f"s_cmp_ge_u32 {T[0]}, 272\ns_cbranch_scc1 L_shuf_wd\ns_cmp_ge_u32 {T[0]}, 270\ns_cbranch_scc1 L_shuf_go")
    srd(SA, P_WG, 640 * 3456); srd(SB, P_WU, 640 * 3456)
    e(f"""s_mul_i32 {T[2]}, {T[0]}, 6554
    s_lshr_b32 {T[2]}, {T[2]}, 16
    s_mul_i32 {T[3]}, {T[2]}, 10
    s_sub_u32 {T[3]}, {T[0]}, {T[3]}
    s_mul_i32 {T[4]}, {T[3]}, {64*3456}
    s_lshl_b32 {T[5]}, {T[2]}, 7
    s_add_u32 {T[4]}, {T[4]}, {T[5]}
    v_mul_u32_u24 v4, 3456, v2
    v_lshl_add_u32 v4, v3, 4, v4""")
    for m in range(8):
        e(f"buffer_load_dwordx4 {v(16+8*m,4)}, v4, {SA}, {T[4]} offen{NT_W}", tag=f"l{m}")
        e(f"buffer_load_dwordx4 {v(20+8*m,4)}, v4, {SB}, {T[4]} offen{NT_W}", tag=f"l{m}")
        if m < 7: e(f"s_add_u32 {T[4]}, {T[4]}, {8*3456}")
    e(f"""v_mul_u32_u24 v11, 272, v2
    v_lshl_add_u32 v11, v3, 4, v11
    v_add_u32 v11, {T[1]}, v11
    v_mul_u32_u24 v12, 272, v8
    v_add_u32 v12, {T[1]}, v12
    s_cmp_lt_u32 {T[2]}, 24
    s_cselect_b32 {T[4]}, 4, 3
    v_lshlrev_b32 v10, {T[4]}, v10
    v_add_u32 v12, v12, v10
    s_cselect_b32 {T[4]}, 8, 32
    v_add_u32 v13, {T[4]}, v12
    v_add_u32 v14, 64, v12
    v_add_u32 v15, 64, v13
    s_cselect_b32 {T[8]}, 4, 2
    s_lshl_b32 {T[8]}, {T[8]}, 10""")
    for m in range(8):
        e.wait(vm=f"l{m}")
        e(f"ds_write_b128 v11, {v(16+8*m,4)} offset:{m*2176}\nds_write_b128 v11, {v(20+8*m,4)} offset:{m*2176+128}", tag="w")
    e.wait(lg="w")
    go_wait()
    for fi in range(4):
        for ss in range(2):
            for mat in range(2):
                for hh in range(2):
                    e(f"ds_read_b64_tr_b16 {v(16+16*fi+8*ss+4*mat+2*hh,2)}, v{12+fi} offset:{(32*ss+4*hh)*272+128*mat}", tag=f"t{fi}")
        e(f"""s_lshl_b32 {T[4]}, {T[2]}, 1
        s_add_u32 {T[4]}, {T[4]}, {fi >> 1}
        s_mul_i32 {T[5]}, {T[4]}, 21846
        s_lshr_b32 {T[5]}, {T[5]}, 16
        s_mul_i32 {T[6]}, {T[5]}, 3
        s_sub_u32 {T[6]}, {T[4]}, {T[6]}
        s_mul_i32 {T[6]}, {T[6]}, 80
        s_add_u32 {T[6]}, {T[6]}, {2 * (fi & 1)}
        s_lshl_b32 {T[4]}, {T[2]}, 2
        s_sub_u32 {T[4]}, {T[4]}, {96 - fi}
        s_cmp_lt_u32 {T[2]}, 24
        s_cselect_b32 {T[5]}, {T[5]}, {T[4]}
        s_cselect_b32 {T[6]}, {T[6]}, 240
        s_mul_i32 {T[5]}, {T[5]}, {WT}
        s_lshl_b32 {T[6]}, {T[6]}, 10
        s_add_u32 {T[7]}, {T[5]}, {T[6]}
        s_lshl_b32 {T[9]}, {T[3]}, 1
        s_mul_i32 {T[9]}, {T[9]}, {T[8]}
        s_add_u32 {T[7]}, {T[7]}, {T[9]}
        s_add_u32 {T[7]}, {T[7]}, {WGU}""")
        e.wait(lg=f"t{fi}")
        for ss in range(2):
            for mat in range(2):
                e(f"buffer_store_dwordx4 {v(16+16*fi+8*ss+4*mat,4)}, v1, {WS}, {T[7]} offen offset:{1024*mat} sc1", tag="st")
            if ss == 0: e(f"s_add_u32 {T[7]}, {T[7]}, {T[8]}")
    e("s_branch L_shuf_end")
    e.vm = []; e.lg = []
    e.label("L_shuf_wd")
    srd(SA, P_WD, 1728 * 1280)
    e(f"""s_sub_u32 {T[2]}, {T[0]}, 272
    s_and_b32 {T[3]}, {T[2]}, 1
    s_lshr_b32 {T[2]}, {T[2]}, 1
    s_mul_i32 {T[4]}, {T[2]}, 4682
    s_lshr_b32 {T[4]}, {T[4]}, 16
    s_mul_i32 {T[5]}, {T[4]}, 14
    s_sub_u32 {T[5]}, {T[2]}, {T[5]}
    s_and_b32 {T[6]}, {T[5]}, 3
    s_lshl_b32 {T[9]}, {T[4]}, 2
    s_add_u32 {T[7]}, {T[9]}, {T[6]}
    s_mul_i32 {T[7]}, {T[7]}, 3
    s_lshr_b32 {T[8]}, {T[5]}, 2
    s_add_u32 {T[7]}, {T[7]}, {T[8]}
    s_lshl_b32 {T[8]}, {T[4]}, 1
    s_add_u32 {T[8]}, {T[8]}, {T[6]}
    s_add_u32 {T[8]}, {T[8]}, 48
    s_cmp_ge_u32 {T[5]}, 12
    s_cselect_b32 {T[7]}, {T[8]}, {T[7]}
    s_mul_i32 {T[6]}, {T[7]}, {32*1280}
    s_mul_i32 {T[9]}, {T[3]}, 640
    s_add_u32 {T[6]}, {T[6]}, {T[9]}
    v_mul_u32_u24 v4, 1280, v2
    v_lshl_add_u32 v4, v3, 4, v4
    v_add_u32 v11, {T[6]}, v4
    v_add_u32 v12, 10240, v11
    v_add_u32 v13, 20480, v11
    v_add_u32 v14, 30720, v11""")
    for rb4 in range(4):
        for ln in range(5):
            e(f"buffer_load_dwordx4 {v(16+20*rb4+4*ln,4)}, v{11+rb4}, {SA}, 0 offen offset:{128*ln}{NT_W}", tag=f"l{rb4}")
    e(f"""v_mul_u32_u24 v4, 656, v2
    v_lshl_add_u32 v4, v3, 4, v4
    v_add_u32 v4, {T[1]}, v4
    v_mul_u32_u24 v15, 656, v8
    v_add_u32 v15, {T[1]}, v15
    v_lshl_add_u32 v2, v10, 4, v15
    v_lshl_add_u32 v3, v10, 3, v15
    s_mul_i32 {T[6]}, {T[3]}, {4*WT}
    s_mul_i32 {T[7]}, {T[4]}, 71680
    s_add_u32 {T[6]}, {T[6]}, {T[7]}
    s_mul_i32 {T[7]}, {T[5]}, 5120
    s_add_u32 {T[6]}, {T[6]}, {T[7]}
    s_add_u32 {T[6]}, {T[6]}, {WDP}""")
    for rb4 in range(4):
        e.wait(vm=f"l{rb4}")
        for ln in range(5):
            e(f"ds_write_b128 v4, {v(16+20*rb4+4*ln,4)} offset:{rb4*8*656+128*ln}", tag="w")
    e.wait(lg="w")
    if not OPT["wd_early"]: go_wait()
    for ct in range(4):
        for tau in range(5):
            base = 32 * (tau >> 1) + 4 * (tau & 1) if tau < 4 else 64
            for hh in range(2):
                e(f"ds_read_b64_tr_b16 {v(16+20*ct+4*tau+2*hh,2)}, v{2 if tau < 4 else 3} offset:{4*hh*656+2*(80*ct+base)}", tag=f"t{ct}")
        e.wait(lg=f"t{ct}")
        for tau in range(4):
            e(f"buffer_store_dwordx4 {v(16+20*ct+4*tau,4)}, v1, {WS}, {T[6]} offen offset:{1024*tau} sc1", tag="st")
        e(f"s_add_u32 {T[7]}, {T[6]}, 4096")
        e(f"buffer_store_dwordx4 {v(16+20*ct+16,4)}, v1, {WS}, {T[7]} offen sc1", tag="st")
        e(f"s_add_u32 {T[6]}, {T[6]}, {WT}")
    if OPT["wd_early"]:
        e.wait_all()
        e.raw("s_barrier")
        e(f"s_sub_u32 {T[6]}, {sCI}, 68\ns_lshl_b32 {T[6]}, {T[6]}, 3\ns_add_u32 {T[6]}, {T[6]}, {WDF}")
        wave0(lambda: e.raw(f"""s_mov_b64 exec, 0xff
        v_lshlrev_b32 v220, 8, v0
        v_add_u32 v220, {T[6]}, v220
        v_mov_b32 v222, {sTAG}
        v_mov_b32 v223, {sNTAG}
        global_store_dwordx2 v220, v[222:223], {WSP} sc1
        s_mov_b64 exec, -1"""))
        fstamp("wd_sig")
    e.label("L_shuf_go")
    go_wait()
    e.label("L_shuf_end")
    all_addr(216, 217)
    e(all_loads(216, 217, 208), tag="all")
    all_check()
    e.wait_all()
    e.raw("s_barrier")
    e(f"s_lshr_b32 {T[1]}, {sCI}, 4\ns_lshl_b32 {T[1]}, {T[1]}, 12\ns_add_u32 {T[1]}, {T[1]}, {CNT + 2048}")
    replica_add(T[1])
    fstamp("shuf_done")
    if OPT["wd_early"]:
        wd_base()
        e(WD_POLL, tag="wdf")
        wd_check()
        for it in wd_resident(OPT["wd_n"]): put(it)
    if OPT["pre_a1"] or OPT["wtouch"]:
        shuf_addr(7)
        wait_flag(7, WSP, 16)
    if OPT["wtouch"]:
        n = OPT["wtouch"]
        e(f"""s_sub_u32 {T[1]}, {sSLOT}, 20
        s_lshl_b32 {T[1]}, {T[1]}, 2
        s_add_u32 {T[1]}, {T[1]}, {sWV}
        s_and_b32 {T[3]}, {T[1]}, 7
        s_lshr_b32 {T[1]}, {T[1]}, 3
        s_mul_i32 {T[1]}, {T[1]}, {n*8192}
        s_lshl_b32 {T[2]}, {sHF}, 3
        s_add_u32 {T[2]}, {T[2]}, {T[3]}
        s_mul_i32 {T[2]}, {T[2]}, {WT}
        s_add_u32 {T[2]}, {T[2]}, {T[1]}
        s_add_u32 {T[2]}, {T[2]}, {WGU + 131072}
        v_lshlrev_b32 v8, 7, v0""")
        for k in range(n):
            e(f"buffer_load_dword v254, v8, {WS}, {T[2]} offen sc1\ns_add_u32 {T[2]}, {T[2]}, 8192", tag="touch")

class Bg:
    q = []; every = 8; n = 0
def ev(text, tag=None):
    for l in text.split("\n"):
        if not l.strip(): continue
        e(l, tag=tag)
        if l.strip().startswith("v_"):
            Bg.n += 1
            if Bg.q and Bg.n % Bg.every == 0:
                put(Bg.q.pop(0))
                while Bg.q and isinstance(Bg.q[0], str): put(Bg.q.pop(0))
def bg_flush():
    while Bg.q: put(Bg.q.pop(0))

XV, YV, RAW, NV = 16, 40, 64, 88
def unpack24(dst, src):
    for c in range(24):
        if c & 1: ev(f"v_and_b32 v{dst+c}, {sMASK}, v{src+(c>>1)}")
        else: ev(f"v_lshlrev_b32 v{dst+c}, 16, v{src+(c>>1)}")

def row_stats(x, area, scale=None):
    ev(f"v_pk_add_f32 v[112:113], {v(x,2)}, {v(x+2,2)}\nv_pk_mul_f32 v[114:115], {v(x,2)}, {v(x,2)}")
    ev(f"v_pk_fma_f32 v[114:115], {v(x+2,2)}, {v(x+2,2)}, v[114:115]")
    for p in range(2, 12):
        ev(f"v_pk_add_f32 v[112:113], v[112:113], {v(x+2*p,2)}")
        ev(f"v_pk_fma_f32 v[114:115], {v(x+2*p,2)}, {v(x+2*p,2)}, v[114:115]")
    ev("""v_add_f32 v112, v112, v113
    v_add_f32 v113, v114, v115
    v_add_f32_dpp v112, v112, v112 row_ror:8 row_mask:0xf bank_mask:0xf
    v_add_f32_dpp v113, v113, v113 row_ror:8 row_mask:0xf bank_mask:0xf""")
    for sw in ("v_permlane16_swap_b32", "v_permlane32_swap_b32"):
        ev(f"""v_mov_b32 v114, v112
        v_mov_b32 v115, v113
        {sw} v112, v114
        {sw} v113, v115
        v_add_f32 v112, v112, v114
        v_add_f32 v113, v113, v115""")
    e(f"s_mov_b64 exec, 0xff\nds_write_b64 v13, v[112:113] offset:{area}\ns_mov_b64 exec, -1", tag="w")
    e.wait_all(vm=False)
    e.raw("s_barrier")
    e(f"ds_read_b128 v[112:115], v14 offset:{area}\nds_read_b128 v[116:119], v14 offset:{area+16}", tag="r")
    e.wait(lg="r")
    ev(f"""v_pk_add_f32 v[112:113], v[112:113], v[114:115]
    v_pk_add_f32 v[116:117], v[116:117], v[118:119]
    v_pk_add_f32 v[112:113], v[112:113], v[116:117]
    v_mul_f32 v112, {f32(1/640)}, v112
    v_mul_f32 v113, {f32(1/640)}, v113
    v_fma_f32 v113, -v112, v112, v113
    v_max_f32 v113, 0, v113
    v_add_f32 v113, {f32(1e-5)}, v113
    v_rsq_f32 v120, v113""")
    if scale: ev(f"v_mul_f32 v120, {f32(scale)}, v120")
    ev("v_mul_f32_e64 v121, -v112, v120")

def normalise(dst, x):
    for p in range(12):
        ev(f"v_pk_fma_f32 {v(dst+2*p,2)}, {v(x+2*p,2)}, v[120:121], v[120:121] op_sel:[0,0,1] op_sel_hi:[1,0,1]")

def r_addr():
    e(f"""v_and_b32 v8, 7, v0
    v_lshrrev_b32 v9, 3, v0
    s_mul_i32 {T[0]}, {sWV}, 20
    v_add_u32 v9, {T[0]}, v9
    v_lshlrev_b32 v10, 8, v9
    v_lshl_add_u32 v10, v8, 4, v10
    v_add_u32 v11, 2048, v10
    v_add_u32 v12, 4096, v10
    v_mov_b32 v15, {BIG}
    v_cmp_gt_u32 vcc, 32, v0
    v_cndmask_b32 v12, v15, v12, vcc
    v_lshlrev_b32 v14, 5, v8
    v_add_u32 v14, {RED}, v14
    s_lshl_b32 {T[0]}, {sWV}, 3
    v_add_u32 v13, {T[0]}, v14
    s_lshr_b32 {T[1]}, {sRB}, 1
    s_mul_i32 {T[1]}, {T[1]}, 20480
    s_and_b32 {T[2]}, {sRB}, 1
    s_lshl_b32 {T[2]}, {T[2]}, 7
    s_add_u32 {T[1]}, {T[1]}, {T[2]}
    s_lshl_b32 {T[2]}, {sWV}, 10
    v_add_u32 v4, {T[2]}, v1""")

def r_finish(layer):
    row_stats(XV, 256, ALPHA)
    normalise(NV, XV)
    e(f"s_add_u32 {T[2]}, {T[1]}, {XN[layer]}")
    for it in range(3):
        for p in range(4 * it, 4 * it + 4):
            e(f"v_cvt_pk_bf16_f32 v{RAW+p}, v{NV+2*p}, v{NV+2*p+1}")
        e(f"buffer_store_dwordx4 {v(RAW+4*it,4)}, v{10+it}, {WS}, {T[2]} offen sc1", tag="st")
    for p in range(12):
        e(f"v_cvt_pk_bf16_f32 v{RAW+12+p}, v{XV+2*p}, v{XV+2*p+1}")
    if layer == 0:
        for it in range(3):
            e(f"ds_write_b128 v4, {v(RAW+12+4*it,4)} offset:{ST_X-131072+4096*it}", tag="w")
    else:
        e(f"s_add_u32 {T[2]}, {T[1]}, {X3}")
        for it in range(3):
            e(f"buffer_store_dwordx4 {v(RAW+12+4*it,4)}, v{10+it}, {WS}, {T[2]} offen sc1", tag="x3st")
    cnt_off(T[0], sG, 16 * layer)
    rstamp(f"r_st{layer}")
    e.wait(vm="st")
    rstamp(f"r_dr{layer}")
    e.raw("s_barrier")
    signal(T[0], WSP)
    e(f"v_mov_b32 v7, {T[0]}")
    bg_flush()
    prefill(take(8))
    Pre.done = 0

class Pre: done = 0
def take(n):
    n = min(n, 8 - Pre.done); r = range(Pre.done, Pre.done + n); Pre.done += n
    return r
def r_prefill(n, every):
    Bg.n = 0; Bg.every = every
    for sg in take(n): Bg.q += dma_stage(sg)
    while Bg.q and isinstance(Bg.q[0], str): put(Bg.q.pop(0))

def r1():
    e.label("L_r1")
    ffn_setup()
    r_addr()
    e.wait_all()
    e(f"""v_add_u32 v4, 131072, v4
    v_lshlrev_b32 v2, 8, v9
    v_lshl_add_u32 v2, v8, 3, v2
    v_add_u32 v3, 4096, v2
    v_cmp_gt_u32 vcc, 32, v0
    v_cndmask_b32 v3, v15, v3, vcc
    s_lshr_b32 {T[3]}, {sRB}, 1
    s_mul_i32 {T[3]}, {T[3]}, 20480
    s_and_b32 {T[4]}, {sRB}, 1
    s_lshl_b32 {T[4]}, {T[4]}, 6
    s_add_u32 {T[3]}, {T[3]}, {T[4]}
    s_add_u32 {T[3]}, {T[3]}, {YB}""")
    if OPT["sent_f"]:
        e(f"s_add_u32 {T[2]}, {T[1]}, {F1}\nv_mov_b32 v124, -1\nv_mov_b32 v125, -1\nv_mov_b32 v126, -1\nv_mov_b32 v127, -1")
        for it in range(3):
            e(f"buffer_store_dwordx4 v[124:127], v{10+it}, {WS}, {T[2]} offen sc1", tag="clr")
    if OPT["pre_a1"]: r_prefill(OPT["pre_a1"], 5)
    for i in range(12):
        ev(f"v_accvgpr_read_b32 v{RAW+i}, a{240+i}")
    unpack24(XV, RAW)
    row_stats(XV, 0)
    normalise(NV, XV)
    bg_flush()
    e(f"""s_lshl_b32 {T[4]}, {sX}, 8
    s_add_u32 {T[4]}, {T[4]}, {CNT}
    v_and_b32 v7, 15, v0
    v_lshlrev_b32 v6, 12, v7
    v_subrev_u32 v122, {10*4096 - 2048}, v6
    v_cmp_gt_u32 vcc, 10, v7
    v_cndmask_b32 v7, v122, v6, vcc
    v_add_u32 v7, {T[4]}, v7""")
    wait_flag(7, WSP, 16)
    stamp("conv_flag")
    yl = []
    for it in range(3):
        for h in range(2):
            va, off = (2, 2048 * it + 128 * h) if it < 2 else (3, 128 * h)
            yl.append(f"buffer_load_dwordx2 {v(RAW+4*it+2*h,2)}, v{va}, {WS}, {T[3]} offen offset:{off} sc1")
    yl = "\n".join(yl)
    e(yl, tag="y")
    r_prefill(OPT["pre_r1"], OPT["pre_every"])
    for _ in range(min(OPT["pre_now"], len(Bg.q))): put(Bg.q.pop(0))
    e.wait(vm="y")
    if OPT["sent_y"]: sentinel_loop(yl, RAW, 123)
    rstamp("y_arr")
    unpack24(YV, RAW)
    for p in range(12):
        ev(f"v_pk_fma_f32 {v(XV+2*p,2)}, {v(NV+2*p,2)}, {v(YV+2*p,2)}, {v(XV+2*p,2)}")
    for it in range(3):
        e(f"ds_write_b128 v4, {v(RAW+4*it,4)} offset:{ST_Y-131072+4096*it}", tag="w")
    r_finish(0)
    stamp("r1_done")

def r2_pre():
    r_addr()
    e("v_add_u32 v4, 131072, v4")
    for it in range(3):
        e(f"ds_read_b128 {v(RAW+4*it,4)}, v4 offset:{ST_X-131072+4096*it}", tag="x")
    for it in range(3):
        e(f"ds_read_b128 {v(RAW+12+4*it,4)}, v4 offset:{ST_Y-131072+4096*it}", tag="x")
    e.wait(lg="x")
    unpack24(XV, RAW)
    unpack24(YV, RAW + 12)
    e(f"s_add_u32 {T[2]}, {T[1]}, {F1}")

def r2():
    wait_flag(7, WSP, 8)
    stamp("f_flag")
    e(f"s_mov_b32 s96, {f32(INVA2)}")
    fl = "\n".join(f"buffer_load_dwordx4 {v(RAW+4*it,4)}, v{10+it}, {WS}, {T[2]} offen sc1" for it in range(3))
    e(fl, tag="f")
    r_prefill(OPT["pre_r2"], OPT["pre_every"])
    for _ in range(min(OPT["pre_now"], len(Bg.q))): put(Bg.q.pop(0))
    e.wait(vm="f")
    if OPT["sent_f"]: sentinel_loop(fl, RAW, 123)
    rstamp("f_arr")
    unpack24(NV, RAW)
    for p in range(12):
        ev(f"v_pk_fma_f32 {v(XV+2*p,2)}, {v(NV+2*p,2)}, s[96:97], {v(XV+2*p,2)} op_sel_hi:[1,0,1]")
    row_stats(XV, 0)
    normalise(NV, XV)
    for p in range(12):
        ev(f"v_pk_fma_f32 {v(XV+2*p,2)}, {v(NV+2*p,2)}, {v(YV+2*p,2)}, {v(XV+2*p,2)}")
    r_finish(1)
    stamp("r2_done")

XR = 16; ACC = (176, 208); WB0 = 220; NWB = 9; PD = OPT["pd"]; NRES = 11

def dma_stage(sg):
    out = [f"s_add_u32 {sWO}, {sWB}, {sg*16384}", f"s_add_u32 m0, {sM0}, {(sg & 7)*16384}"]
    out += [(f"buffer_load_dwordx4 v1, {WS}, {sWO} offen offset:{1024*d} sc1 lds", f"dma{sg}") for d in range(4)]
    return out

def put(item):
    if isinstance(item, tuple): e(item[0], tag=item[1])
    elif callable(item): item()
    else: e(item)

def prefill(stages):
    for sg in stages:
        for it in dma_stage(sg): put(it)

def ffn_setup():
    e(f"""s_mul_i32 {sWB}, {sJT}, {WT}
    s_lshl_b32 {sM0}, {sWV}, 12
    s_add_u32 {sWB}, {sWB}, {sM0}
    s_add_u32 {sWB}, {sWB}, {WGU}
    s_mul_i32 {sWD}, {sMI}, {WT}
    s_mul_i32 {T[0]}, {sWV}, 71680
    s_add_u32 {sWD}, {sWD}, {T[0]}
    s_add_u32 {sWD}, {sWD}, {WDP}""")

def geglu(g, u, n, outq):
    L = []
    if OPT["x_nofill"]: return L
    for z in range(n):
        L += [f"v_fma_f32 v{8+(z&3)}, v{g+z}, v{g+z}, v4", f"v_mul_f32 v{u+z}, v{g+z}, v{u+z}",
              f"v_mul_f32_e64 v{g+z}, -v{g+z}, v{8+(z&3)}", f"v_exp_f32 v{g+z}, v{g+z}", f"v_add_f32 v{g+z}, 1.0, v{g+z}",
              f"v_rcp_f32 v{g+z}, v{g+z}", f"v_mul_f32 v{u+z}, v{u+z}, v{g+z}"]
        if z & 1: L.append(f"v_cvt_pk_bf16_f32 v{outq+(z>>1)}, v{u+z-1}, v{u+z}")
    return L

def text_of(item): return item[0] if isinstance(item, tuple) else item
def slots(item):
    t = text_of(item)
    if callable(t): return 9
    return 2 if t.startswith(("v_exp", "v_rcp")) else 1
def is_mem(item):
    t = text_of(item)
    return not callable(t) and t.startswith(("buffer_", "global_", "ds_"))

class Sched:
    def __init__(self):
        self.side = []; self.fill = []; self.seq = 0; self.over = 0; self.hook = None
    def at(self, slot, items):
        for it in items:
            self.seq += 1; self.side.append((slot, self.seq, it))
        self.side.sort(key=lambda x: x[:2])
    def add(self, slot, items):
        for it in items: self.fill.append((slot, it, Ins(text_of(it))))
    def pending(self, tag): return any(isinstance(it, tuple) and it[1] == tag for _, it, _ in self.fill)
    def gap(self, n, used, extra=0):
        room = 2 + extra - used; valu = False; m0 = False
        while self.side and self.side[0][0] <= n:
            slot, _, it = self.side[0]
            late = n - slot >= OPT["slack"]
            dma = is_mem(it) and text_of(it).endswith("lds")
            if not late and (slots(it) > room or (dma and m0)) and slots(it) < 9: break
            self.side.pop(0); put(it); room -= slots(it)
            m0 = not callable(it) and " m0," in text_of(it)
        k = 0
        while room > 0 and k < min(len(self.fill), 20):
            slot, it, ins = self.fill[k]
            ok = slot <= n and slots(it) <= room and not (is_mem(it) and valu)
            for _, _, o in self.fill[:k]:
                if (o.dst & (ins.src | ins.dst)) or (o.src & ins.dst) or (o.kind in ("vmem", "ds") and ins.kind in ("vmem", "ds", "salu")) or (o.kind == "salu"):
                    ok = False; break
            if ok and ins.op.startswith("v_permlane") and valu: ok = False
            if ok:
                self.fill.pop(k); put(it); room -= slots(it); valu = valu or ins.kind == "valu"
                if self.hook: self.hook(it, n)
                if ins.op.startswith(("v_exp", "v_rcp")): break
                k = 0
            else:
                k += 1
        if room < 0: self.over -= room

def check_or_spin(vt, vaddr, target):
    def fn():
        L = e.uid("rdy")
        e.wait(vm=f"poll{vt}")
        keep = list(e.vm)
        e.raw(f"v_cmp_gt_u32 vcc, {target}, v{vt}\ns_cbranch_vccz {L}")
        spin(vaddr, WSP, target, vt)
        e.raw(f"{L}:")
        e.vm = keep
    return fn

HF = 16
WNQ = list(range(224, 240, 4)) + list(range(160, 176, 4)) + list(range(176, 204, 4))
def acc2(tau, ri): return 80 + 4 * (ri * 5 + tau)
def wdreg(fr): return a(4 * fr, 4) if fr < 5 * NRES else v(WNQ[fr - 5 * NRES], 4)
sX0, sX1, sHC, sWDO, sTMP, sHT = T[10], T[11], T[12], T[13], T[14], T[15]
sHS1, sWNO = T[16], T[17]

def ffn(layer):
    H = HB[layer]
    e(f"""v_add_u32 v2, 0x10000, v1
    v_mov_b32 v4, {f32(KAPPA)}
    v_bfe_u32 v8, v0, 4, 1
    v_mul_u32_u24 v3, 57344, v8
    v_lshrrev_b32 v8, 5, v0
    v_lshl_add_u32 v3, v8, 8, v3
    v_and_b32 v8, 15, v0
    v_lshl_add_u32 v3, v8, 4, v3
    s_lshl_b32 {T[0]}, {sG}, 3
    s_lshl_b32 {T[1]}, {sWV}, 1
    s_add_u32 {T[1]}, {T[1]}, {T[0]}
    s_mul_i32 {sX0}, {T[1]}, 20480
    s_add_u32 {sX0}, {sX0}, {XN[layer]}
    s_add_u32 {sX1}, {sX0}, 20480
    s_mul_i32 {T[1]}, {T[1]}, 57344
    s_lshr_b32 {T[2]}, {sJT}, 2
    s_mul_i32 {T[2]}, {T[2]}, 14336
    s_add_u32 {T[1]}, {T[1]}, {T[2]}
    s_add_u32 {T[1]}, {T[1]}, {H}
    s_and_b32 {T[2]}, {sJT}, 3
    s_lshl_b32 {T[3]}, {T[2]}, 10
    s_add_u32 {sHS}, {T[1]}, {T[3]}
    s_add_u32 {sHS1}, {sHS}, 57344
    s_lshl_b32 {T[3]}, {T[2]}, 9
    s_add_u32 {sHS3}, {T[1]}, {T[3]}
    s_add_u32 {sHS3}, {sHS3}, 12288
    s_lshl_b32 {T[1]}, {sHF}, 2
    s_add_u32 {T[0]}, {T[0]}, {T[1]}
    s_mul_i32 {T[2]}, {sWV}, 14336
    s_add_u32 {T[2]}, {T[2]}, {H}""")
    for ri in range(4):
        e(f"""s_add_u32 {T[1]}, {sWV}, {ri}
        s_and_b32 {T[1]}, {T[1]}, 3
        s_add_u32 {T[1]}, {T[1]}, {T[0]}
        s_mul_i32 {T[1]}, {T[1]}, 57344
        s_add_u32 {sH[ri]}, {T[1]}, {T[2]}""")
    e(f"""s_and_b32 {T[1]}, {sMI}, 1
    s_lshl_b32 {T[1]}, {T[1]}, 1
    s_add_u32 {T[1]}, {T[1]}, {T[0]}
    s_lshr_b32 {T[2]}, {sWV}, 1
    s_add_u32 {T[1]}, {T[1]}, {T[2]}
    s_mul_i32 {sHT}, {T[1]}, 57344
    s_lshr_b32 {T[1]}, {sMI}, 1
    s_mul_i32 {T[1]}, {T[1]}, 14336
    s_add_u32 {sHT}, {sHT}, {T[1]}
    s_add_u32 {sHT}, {sHT}, {H}
    s_and_b32 {T[1]}, {sWV}, 1
    s_lshl_b32 {T[2]}, {T[1]}, 11
    v_lshlrev_b32 v250, 7, v8
    v_and_b32 v251, 0x380, v250
    v_add_u32 v250, {T[2]}, v250
    s_lshl_b32 {T[2]}, {T[1]}, 10
    v_add_u32 v251, {T[2]}, v251
    s_mul_i32 {sHC}, {sG}, 3""")
    cnt_off(sHC, sHC, 64 + 48 * layer)
    e(f"v_mov_b32 v244, {sHC}\nv_add_u32 v245, 64, v244\nv_add_u32 v246, 256, v244\nv_add_u32 v248, 512, v244")
    wait_flag(7, WSP, 16)
    stamp(f"xn_flag{layer}")

    def xload(i):
        s_, rt = i >> 1, i & 1
        L = [(f"buffer_load_dwordx4 {v(XR+4*i,4)}, v1, {WS}, {(sX0, sX1)[rt]} offen offset:{1024*(s_&3)} sc1", f"x{i}")]
        if s_ & 3 == 3 and s_ < 19: L.append(f"s_add_u32 {(sX0, sX1)[rt]}, {(sX0, sX1)[rt]}, 4096")
        return L
    def wread(fr):
        addr = (fr & 127) * 1024
        e(f"ds_read_b128 {a(WB0+4*(fr%NWB),4)}, v{1 if addr < 65536 else 2} offset:{addr & 65535}", tag=f"w{fr}")
    def hload(ks, ri):
        return (f"buffer_load_dwordx4 {v(HF+16*(ks&3)+4*ri,4)}, v1, {WS}, {sH[ri]} offen offset:{1024*(ks&3)} sc1", f"h{ks}_{ri}")
    def wdload(fr):
        L = []
        so = sWDO if fr < 5 * NRES else sWNO
        if fr & 3 == 0 or fr == 5 * NRES: L.append(f"s_add_u32 {so}, {sWD}, {(fr & ~3)*1024}")
        L.append((f"buffer_load_dwordx4 {wdreg(fr)}, v1, {WS}, {so} offen offset:{1024*(fr&3)} sc1", f"wd{fr}"))
        return L
    def htouch(p):
        if not OPT["htouch"]: return []
        return [f"s_add_u32 {sTMP}, {sHT}, {4096*p}", (f"buffer_load_dword v249, v{250 if p < 3 else 251}, {WS}, {sTMP} offen sc1", "touch")]
    def sig_h(pi):
        e(f"s_add_u32 {sTMP}, {sHC}, {(0, 64, 256, 512)[pi]}")
        signal(sTMP, WSP)

    G2 = 560
    S = Sched(); at, add = S.at, S.add
    for p in range(3):
        s0 = 160 * (p + 1) + 4
        for rt in range(2):
            base = ACC[p & 1] + 16 * rt; q = (12, 240)[rt]
            add(s0, geglu(base, base + 8, 8, q))
            add(s0, [(f"buffer_store_dwordx4 {v(q,4)}, v1, {WS}, {(sHS, sHS1)[rt]} offen sc1", f"hs{p}")])
        if p < 2: add(s0, [f"s_add_u32 {sHS}, {sHS}, 4096", f"s_add_u32 {sHS1}, {sHS1}, 4096"])
    add(G2 + 4, geglu(ACC[1], ACC[1] + 4, 4, 12) + geglu(ACC[1] + 8, ACC[1] + 12, 4, 14))
    add(G2 + 4, ["v_permlane16_swap_b32 v12, v14", "v_permlane16_swap_b32 v13, v15",
                 (f"buffer_store_dwordx4 v[12:15], v3, {WS}, {sHS3} offen sc1", "hs3")])
    add(G2 + 120, f"""v_lshrrev_b32 v8, 4, v0
    v_and_b32 v9, 15, v0
    v_lshrrev_b32 v11, 1, v8
    v_lshlrev_b32 v11, 8, v11
    v_lshl_add_u32 v11, v9, 4, v11
    v_add_u32 v11, 2048, v11
    v_mov_b32 v15, {BIG}
    v_and_b32 v12, 16, v0
    v_cmp_eq_u32 s[98:99], 0, v12
    s_lshl_b32 {T[8]}, {sG}, 3
    s_lshl_b32 {T[9]}, {sHF}, 2
    s_add_u32 {T[8]}, {T[8]}, {T[9]}
    s_add_u32 {T[8]}, {T[8]}, {sWV}
    v_cndmask_b32 v11, v15, v11, s[98:99]
    s_mul_i32 {T[7]}, {T[8]}, {16*1280}
    s_mul_i32 {T[8]}, {T[8]}, 20480
    s_mul_i32 {T[9]}, {sMI}, 2560
    s_add_u32 {T[8]}, {T[8]}, {T[9]}
    s_add_u32 {T[8]}, {T[8]}, {F1 if layer == 0 else X3}
    s_mul_i32 {T[0]}, {sWV}, 15360
    v_add_u32 v204, {T[0]}, v2""".replace("    ", "").split("\n"))
    for ri in range(1, 4):
        add(G2 + 120, [f"s_add_u32 {T[0]}, {sWV}, {ri}", f"s_and_b32 {T[0]}, {T[0]}, 3", f"s_mul_i32 {T[0]}, {T[0]}, 15360", f"v_add_u32 v{204+ri}, {T[0]}, v2"])
    if layer == 1:
        add(G2 + 120, f"""s_mul_i32 {T[9]}, {sMI}, 160
        s_add_u32 {T[7]}, {T[7]}, {T[9]}
        v_mul_u32_u24 v10, 1280, v9
        v_lshrrev_b32 v13, 1, v8
        v_lshl_add_u32 v13, v13, 4, v10
        v_lshl_add_u32 v10, v8, 4, v10
        v_cndmask_b32 v13, v15, v13, s[98:99]
        s_mov_b32 s12, s{P_OUT}
        s_mov_b32 s13, s{P_OUT+1}
        s_mov_b32 s14, {ACT}
        s_mov_b32 s15, 0x20000
        s_mov_b32 s96, {f32(INVA2)}""".replace("    ", "").split("\n"))
        add(G2 + 224, [(f"buffer_load_dwordx4 v[48:51], v1, {WS}, {T[8]} offen sc1", "x3"),
                       (f"buffer_load_dwordx4 v[52:55], v1, {WS}, {T[8]} offen offset:1024 sc1", "x3"),
                       (f"buffer_load_dwordx4 v[56:59], v11, {WS}, {T[8]} offen sc1", "x3")])
    else:
        add(G2 + 120, [f"s_lshl_b32 {T[7]}, {sG}, 1", f"s_add_u32 {T[7]}, {T[7]}, {sHF}", f"s_lshl_b32 {T[7]}, {T[7]}, 8",
                       f"s_add_u32 {T[7]}, {T[7]}, {CNT + 32 * 256 + 128}"])
    order = []
    for ks in range(14 - 2 * OPT["redo"]):
        for ri in ((0, 1, 2, 3) if ks < 13 else (1, 2, 3, 0)):
            for tau in range(5): order.append((ks, ri, tau))
    if OPT["redo"]:
        order += [(ks, ri, tau) for ri in (1, 2, 3, 0) for ks in (12, 13) for tau in range(5)]
    for ri in range(1, 4):
        for tau in range(5):
            add(G2 + order.index((13, ri, tau)) + 6, [(f"ds_write_b128 v{204+ri}, {v(acc2(tau,ri),4)} offset:{(ri-1)*5120+1024*tau}", "rw")])
    if layer == 0:
        for k, sg in enumerate(take(OPT["pre_g2"])):
            st = dma_stage(sg); t0 = G2 + OPT["pre_g2_at"] + 12 * k
            at(t0, st[:2])
            for d in range(4): at(t0 + 3 * d + 1, [st[2 + d]])
    for i in range(OPT["xup"]):
        for it in xload(i): put(it)
    for i in range(OPT["xup"], 40):
        at(4 * (i - OPT["xup"]) + 1, xload(i))
    if layer == 0 and not OPT["x_nowd"]:
        n0 = OPT["wd_n"] if OPT["wd_early"] else 0
        n = 5 * NRES - n0
        for fr in range(n):
            at(OPT["wd0"] + (fr * (OPT["wd1"] - OPT["wd0"])) // n, wdload(n0 + fr))
    for k, fr in enumerate(range(5 * NRES, 70)):
        at(485 + 16 * k if k < 4 else G2 + OPT["wn0"] + OPT["wn_gap"] * (k - 4) + 2, wdload(fr))
    chk = [OPT["chk0"], OPT["chk1"], OPT["chk2"], OPT["chk3"]]
    for p, va in enumerate((244, 245, 246, 248)):
        if OPT["x_nochk"]: continue
        at(chk[p] - OPT["poll_lead"], [(f"global_load_dword v247, v{va}, {WSP} sc1", "poll247")])
        at(chk[p], [check_or_spin(247, va, 16)] + htouch(p))
    for ks in range(4):
        for ri in range(4):
            at(489 + 16 * ks + 2 * ri, [hload(ks, ri)])
    for ks in range(4, 14):
        t0 = G2 + 20 * (ks - (OPT["hd1"] if ks < 8 else OPT["hd"]))
        assert (t0 > chk[ks >> 2] or OPT["x_nochk"]) and OPT["hd"] <= 3
        if ks & 3 == 0: at(t0, [f"s_add_u32 {sH[ri]}, {sH[ri]}, 4096" for ri in range(4)])
        for k, ri in enumerate((1, 2, 3, 0) if OPT["redo"] and ks >= 12 else range(4)):
            if OPT["redo"] and ks == 13: t0 = G2 + 20 * (12 - OPT["hd"]) + 2
            if not OPT["x_nohload"]: at(t0 + 4 * k + 2, [hload(ks, ri)])
    sig_after = {"hs0": 0, "hs1": 1, "hs2": 2, "hs3": 3}
    issued = {}
    def hook(it, slot):
        if isinstance(it, tuple) and it[1] in sig_after and not S.pending(it[1]): issued[it[1]] = slot
    S.hook = hook
    dma_t = 4 * (40 - OPT["xup"]) + 3
    for n in range(-2 * PD, G2 + 280):
        ready = [t for t in sig_after if t in issued and n - issued[t] >= OPT["lag"]]
        used = 0
        if n < G2 and n % 2 == 0:
            nxt = n // 2 + PD
            if nxt < 280 and nxt % 32 == 0:
                sg = nxt // 16
                e.wait(vm=[f"dma{sg}", f"dma{sg + 1}"] + ready)
                if not OPT["x_nobar"] or ready: e.raw("s_barrier")
                for t in ready:
                    assert n < chk[sig_after[t]] - 20, (t, n)
                    sig_h(sig_after.pop(t))
                used += 2
                for k in (sg + 4, sg + 5):
                    if 8 <= k <= 17 and not OPT["x_nodma"]:
                        st = dma_stage(k)
                        dma_t = max(dma_t, n + 1)
                        at(dma_t, st[:2])
                        for d in range(4): at(dma_t + OPT["dma_gap"] * d + 2, [st[2 + d]])
                        dma_t += 4 * OPT["dma_gap"]
            if nxt < 280: wread(nxt); used += 1
        elif n >= OPT["pub_from"] and ready and OPT["x_nopub"]:
            for t in ready: sig_after.pop(t)
        elif n >= OPT["pub_from"] and ready:
            e.wait(vm=ready)
            e.raw("s_barrier")
            for t in ready:
                assert n < chk[sig_after[t]], (t, n)
                print(f"layer {layer}: {t} issued at {issued[t]} published at {n}", file=sys.stderr)
                sig_h(sig_after.pop(t))
            used += 2
        if n < 0: continue
        if n < G2:
            fr, rt = n >> 1, n & 1
            p = min(fr // 80, 3); fi = fr - 80 * p
            if p < 3: s_, acc = fi >> 2, ACC[p & 1] + 16 * rt + 8 * (fi & 1) + 4 * ((fi >> 1) & 1)
            else: s_, acc = fi >> 1, ACC[1] + 8 * rt + 4 * (fi & 1)
            if fi == 0 and p >= 2: assert f"hs{p-2}" in issued
            wv_, wl_ = [f"x{2*s_}", f"x{2*s_+1}"], [f"w{k}" for k in range(fr, fr - fr % OPT["lgw"] + OPT["lgw"])]
            mf = f"v_mfma_f32_16x16x32_bf16 {v(acc,4)}, {a(WB0+4*(fr%NWB),4)}, {v(XR+8*s_+4*rt,4)}, {v(acc,4) if s_ else 0}"
        else:
            ks, ri, tau = order[n - G2]
            fr = 5 * ks + tau
            if fr >= 5 * NRES: assert "hs3" in issued
            wv_, wl_ = [f"h{ks}_{k}" for k in (range(4) if OPT["ksw"] else [ri])] + [f"wd{k}" for k in range(5 * ks, 5 * ks + 5)], []
            acc = v(acc2(tau, ri), 4)
            mf = f"v_mfma_f32_16x16x32_bf16 {acc}, {wdreg(fr)}, {v(HF+16*(ks&3)+4*ri,4)}, {acc if ks else 0}"
        if e.would_wait(wv_, wl_): used += 1
        extra = OPT["x3"] if 484 <= n < G2 and n & 1 else OPT["x2"] if G2 <= n < G2 + 60 and n & 1 else 0
        S.gap(n, used, extra)
        if OPT["ksprof"] == layer + 1 and n >= G2 and (n - G2) % 20 == 0: lstamp(f"ks{(n-G2)//20}")
        if OPT["ksprof"] == layer + 1 and n == G2 + 268: lstamp(None)
        if n == G2 and not OPT["ksprof"]: stamp(f"g1_done{layer}")
        if OPT["passprof"] == 1 and n in (1, 160, 320, 480): stamp(f"L{layer}_at{n}")
        if OPT["passprof"] == 1 and n - G2 in (80, 160): stamp(f"L{layer}_g2at{n-G2}")
        e.wait(vm=wv_, lg=wl_)
        e(mf)
    while S.fill: put(S.fill.pop(0)[1])
    assert not S.side and not sig_after, (S.side, sig_after)
    print(f"layer {layer}: {S.over} issue slots over budget", file=sys.stderr)
    stamp(f"g2_mfma{layer}")
    e.wait_all(vm=False)
    e.raw("s_barrier")
    RD = 160
    for k in range(11):
        e(f"ds_read_b128 {v(RD+4*k,4)}, v204 offset:{1024*k}", tag=f"r{k}")
    for k in range(11, 15):
        e(f"ds_read_b128 {v(RD+4*k+4,4)}, v204 offset:{1024*k}", tag=f"r{k}")
    if layer == 1:
        e.wait(vm="x3")
        for i in range(24):
            e(f"v_and_b32 v{16+i}, {sMASK}, v{48+(i>>1)}" if i & 1 else f"v_lshlrev_b32 v{16+i}, 16, v{48+(i>>1)}")
    for k in range(15):
        e.wait(lg=f"r{k}")
        d = acc2(k % 5, 0); r = RD + 4 * k + (4 if k >= 11 else 0)
        for h in range(2):
            e(f"v_pk_add_f32 {v(d+2*h,2)}, {v(d+2*h,2)}, {v(r+2*h,2)}")
    d = acc2(4, 0)
    if layer == 0:
        for g in range(2):
            for i in range(4):
                dd = acc2(2 * g + (i >> 1), 0) + 2 * (i & 1)
                e(f"v_cvt_pk_bf16_f32 v{16+4*g+i}, v{dd}, v{dd+1}")
            e(f"buffer_store_dwordx4 {v(16+4*g,4)}, v1, {WS}, {T[8]} offen offset:{1024*g} sc1", tag="st")
        e(f"""v_cvt_pk_bf16_f32 v24, v{d}, v{d+1}
        v_cvt_pk_bf16_f32 v25, v{d+2}, v{d+3}
        v_mov_b32 v26, v24
        v_mov_b32 v27, v25
        v_permlane16_swap_b32 v24, v26
        v_permlane16_swap_b32 v25, v27
        buffer_store_dwordx4 v[24:27], v11, {WS}, {T[8]} offen sc1""", tag="st")
        if not OPT["sent_f"]:
            r2_pre()
            e.wait(vm="st")
        e.raw("s_barrier")
        signal(T[7], WSP)
        e(f"v_mov_b32 v7, {T[7]}")
        if OPT["sent_f"]:
            r_prefill(OPT["pre_a2"], 6)
            r2_pre()
            bg_flush()
        else:
            prefill(take(OPT["pre_a2"]))
    else:
        for g in range(2):
            for i in range(4):
                dd = acc2(2 * g + (i >> 1), 0) + 2 * (i & 1)
                e(f"v_pk_fma_f32 {v(dd,2)}, {v(dd,2)}, s[96:97], {v(16+8*g+2*i,2)} op_sel_hi:[1,0,1]")
            for i in range(4):
                dd = acc2(2 * g + (i >> 1), 0) + 2 * (i & 1)
                e(f"v_cvt_pk_bf16_f32 v{60+4*g+i}, v{dd}, v{dd+1}")
            e(f"buffer_store_dwordx4 {v(60+4*g,4)}, v10, {SA}, {T[7]} offen offset:{64*g}{OUTP}", tag="st")
        for i in range(4):
            e(f"v_mov_b32 v{44+i}, v{d+i}")
        for i in range(4):
            e(f"v_permlane16_swap_b32 v{d+i}, v{44+i}")
        for i in range(4):
            dd = d + 2 * i if i < 2 else 44 + 2 * (i - 2)
            e(f"v_pk_fma_f32 {v(dd,2)}, {v(dd,2)}, s[96:97], {v(32+2*i,2)} op_sel_hi:[1,0,1]")
        e(f"""v_cvt_pk_bf16_f32 v68, v{d}, v{d+1}
        v_cvt_pk_bf16_f32 v69, v{d+2}, v{d+3}
        v_cvt_pk_bf16_f32 v70, v44, v45
        v_cvt_pk_bf16_f32 v71, v46, v47
        buffer_store_dwordx4 v[68:71], v13, {SA}, {T[7]} offen offset:128{OUTP}""", tag="st")
        L = e.uid("epo")
        e.raw(f"""s_or_b32 {T[0]}, s2, {sWV}
        s_cmp_lg_u32 {T[0]}, 0
        s_cbranch_scc1 {L}
        s_mov_b64 exec, 1
        v_mov_b32 v6, {EPO}
        v_mov_b32 v7, {sTAG}
        global_store_dword v6, v7, {WSP} sc1
        s_mov_b64 exec, -1
        {L}:""")
    stamp(f"g2_done{layer}")

def finish():
    if OPT["prof"]:
        e.wait_all()
        stamp("end")
        e(f"""s_lshl_b32 {T[0]}, s2, 2
        s_add_u32 {T[0]}, {T[0]}, {sWV}
        s_lshl_b32 {T[0]}, {T[0]}, 8
        s_add_u32 {T[0]}, {T[0]}, {PROF}
        v_lshlrev_b32 v1, 2, v0
        buffer_store_dword v{VST}, v1, {WS}, {T[0]} offen""")
        if OPT["dbgout"]:
            e(f"""s_cmp_lg_u32 s2, {OPT["dbgout"] - 1}
            s_cbranch_scc1 L_exit
            s_cmp_lg_u32 {sWV}, 0
            s_cbranch_scc1 L_exit
            v_readlane_b32 {T[1]}, v{VST}, 0
            s_mov_b64 exec, 0xffff
            v_subrev_u32 v6, {T[1]}, v{VST}
            global_store_dword v1, v6, {DBG}""")
    e.label("L_exit")
    e("s_endpgm")

entry()
p0()
if OPT["stubs"]: e.raw("s_branch L_conv\n.p2align 12\nL_conv:")
conv()
e("s_branch L_r1")
e.vm = []; e.lg = []
shuffle()
r1()
ffn(0)
r2()
ffn(1)
finish()
nops = e.pad()

def insert_stubs():
    import subprocess, re, tempfile, os
    extra = "".join(f"L_page{p}:\n" for p in range(1, NPAGES))
    src = f'.amdgcn_target "amdgcn-amd-amdhsa--gfx950"\n.text\n{NAME}:\n' + e.text() + extra
    d = tempfile.mkdtemp()
    open(d + "/a.s", "w").write(src)
    subprocess.run(["clang", "-x", "assembler", "-target", "amdgcn-amd-amdhsa", "-mcpu=gfx950", "-c", d + "/a.s", "-o", d + "/a.o"], check=True)
    dis = subprocess.run(["llvm-objdump", "-d", "--mcpu=gfx950", d + "/a.o"], capture_output=True, text=True).stdout
    dis = dis[dis.index("<L_conv>:"):]
    sizes = [4 * len(m.group(1).split()) for m in re.finditer(r"// [0-9A-F]+: ([0-9A-F ]+)", dis)]
    start = next(n for n, i in enumerate(e.ins) if i.text == "L_conv:")
    real = [i for i in e.ins[start:] if i.states]
    assert len(sizes) == len(real), (len(sizes), len(real))
    out = e.ins[:start]; off = 0; page = 1; k = 0; prev = None
    for i in e.ins[start:]:
        if i.states:
            if off >= 4096 * page and page < NPAGES and not (prev and prev.op == "s_getpc_b64"):
                out += [Ins(f"s_branch L_past{page}"), Ins(f"L_page{page}:"), Ins("s_setpc_b64 s[98:99]"), Ins(f"L_past{page}:")]
                off += 8; page += 1
            off += sizes[k]; k += 1; prev = i
        out.append(i)
    for p in range(page, NPAGES):
        out += [Ins(f"L_page{p}:"), Ins("s_setpc_b64 s[98:99]")]
    e.ins = out
    print(f"{off} bytes of code, {page - 1} page stubs", file=sys.stderr)
if OPT["stubs"]: insert_stubs()

hdr = open("interleave_layers__ssm_conv_h3__glu_gated_geglu__prompt.s.ref").read().split("; Override launch")[0]
out = hdr + f"""; Single persistent launch: 256 workgroups, one per CU, phases chained by counters in d_debug / d_ws.
; @launch grid=(256,1,1) block=(256,1,1) lds={LDS_BYTES}
.amdgcn_target "amdgcn-amd-amdhsa--gfx950"
.text
.globl {NAME}
.p2align 8
.type {NAME},@function
{NAME}:
""" + e.text() + f""".section .rodata,"a"
.p2align 6
.amdhsa_kernel {NAME}
  .amdhsa_next_free_vgpr 512
  .amdhsa_next_free_sgpr 102
  .amdhsa_accum_offset 256
  .amdhsa_group_segment_fixed_size 0
  .amdhsa_kernarg_size 104
  .amdhsa_user_sgpr_count 2
  .amdhsa_user_sgpr_kernarg_segment_ptr 1
  .amdhsa_system_sgpr_workgroup_id_x 1
  .amdhsa_float_denorm_mode_32 3
.end_amdhsa_kernel
"""
open(sys.argv[1], "w").write(out)
import json
json.dump(dict(stamps=stamp_names, KVT=KVT, YB=YB, XN=XN, X3=X3, F1=F1, HB=HB, WGU=WGU, WDP=WDP, PROF=PROF, CNT=CNT), open(sys.argv[1] + ".json", "w"))
print(f"{len(e.ins)} lines, {nops} padded wait states", file=sys.stderr)
```

```python
import sys, math, struct
from emit import Emit, Ins

NAME = "interleave_layers__ssm_conv_h3__glu_gated_geglu__prompt_kernel"
OPT = dict(prof=0, nt_in=0, nt_w=0, stop=99, warm=2, shufwait=0, bud=7, bud3=12, bud2=12, lag=50, poll_lead=45, chk0=480, chk1=578, chk2=678, chk3=758, hd=2, wn0=10, wn_gap=15, x_nodma=0, x_nobar=0, x_nofill=0, passprof=0, ksprof=0, xup=10, wd0=10, wd1=600, htouch=0, dbgspin=0, pre_a1=0, pre_r1=4, pre_g2=0, pre_g2_at=238, pre_a2=3, pre_r2=1, pre_every=8, pre_now=4, bar2=1, dma_gap=7, pd=8, lgw=4, slack=3, x3=4, x2=2, pub_from=480, hd1=3, ksw=0, sig_q=2, wtouch=0, go=1, go_early=1, cx=1, stubs=1, redo=1, nap=0, hier=0, outpol=0, dbgout=0, sent_y=0, sent_f=0, pwave=0, x_nochk=0, x_nopub=0, x_nohload=0, x_nowd=0, wd_early=0, wd_chk=40, wd_gap=4, wd_n=55, xtouch=0)
for a in sys.argv[2:]:
    k, v = a.split("="); OPT[k] = int(v)

C1 = 2.0 * math.sqrt(2.0 / math.pi) * math.log2(math.e); C2 = C1 * 0.044715
ALPHA = C2 ** (1.0 / 3.0); KAPPA = C1 / ALPHA; INVA2 = 1.0 / (ALPHA * ALPHA)
ACT = 0x280000
CNT = 0; EPO = 0xA000; P0F = 0xA080; GOF = 0xA800; P0W = 0xB000; WDF = 0xD000; PROF = 0x10000
KVT = 0x100000; YB = KVT + ACT; XN = [YB + ACT, YB + 2 * ACT]; X3 = YB + 3 * ACT; F1 = YB + 4 * ACT
HB = [F1 + ACT, F1 + ACT + 0x700000]
WGU = HB[1] + 0x700000; WDP = WGU + 0x460000; WS_END = WDP + 0x230000
WT = 286720
RING = 0; ST_X = 131072; ST_Y = ST_X + 12288; RED = ST_Y + 12288
P0L = 0; F0 = 16384; FCH = 16640; FCP = 4160; U0 = F0 + 4 * FCH; UCH = 4640; YA = U0 + 4 * UCH; YCS = 4624
SHST = 20992
LDS_BYTES = 163840
SPIN_LIMIT = 400000
WS = "s[8:11]"; SA = "s[12:15]"; SB = "s[44:47]"; SC = "s[48:51]"
P_Q, P_K, P_V, P_SHK, P_SSM, P_D, P_WG, P_WU, P_WD, P_OUT, P_DBG, P_WS = 16, 18, 20, 22, 24, 26, 30, 32, 34, 36, 38, 40
sWV, sX, sSLOT, sG, sHF, sMI, sCI, sCGP, sMASK, sRB, sJT = "s52", "s53", "s54", "s55", "s56", "s57", "s58", "s59", "s60", "s61", "s62"
sDV = "s63"; sTAG = "s42"; sNTAG = "s43"
T = [f"s{i}" for i in range(64, 84)]
sSPIN = "s84"; sWB = "s85"; sWO = "s86"; sM0 = "s87"; sH = ["s88", "s89", "s90", "s91"]; sHS = "s92"; sHS3 = "s93"; sWD = "s94"
DBG = f"s[{P_DBG}:{P_DBG+1}]"; WSP = f"s[{P_WS}:{P_WS+1}]"
NT_IN = " nt" if OPT["nt_in"] else ""
NT_W = " nt" if OPT["nt_w"] else ""
BIG = "0x80000000"
OUTP = ("", " sc1", " nt", " sc0 sc1")[OPT["outpol"]]

e = Emit()
def v(i, n=1): return f"v{i}" if n == 1 else f"v[{i}:{i+n-1}]"
def a(i, n=1): return f"a{i}" if n == 1 else f"a[{i}:{i+n-1}]"
def f32(x): return "0x%08x" % struct.unpack("<I", struct.pack("<f", x))[0]

def srd(dst, ptr, nbytes, add=None):
    d = int(dst[2:dst.index(":")])
    if add is None:
        e(f"s_mov_b32 s{d}, s{ptr}\ns_mov_b32 s{d+1}, s{ptr+1}")
    else:
        e(f"s_add_u32 s{d}, s{ptr}, {add}\ns_addc_u32 s{d+1}, s{ptr+1}, 0")
    e(f"s_mov_b32 s{d+2}, {nbytes}\ns_mov_b32 s{d+3}, 0x20000")

VST = 5
stamp_names = []
def stamp(name):
    if not OPT["prof"]:
        return
    i = stamp_names.index(name) if name in stamp_names else len(stamp_names)
    if name not in stamp_names: stamp_names.append(name)
    e.raw("s_memrealtime s[4:5]\ns_memtime s[6:7]")
    e.wait_all(vm=False)
    e(f"v_writelane_b32 v{VST}, s4, {i}\nv_writelane_b32 v{VST}, s6, {32+i}")

light_prev = [None]
def lstamp(name):
    if light_prev[0] is not None:
        i, r = light_prev[0]
        e.raw(f"s_waitcnt lgkmcnt(0)\nv_writelane_b32 v{VST}, s{r}, {32+i}\nv_writelane_b32 v{VST}, 1, {i}")
        light_prev[0] = None
    if name:
        stamp_names.append(name); i = len(stamp_names) - 1
        e.raw("s_memtime s[6:7]"); light_prev[0] = (i, 6)

def rstamp(name):
    if OPT['passprof'] == 3: stamp(name)

def fstamp(name):
    if not OPT['passprof'] and not OPT['ksprof']: stamp(name)

spin_sites = []
def spin_report(vt):
    if not OPT["dbgspin"]:
        return
    site = len(spin_sites); spin_sites.append(site)
    L = e.uid("rep")
    e.raw(f"""s_cmp_lt_u32 {sSPIN}, 3000
    s_cbranch_scc1 {L}
    s_mov_b64 exec, 1
    v_mov_b32 v252, {128 + 4 * site}
    v_mov_b32 v253, 1
    global_atomic_add v252, v253, {DBG} sc1
    s_mov_b64 exec, -1
    s_waitcnt vmcnt(0)
    {L}:""")

def spin(vaddr, base, target, vt=6, nap=0):
    L = e.uid("spin"); D = e.uid("spun")
    e.raw(f"""s_mov_b32 {sSPIN}, 0
    {L}:
    global_load_dword v{vt}, v{vaddr}, {base} sc1
    {f"s_sleep {nap}" if nap else ""}
    s_add_u32 {sSPIN}, {sSPIN}, 1
    s_cmp_gt_u32 {sSPIN}, {SPIN_LIMIT}
    s_cbranch_scc1 {D}
    s_waitcnt vmcnt(0)
    v_cmp_gt_u32 vcc, {target}, v{vt}
    s_cbranch_vccnz {L}
    {D}:
    s_waitcnt vmcnt(0)""")
    spin_report(vt)

def tag_load():
    e(f"v_mov_b32 v255, {EPO}\nglobal_load_dword v255, v255, {WSP} sc1", tag="epo")

def tag_ready():
    e.wait(vm="epo")
    e(f"v_readfirstlane_b32 {sTAG}, v255")
    e.wait_all(vm=False)
    e(f"s_add_u32 {sTAG}, {sTAG}, 1\ns_not_b32 {sNTAG}, {sTAG}")

def tag_bad(r, n):
    e.raw(f"v_xor_b32 v{r}, {sTAG}, v{r}\nv_xor_b32 v{r+1}, {sNTAG}, v{r+1}\nv_or_b32 v{r}, v{r}, v{r+1}")
    for k in range(1, n):
        e.raw(f"v_xor_b32 v{r+2*k}, {sTAG}, v{r+2*k}\nv_xor_b32 v{r+2*k+1}, {sNTAG}, v{r+2*k+1}\nv_or3_b32 v{r}, v{r}, v{r+2*k}, v{r+2*k+1}")
    e.raw(f"v_cmp_ne_u32 vcc, 0, v{r}")

def spin_tag(loads, r, n):
    L = e.uid("spin"); D = e.uid("spun")
    e.raw(f"s_mov_b32 {sSPIN}, 0\n{L}:\n{loads}")
    e.raw(f"""s_add_u32 {sSPIN}, {sSPIN}, 1
    s_cmp_gt_u32 {sSPIN}, {SPIN_LIMIT}
    s_cbranch_scc1 {D}
    s_waitcnt vmcnt(0)""")
    tag_bad(r, n)
    e.raw(f"s_cbranch_vccnz {L}\n{D}:\ns_waitcnt vmcnt(0)")
    spin_report(r)

def all_loads(va, vb, r):
    return f"global_load_dwordx4 v[{r}:{r+3}], v{va}, {WSP} sc1\nglobal_load_dwordx4 v[{r+4}:{r+7}], v{vb}, {WSP} sc1"

def all_addr(va, vb):
    e(f"v_add_u32 v{va}, {P0F}, v1\nv_and_b32 v{vb}, 0xf0, v1\nv_add_u32 v{vb}, {P0F+1024}, v{vb}")

NPAGES = 12
def page_calls(waves):
    if not OPT["stubs"]: return
    D = e.uid("pg")
    for k, w in enumerate(waves):
        L = e.uid("pgw")
        e.raw(f"s_cmp_lg_u32 {sWV}, {w}\ns_cbranch_scc1 {L}")
        for p in range(1 + k, NPAGES, len(waves)):
            C = e.uid("pc")
            e.raw(f"""s_getpc_b64 s[96:97]
            {C}:
            s_add_u32 s96, s96, L_page{p}-{C}
            s_addc_u32 s97, s97, (L_page{p}-{C})>>32
            s_swappc_b64 s[98:99], s[96:97]""")
        e.raw(f"s_branch {D}\n{L}:")
    e.raw(f"{D}:")

def wave0(fn):
    L = e.uid("w0")
    e.raw(f"s_cmp_lg_u32 {sWV}, 0\ns_cbranch_scc1 {L}")
    fn()
    e.raw(f"{L}:")

def wait_flag(vaddr, base, target, nap=0):
    wave0(lambda: spin(vaddr, base, target, nap=nap))
    e.raw("s_barrier")

def signal(soff, base, vt=6):
    def fn():
        e.raw(f"""s_mov_b64 exec, 1
        v_mov_b32 v{vt}, {soff}
        v_mov_b32 v{vt+1}, 1
        global_atomic_add v{vt}, v{vt+1}, {base} sc1
        s_mov_b64 exec, -1""")
    wave0(fn)

def cnt_off(dst, idx_expr_s, const):
    e(f"s_lshl_b32 {dst}, {idx_expr_s}, 8\ns_add_u32 {dst}, {dst}, {CNT + const * 256 + 128}")

def entry():
    e(f"""s_cmp_ge_u32 s2, 256
    s_cbranch_scc1 L_exit
    s_load_dwordx16 s[16:31], s[0:1], 0
    s_load_dwordx8 s[32:39], s[0:1], 64
    s_load_dwordx2 s[40:41], s[0:1], 96""")
    if OPT["warm"] == 2: warm_code()
    e(f"""v_lshrrev_b32 v2, 6, v0
    v_and_b32 v0, 63, v0
    v_readfirstlane_b32 {sWV}, v2
    s_and_b32 {sX}, s2, 7
    s_lshr_b32 {sSLOT}, s2, 3
    s_mov_b32 {sMASK}, 0xffff0000
    v_lshlrev_b32 v1, 4, v0""")
    if OPT["prof"]:
        e(f"v_mov_b32 v{VST}, 0")
    e(f"s_cmp_ge_u32 {sSLOT}, 20\ns_cbranch_scc1 L_shuf")

def warm_code():
    e(f"""s_getpc_b64 s[96:97]
    L_pc:
    s_sub_u32 s96, s96, L_pc-{NAME}
    s_subb_u32 s97, s97, 0""")
    if OPT["warm"] == 1:
        e(f"""s_sub_u32 {T[1]}, {sSLOT}, 20
        s_lshl_b32 {T[1]}, {T[1]}, 2
        s_add_u32 {T[1]}, {T[1]}, {sWV}
        s_lshl_b32 {T[1]}, {T[1]}, 11
        v_and_b32 v254, 15, v0
        v_lshlrev_b32 v254, 7, v254""")
    else:
        e(f"""s_lshl_b32 {T[1]}, s2, 8
        s_and_b32 {T[1]}, {T[1]}, 0xf800
        v_lshlrev_b32 v254, 3, v0
        v_and_b32 v254, 0x780, v254""")
    e(f"""v_add_u32 v254, {T[1]}, v254
    v_min_u32 v254, L_exit-{NAME}, v254
    global_load_dword v254, v254, s[96:97]""", tag="warm")

def args_ready():
    e.wait_all(vm=False)
    stamp("start")

def ffn_ids():
    srd(WS, P_WS, WS_END)
    e(f"""s_lshr_b32 {T[0]}, {sX}, 1
    s_lshl_b32 {T[0]}, {T[0]}, 2
    s_lshr_b32 {T[1]}, {sSLOT}, 3
    s_add_u32 {sG}, {T[0]}, {T[1]}
    s_and_b32 {sHF}, {sX}, 1
    s_and_b32 {sMI}, {sSLOT}, 7
    s_lshl_b32 {T[0]}, {sHF}, 3
    s_add_u32 {sJT}, {T[0]}, {sMI}
    s_lshl_b32 {sRB}, {sG}, 4
    s_add_u32 {sRB}, {sRB}, {sJT}""")

def q_prefetch(t):
    srd(SC, P_Q, ACT)
    e(f"""v_and_b32 v{t}, 7, v0
    v_lshrrev_b32 v{t+1}, 3, v0
    v_mul_u32_u24 v{t}, 1280, v{t}
    v_lshl_add_u32 v{t}, v{t+1}, 4, v{t}
    s_mul_i32 {T[18]}, {sRB}, 10240
    s_mul_i32 {T[19]}, {sWV}, 320
    s_add_u32 {T[18]}, {T[18]}, {T[19]}
    v_mov_b32 v{t+1}, {BIG}
    v_cmp_gt_u32 vcc, 32, v0
    v_cndmask_b32 v{t+1}, v{t+1}, v{t}, vcc""")
    return [(f"buffer_load_dwordx4 a[240:243], v{t}, {SC}, {T[18]} offen{NT_IN}", "q"),
            (f"buffer_load_dwordx4 a[244:247], v{t}, {SC}, {T[18]} offen offset:128{NT_IN}", "q"),
            (f"buffer_load_dwordx4 a[248:251], v{t+1}, {SC}, {T[18]} offen offset:256{NT_IN}", "q")]

def replica_add(line0):
    def fn2():
        L = e.uid("notlast")
        e.raw(f"""s_mov_b64 exec, 1
        v_mov_b32 v6, {line0}
        v_mov_b32 v7, 1
        global_atomic_add v8, v6, v7, {WSP} sc0 sc1
        s_waitcnt vmcnt(0)
        v_cmp_eq_u32 vcc, 15, v8
        s_cbranch_vccz {L}
        s_mov_b64 exec, 0xff
        v_lshlrev_b32 v6, 8, v0
        v_add_u32 v6, {CNT + 6*4096 + 2048}, v6
        v_mov_b32 v7, 1
        global_atomic_add v6, v7, {WSP} sc1
        {L}:
        s_mov_b64 exec, -1""")
    if OPT["hier"]:
        wave0(fn2)
        return
    def fn():
        e.raw(f"""s_mov_b64 exec, 0xff
        v_lshlrev_b32 v6, 8, v0
        v_add_u32 v6, {line0}, v6
        v_mov_b32 v7, 1
        global_atomic_add v6, v7, {WSP} sc1
        s_mov_b64 exec, -1""")
    wave0(fn)

def shuf_addr(r):
    e(f"s_lshl_b32 {T[4]}, {sX}, 8\ns_add_u32 {T[4]}, {T[4]}, {CNT + 2048}\nv_min_u32 v{r}, 5, v0\nv_lshlrev_b32 v{r}, 12, v{r}\nv_add_u32 v{r}, {T[4]}, v{r}")

def wd_base():
    e(f"""s_mul_i32 {sWD}, {sMI}, {WT}
    s_mul_i32 {T[12]}, {sWV}, 71680
    s_add_u32 {sWD}, {sWD}, {T[12]}
    s_add_u32 {sWD}, {sWD}, {WDP}
    v_min_u32 v226, 27, v0
    v_lshlrev_b32 v226, 3, v226
    s_lshl_b32 {T[12]}, {sX}, 8
    s_add_u32 {T[12]}, {T[12]}, {WDF}
    v_add_u32 v226, {T[12]}, v226""")
WD_POLL = f"global_load_dwordx2 v[228:229], v226, {WSP} sc1"
def wd_check():
    L = e.uid("wdok")
    e.wait(vm="wdf")
    keep = list(e.vm)
    tag_bad(228, 1)
    e.raw(f"s_cbranch_vccz {L}")
    spin_tag(WD_POLL, 228, 1)
    e.raw(f"{L}:")
    e.vm = keep
    fstamp("wd_ok")
def wd_resident(n):
    L = []
    for fr in range(n):
        if fr & 3 == 0: L.append(f"s_add_u32 {T[13]}, {sWD}, {fr*1024}")
        L.append((f"buffer_load_dwordx4 {a(4*fr,4)}, v1, {WS}, {T[13]} offen offset:{1024*(fr&3)} sc1", "wdres"))
    return L

def all_check():
    L = e.uid("allok")
    e.wait(vm="all")
    keep = list(e.vm)
    tag_bad(208, 4)
    e.raw(f"s_cbranch_vccz {L}")
    spin_tag(all_loads(216, 217, 208), 208, 4)
    e.raw(f"{L}:")
    e.vm = keep

def p0():
    KR, VR, WR, WF, KF, AC, VF, PK, HR = 16, 44, 60, 76, 108, 164, 196, 200, 216
    e(f"""s_mul_i32 {sCI}, {sX}, 20
    s_add_u32 {sCI}, {sCI}, {sSLOT}
    s_lshr_b32 {sCGP}, {sCI}, 4
    s_and_b32 {T[0]}, {sCI}, 15
    s_lshl_b32 {T[0]}, {T[0]}, 7
    s_lshl_b32 {T[1]}, {sWV}, 5
    s_add_u32 {T[2]}, {T[0]}, {T[1]}
    s_mul_i32 {T[3]}, {T[2]}, 1280
    s_lshl_b32 {T[4]}, {sCGP}, 7
    s_add_u32 {T[3]}, {T[3]}, {T[4]}
    v_and_b32 v2, 7, v0
    v_lshrrev_b32 v3, 3, v0
    v_mul_u32_u24 v4, 5120, v3
    v_lshl_add_u32 v4, v2, 4, v4
    v_add_u32 v4, {T[3]}, v4
    v_subrev_u32 v8, 3840, v4
    v_mov_b32 v9, {BIG}
    v_cmp_gt_u32 vcc, 1280, v4
    s_lshl_b32 {T[4]}, {sCGP}, 9
    s_lshl_b32 {T[5]}, {sCI}, 2
    v_cndmask_b32 v8, v8, v9, vcc
    v_lshlrev_b32 v9, 6, v2
    s_add_u32 {T[5]}, {T[5]}, {sWV}
    s_lshl_b32 {T[6]}, {T[5]}, 12
    s_lshr_b32 {T[7]}, {T[5]}, 1
    s_lshl_b32 {T[7]}, {T[7]}, 2
    v_subrev_u32 v10, 32, v1
    v_subrev_u32 v11, 16, v1
    v_add_u32 v12, 992, v1""")
    args_ready()
    srd(SA, P_K, ACT)
    for i in range(3):
        e(f"buffer_load_dwordx4 {v(KR+4*i,4)}, v8, {SA}, 0 offen offset:{1280*i}{NT_IN}", tag=f"k{i}")
    for i in range(4):
        e(f"buffer_load_dwordx4 {v(KR+12+4*i,4)}, v4, {SA}, 0 offen offset:{1280*i}{NT_IN}", tag=f"k{i+3}")
    srd(SC, P_SHK, 5120)
    for i in range(4):
        e(f"buffer_load_dwordx4 {v(WR+4*i,4)}, v9, {SC}, {T[4]} offen offset:{16*i}", tag="shk")
    srd(SB, P_V, ACT)
    for i in range(4):
        e(f"buffer_load_dwordx4 {v(VR+4*i,4)}, v4, {SB}, 0 offen offset:{1280*i}{NT_IN}", tag=f"v{i}")
    tag_load()
    e.raw(f"s_load_dword {sDV}, s[{P_D}:{P_D+1}], {T[7]}")
    srd(SA, P_SSM, 4096, add=T[6])
    e(f"buffer_load_dwordx4 {v(HR,4)}, v10, {SA}, 0 offen{NT_IN}\nbuffer_load_dwordx2 {v(HR+4,2)}, v11, {SA}, 0 offen{NT_IN}", tag="h0")
    for q in range(1, 5):
        e(f"buffer_load_dwordx4 {v(HR+8*q,4)}, v12, {SA}, 0 offen offset:{1024*(q-1)}{NT_IN}", tag=f"h{q}")
        e(f"buffer_load_dwordx2 {v(HR+8*q+4,2)}, v12, {SA}, 0 offen offset:{1024*(q-1)+16}{NT_IN}", tag=f"h{q}")
    ffn_ids()
    def clr():
        e.raw(f"""s_lshl_b32 {T[8]}, {sCI}, 8
        s_mov_b64 exec, 0xffff
        v_mov_b32 v196, 0
        v_mov_b32 v197, 0
        v_mov_b32 v198, 0
        v_mov_b32 v199, 0
        buffer_store_dwordx4 v[196:199], v1, {WS}, {T[8]} offen sc1
        s_mov_b64 exec, -1""")
    wave0(clr)
    if OPT["sent_y"]:
        e(f"""v_mul_u32_u24 v12, 20480, v3
        v_lshl_add_u32 v12, v2, 4, v12
        s_mul_i32 {T[10]}, {sWV}, {32*20480}
        s_lshl_b32 {T[11]}, {sCI}, 7
        s_add_u32 {T[10]}, {T[10]}, {T[11]}
        s_add_u32 {T[10]}, {T[10]}, {YB}
        v_mov_b32 v196, -1
        v_mov_b32 v197, -1
        v_mov_b32 v198, -1
        v_mov_b32 v199, -1""")
        for m in range(4):
            e(f"buffer_store_dwordx4 v[196:199], v12, {WS}, {T[10]} offen sc1\ns_add_u32 {T[10]}, {T[10]}, {8*20480}", tag="clr")
    e(f"""s_lshl_b32 {T[8]}, {sWV}, 12
    v_lshlrev_b32 v13, 9, v3
    v_sub_u32 v13, {P0L + 28*128}, v13
    v_lshl_add_u32 v13, v2, 4, v13
    v_add_u32 v13, {T[8]}, v13
    v_bfe_u32 v14, v0, 2, 2
    v_lshlrev_b32 v14, 7, v14
    v_lshrrev_b32 v15, 4, v0
    v_lshl_add_u32 v14, v15, 5, v14
    v_and_b32 v15, 3, v0
    v_lshl_add_u32 v14, v15, 3, v14
    v_add_u32 v14, {T[8]}, v14
    s_sub_u32 {T[8]}, 2016, {T[2]}
    s_lshr_b32 {T[8]}, {T[8]}, 3
    s_mul_i32 {T[8]}, {T[8]}, 10240
    s_lshl_b32 {T[9]}, {sCGP}, 10
    s_add_u32 {T[8]}, {T[8]}, {T[9]}
    s_add_u32 {T[8]}, {T[8]}, {KVT}""")
    def unpack(dst, src, n):
        for c in range(n):
            if c & 1: e(f"v_and_b32 v{dst+c}, {sMASK}, v{src+(c>>1)}")
            else: e(f"v_lshlrev_b32 v{dst+c}, 16, v{src+(c>>1)}")
    for i in range(7):
        e.wait(vm=f"k{i}")
        unpack(KF + 8 * i, KR + 4 * i, 8)
    e.wait(vm="shk")
    for c in range(8):
        for tau in range(4):
            src = WR + 2 * c + (tau >> 1)
            if tau & 1: e(f"v_and_b32 v{WF+8*tau+c}, {sMASK}, v{src}")
            else: e(f"v_lshlrev_b32 v{WF+8*tau+c}, 16, v{src}")
    fstamp("k_done")
    for i in range(4):
        for p in range(4):
            d = v(AC + 8 * i + 2 * p, 2)
            e(f"v_pk_mul_f32 {d}, {v(KF+8*(i+3)+2*p,2)}, {v(WF+2*p,2)}")
        for tau in range(1, 4):
            for p in range(4):
                d = v(AC + 8 * i + 2 * p, 2)
                e(f"v_pk_fma_f32 {d}, {v(KF+8*(i+3-tau)+2*p,2)}, {v(WF+8*tau+2*p,2)}, {d}")
        e.wait(vm=f"v{i}")
        unpack(KF + 8 * i, VR + 4 * i, 8)
        for p in range(4):
            d = v(AC + 8 * i + 2 * p, 2)
            e(f"v_pk_mul_f32 {d}, {d}, {v(KF+8*i+2*p,2)}")
        for p in range(4):
            e(f"v_cvt_pk_bf16_f32 v{PK+4*i+p}, v{AC+8*i+2*p}, v{AC+8*i+2*p+1}")
        e(f"ds_write_b128 v13, {v(PK+4*i,4)} offset:{128*(3-i)}", tag="w")
    for m in range(4):
        for hh in range(2):
            e(f"ds_read_b64_tr_b16 {v(16+4*m+2*hh,2)}, v14 offset:{(8*m+4*hh)*128}", tag=f"t{m}")
    tag_ready()
    for m in range(4):
        e(f"buffer_store_dwordx4 {v(16+4*m,4)}, v1, {WS}, {T[8]} offen sc1", tag="st")
        if m < 3: e(f"s_add_u32 {T[8]}, {T[8]}, 10240")
    fstamp("p0_st")
    e(f"s_mul_i32 {T[9]}, {sWV}, {FCH}\ns_add_u32 {T[9]}, {T[9]}, {F0}\nv_add_u32 v13, {T[9]}, v1")
    for q in range(5):
        d = HR + 8 * q; t = 108 + 12 * q
        e.wait(vm=f"h{q}")
        for j in range(4):
            e(f"v_alignbit_b32 v{t+j}, v{d+j+1}, v{d+j}, 16")
            e(f"v_mov_b32 v{t+4+j}, v{d+j+1}")
            e(f"v_alignbit_b32 v{t+8+j}, v{d+j+2}, v{d+j+1}, 16")
        if q == 4: e("s_mov_b64 exec, 3")
        e(f"ds_write_b128 v13, {v(d,4)} offset:{1024*q}", tag="w")
        for sg in range(1, 4):
            e(f"ds_write_b128 v13, {v(t+4*sg-4,4)} offset:{sg*FCP+1024*q}", tag="w")
        if q == OPT["sig_q"]:
            e("s_mov_b64 exec, -1")
            p0_signal()
    e(f"""s_mul_i32 {T[9]}, {sWV}, {UCH}
    s_add_u32 {T[9]}, {T[9]}, {U0}
    s_mov_b64 exec, -1
    v_add_u32 v13, {T[9]}, v1
    v_mov_b32 v32, 0
    v_mov_b32 v33, 0
    v_mov_b32 v34, 0
    v_mov_b32 v35, 0
    s_mov_b32 exec_lo, -1
    s_mov_b32 exec_hi, 3
    ds_write_b128 v13, v[32:35] offset:4096
    s_mov_b64 exec, -1""", tag="w")
    e(f"""s_and_b32 {T[7]}, {T[5]}, 1
    s_lshl_b32 {T[6]}, {sDV}, 16
    s_and_b32 {sDV}, {sDV}, {sMASK}
    s_cmp_eq_u32 {T[7]}, 0
    s_cselect_b32 {sDV}, {T[6]}, {sDV}
    v_and_b32 v7, 15, v0
    v_lshlrev_b32 v7, 3, v7""")
    if OPT["pwave"]:
        e(f"s_lshl_b32 {T[8]}, {sCGP}, 2\ns_sub_u32 {T[8]}, {T[8]}, {sWV}\ns_lshl_b32 {T[8]}, {T[8]}, 7\ns_add_u32 {T[8]}, {T[8]}, {P0W + 384}")
    else:
        e(f"s_lshl_b32 {T[8]}, {sCGP}, 7\ns_add_u32 {T[8]}, {T[8]}, {P0F}")
    e(f"v_add_u32 v7, {T[8]}, v7")

def tag_store(soff, t):
    e.raw(f"""s_mov_b64 exec, 1
    v_mov_b32 v{t}, {soff}
    v_mov_b32 v{t+2}, {sTAG}
    v_mov_b32 v{t+3}, {sNTAG}
    global_store_dwordx2 v{t}, v[{t+2}:{t+3}], {WSP} sc1
    s_mov_b64 exec, -1""")

def wg_flag(t):
    e(f"s_lshl_b32 {T[8]}, {sCI}, 3\ns_add_u32 {T[8]}, {T[8]}, {P0F}")
    wave0(lambda: tag_store(T[8], t))

def p0_signal():
    if OPT["pwave"]:
        e(f"s_lshl_b32 {T[8]}, {sCI}, 5\ns_lshl_b32 {T[10]}, {sWV}, 3\ns_add_u32 {T[8]}, {T[8]}, {T[10]}\ns_add_u32 {T[8]}, {T[8]}, {P0W}")
    e.wait_all(lg=False)
    fstamp("p0_drain")
    if OPT["pwave"]:
        tag_store(T[8], 36)
    else:
        e.raw("s_barrier")
        wg_flag(36)

def sentinel_loop(loads, r, vt):
    L = e.uid("sent"); D = e.uid("sentok")
    def chk():
        e.raw("\n".join([f"v_max3_u32 v{vt}, v{r}, v{r+1}, v{r+2}"] + [f"v_max3_u32 v{vt}, v{vt}, v{r+k}, v{r+k+1}" for k in range(3, 11, 2)] +
                        [f"v_max_u32 v{vt}, v{vt}, v{r+11}", f"v_cmp_eq_u32 vcc, -1, v{vt}"]))
    keep = list(e.vm)
    chk()
    e.raw(f"s_cbranch_vccz {D}\ns_mov_b32 {sSPIN}, 0\n{L}:\n{loads}")
    e.raw(f"""s_add_u32 {sSPIN}, {sSPIN}, 1
    s_waitcnt vmcnt(0)
    s_cmp_gt_u32 {sSPIN}, {SPIN_LIMIT}
    s_cbranch_scc1 {D}""")
    chk()
    e.raw(f"s_cbranch_vccnz {L}\n{D}:")
    e.vm = keep

def go_raise():
    if True:
        L = e.uid("go")
        e.raw(f"""s_or_b32 {T[2]}, {sSLOT}, {sWV}
        s_cmp_lg_u32 {T[2]}, 0
        s_cbranch_scc1 {L}
        s_lshl_b32 {T[2]}, {sX}, 7
        s_add_u32 {T[2]}, {T[2]}, {GOF}
        s_mov_b64 exec, 1
        v_mov_b32 v220, {T[2]}
        v_mov_b32 v222, {sTAG}
        v_mov_b32 v223, {sNTAG}
        global_store_dwordx2 v220, v[222:223], {WSP} sc1
        s_mov_b64 exec, -1
        {L}:""")

def conv():
    AC, GB, FB, KV, KU, YP = 16, (48, 80), 112, 144, 160, 192
    e(f"""v_lshrrev_b32 v8, 2, v0
    v_and_b32 v9, 3, v0
    v_mul_u32_u24 v10, 10240, v8
    v_lshl_add_u32 v10, v9, 4, v10
    v_mul_u32_u24 v11, {UCH}, v9
    v_lshl_add_u32 v11, v8, 4, v11
    s_lshl_b32 {T[0]}, {sWV}, 10
    s_add_u32 {T[0]}, {T[0]}, {U0}
    v_add_u32 v11, {T[0]}, v11
    s_mul_i32 {T[0]}, {sWV}, {64*10240}
    s_lshl_b32 {T[1]}, {sCI}, 6
    s_add_u32 {T[0]}, {T[0]}, {T[1]}
    s_add_u32 {T[0]}, {T[0]}, {KVT}
    v_and_b32 v8, 15, v0
    v_lshrrev_b32 v9, 4, v0
    v_add_u32 v12, 1, v8
    v_and_b32 v13, 3, v12
    v_sub_u32 v12, v12, v13
    v_mul_u32_u24 v13, {FCP}, v13
    v_lshl_add_u32 v12, v12, 1, v13
    v_lshl_add_u32 v12, v9, 4, v12
    s_mul_i32 {T[1]}, {sWV}, {FCH}
    s_add_u32 {T[1]}, {T[1]}, {F0}
    v_add_u32 v2, {T[1]}, v12
    s_mul_i32 {T[1]}, {sWV}, {UCH}
    s_add_u32 {T[1]}, {T[1]}, {U0}
    v_lshlrev_b32 v12, 5, v8
    v_sub_u32 v12, {T[1]}, v12
    v_lshl_add_u32 v3, v9, 4, v12
    v_add_u32 v3, 480, v3
    v_lshlrev_b32 v13, 3, v9
    v_sub_u32 v4, v12, v13
    v_add_u32 v4, 504, v4""")
    if OPT["pwave"]:
        spin_tag(f"global_load_dwordx2 v[14:15], v7, {WSP} sc1", 14, 1)
    else:
        page_calls((1, 2, 3))
        wave0(lambda: spin_tag(f"global_load_dwordx2 v[14:15], v7, {WSP} sc1", 14, 1))
        e.raw("s_barrier")
    stamp("p0_flag")
    for m in range(4):
        e(f"buffer_load_dwordx4 {v(16+4*m,4)}, v10, {WS}, {T[0]} offen sc1", tag=f"u{m}")
        if m < 3: e(f"s_add_u32 {T[0]}, {T[0]}, {16*10240}")
    if OPT["go"] and OPT["go_early"]: go_raise()
    ql = q_prefetch(218)
    all_addr(216, 217)
    shuf_addr(224)
    if OPT["wd_early"]:
        wd_base()
    e(f"""v_lshrrev_b32 v10, 1, v8
    v_mul_u32_u24 v10, 72, v10
    v_and_b32 v12, 1, v8
    v_lshl_add_u32 v10, v12, 4, v10
    v_lshl_add_u32 v10, v9, 2, v10
    s_mul_i32 {T[1]}, {sWV}, {YCS}
    s_add_u32 {T[1]}, {T[1]}, {YA}
    v_add_u32 v10, {T[1]}, v10
    v_lshrrev_b32 v14, 2, v8
    v_mul_u32_u24 v14, {YCS}, v14
    v_mul_u32_u24 v12, 72, v9
    v_add_u32 v14, v14, v12
    v_and_b32 v12, 3, v8
    v_lshl_add_u32 v14, v12, 3, v14
    s_mul_i32 {T[1]}, {sWV}, {72*16}
    s_add_u32 {T[1]}, {T[1]}, {YA}
    v_add_u32 v14, {T[1]}, v14
    v_lshrrev_b32 v12, 3, v0
    v_mul_u32_u24 v12, 20480, v12
    v_and_b32 v13, 7, v0
    v_lshl_add_u32 v12, v13, 4, v12
    s_mul_i32 {T[0]}, {sWV}, {32*20480}
    s_lshl_b32 {T[1]}, {sCI}, 7
    s_add_u32 {T[0]}, {T[0]}, {T[1]}
    s_add_u32 {T[0]}, {T[0]}, {YB}
    s_lshl_b32 {T[1]}, {sCGP}, 12
    s_add_u32 {T[1]}, {T[1]}, {CNT}""")
    seq = []
    for r in range(8):
        for aa in range(8):
            for b in range(7 - aa, -1, -1):
                seq.append((r, aa, b))
    first = {}; last = {}; fin = {}
    for t, (r, aa, b) in enumerate(seq):
        fin[aa + b] = t
        for key in (("F", r, aa), ("G", r, b)):
            first.setdefault(key, t); last[key] = t
    reads = []
    for key, t in first.items():
        kind, r, i = key
        prev = (kind, r - (1 if kind == "F" else 2), i)
        earliest = last[prev] + 1 if prev in last else -99
        if kind == "F":
            for h in range(2):
                reads.append((t, earliest, f"ds_read_b64 {v(FB+4*i+2*h,2)}, v2 offset:{512*i+64*r+8*h}", key))
        else:
            reads.append((t, earliest, f"ds_read_b128 {v(GB[r&1]+4*i,4)}, v3 offset:{512*(7-i)+64*r}", key))
    reads.sort(key=lambda x: x[0])
    early = [x for x in reads if x[3][0] == "F" and x[3][1] == 0]
    for x in early:
        e(x[2], tag=x[3]); reads.remove(x)
    for m in range(4):
        e.wait(vm=f"u{m}")
        e(f"ds_write_b128 v11, {v(16+4*m,4)} offset:{256*m}", tag="w")
    e.wait_all(vm=False)
    e.raw("s_barrier")
    if OPT["pwave"]: wg_flag(220)
    if OPT["go"] and not OPT["go_early"]: go_raise()
    fstamp("u_ready")
    S = Sched()
    if OPT["wd_early"]:
        S.at(OPT["wd_chk"] - 40, [(WD_POLL, "wdf")])
        S.at(OPT["wd_chk"], [wd_check])
        t = OPT["wd_chk"] + 1
        for it in wd_resident(OPT["wd_n"]):
            S.at(t, [it])
            if isinstance(it, tuple): t += OPT["wd_gap"]
    S.at(20, ql)
    S.at(200, [(l, "all") for l in all_loads(216, 217, 208).split("\n")])
    for n in range(8):
        S.at(150 + 4 * n, [(f"ds_read_b64 {v(KV+2*n,2)}, v4 offset:{512*(7-n)}", f"kv{n}")])
        d0, d1 = KV + 2 * n, KV + 2 * n + 1
        S.add(205, [f"v_and_b32 v{KU+4*n}, {sMASK}, v{d1}", f"v_lshlrev_b32 v{KU+4*n+1}, 16, v{d1}",
                    f"v_and_b32 v{KU+4*n+2}, {sMASK}, v{d0}", f"v_lshlrev_b32 v{KU+4*n+3}, 16, v{d0}"])
    for n in range(8):
        S.add(fin[n] + 6, [f"v_fmac_f32 v{AC+4*n+k}, {sDV}, v{KU+4*n+k}" for k in range(4)] +
              [f"v_cvt_pk_bf16_f32 v{YP+2*n}, v{AC+4*n}, v{AC+4*n+2}", f"v_cvt_pk_bf16_f32 v{YP+2*n+1}, v{AC+4*n+1}, v{AC+4*n+3}",
               (f"ds_write_b32 v10, v{YP+2*n} offset:{576*n}", "w"), (f"ds_write_b32 v10, v{YP+2*n+1} offset:{576*n+32}", "w")])
    LOOK = 22; ri = 0
    done_acc = set()
    for t, (r, aa, b) in enumerate(seq):
        n = 0
        while ri < len(reads) and reads[ri][1] <= t and (reads[ri][0] - t <= 6 or (n < 1 and reads[ri][0] - t <= LOOK)):
            e(reads[ri][2], tag=reads[ri][3]); ri += 1; n += 1
        need = [("F", r, aa), ("G", r, b)]
        S.gap(t, n + (1 if e.would_wait(lg=need) else 0), OPT["cx"] if t >= 262 else 0)
        e.wait(lg=need)
        acc = v(AC + 4 * (aa + b), 4)
        c = acc if (aa + b) in done_acc else "0"
        done_acc.add(aa + b)
        e(f"v_mfma_f32_16x16x32_bf16 {acc}, {v(FB+4*aa,4)}, {v(GB[r&1]+4*b,4)}, {c}")
    assert ri == len(reads) and not S.side
    print(f"conv: {len(S.fill)} epilogue instructions left after the last MFMA", file=sys.stderr)
    fstamp("conv_mfma")
    while S.fill: put(S.fill.pop(0)[1])
    e.wait_all(vm=False)
    e.raw("s_barrier")
    for m in range(4):
        for par in range(2):
            e(f"ds_read_b64_tr_b16 {v(48+4*m+2*par,2)}, v14 offset:{288*m+32*par}", tag=f"t{m}")
    for m in range(4):
        e.wait(lg=f"t{m}")
        e(f"buffer_store_dwordx4 {v(48+4*m,4)}, v12, {WS}, {T[0]} offen sc1", tag="st")
        if m < 3: e(f"s_add_u32 {T[0]}, {T[0]}, {8*20480}")
    if not OPT["sent_y"]: e.wait(vm="st")
    e.raw("s_barrier")
    replica_add(T[1])
    all_check()
    e(f"global_load_dword v225, v224, {WSP} sc1", tag="shuf")
    if OPT["pre_a1"]:
        L = e.uid("shufok")
        e.wait_all()
        e.raw(f"v_cmp_gt_u32 vcc, 16, v225\ns_cbranch_vccz {L}")
        spin(224, WSP, 16, 225)
        e.raw(f"{L}:")
    stamp("conv_done")

def go_wait(early=False):
    if not OPT["go"] or (OPT["go"] == 2) != early: return
    e(f"s_lshl_b32 {T[10]}, {sX}, 7\ns_add_u32 {T[10]}, {T[10]}, {GOF}\nv_mov_b32 v220, {T[10]}")
    e.wait_all()
    spin_tag(f"global_load_dwordx2 v[222:223], v220, {WSP} sc1\ns_sleep 2", 222, 1)

def shuffle():
    e.label("L_shuf")
    e(f"s_sub_u32 {sCI}, s2, 160")
    args_ready()
    tag_load()
    ffn_ids()
    for it in q_prefetch(8): put(it)
    e(f"s_lshl_b32 {T[0]}, {sCI}, 2\ns_add_u32 {T[0]}, {T[0]}, {sWV}")
    if OPT["warm"] == 1: warm_code()
    L = e.uid("nz")
    e.raw(f"""s_cmp_ge_u32 {T[0]}, 160
    s_cbranch_scc1 {L}
    s_mul_i32 {T[1]}, {T[0]}, 1639
    s_lshr_b32 {T[1]}, {T[1]}, 16
    s_mul_i32 {T[2]}, {T[1]}, 40
    s_sub_u32 {T[2]}, {T[0]}, {T[2]}
    s_lshl_b32 {T[2]}, {T[2]}, 10
    s_mul_i32 {T[3]}, {T[1]}, {WT}
    s_add_u32 {T[3]}, {T[3]}, {T[2]}
    s_add_u32 {T[3]}, {T[3]}, {WGU + 12*WT + 240*1024}
    v_mov_b32 v16, 0
    v_mov_b32 v17, 0
    v_mov_b32 v18, 0
    v_mov_b32 v19, 0
    buffer_store_dwordx4 v[16:19], v1, {WS}, {T[3]} offen sc1
    {L}:""")
    tag_ready()
    e(f"""s_mul_i32 {T[1]}, {sWV}, {SHST}
    v_lshrrev_b32 v2, 3, v0
    v_and_b32 v3, 7, v0
    v_lshrrev_b32 v8, 4, v0
    v_bfe_u32 v9, v0, 2, 2
    v_and_b32 v10, 3, v0
    v_lshl_add_u32 v8, v8, 3, v9""")
    if OPT["shufwait"]:
        e.wait_all()
    if OPT["stubs"]:
        e.wait_all()
        page_calls((1, 2, 3))
    if OPT["go"] == 2: go_wait(True)
    fstamp("shuf_go")
    e(f"s_cmp_ge_u32 {T[0]}, 272\ns_cbranch_scc1 L_shuf_wd\ns_cmp_ge_u32 {T[0]}, 270\ns_cbranch_scc1 L_shuf_go")
    srd(SA, P_WG, 640 * 3456); srd(SB, P_WU, 640 * 3456)
    e(f"""s_mul_i32 {T[2]}, {T[0]}, 6554
    s_lshr_b32 {T[2]}, {T[2]}, 16
    s_mul_i32 {T[3]}, {T[2]}, 10
    s_sub_u32 {T[3]}, {T[0]}, {T[3]}
    s_mul_i32 {T[4]}, {T[3]}, {64*3456}
    s_lshl_b32 {T[5]}, {T[2]}, 7
    s_add_u32 {T[4]}, {T[4]}, {T[5]}
    v_mul_u32_u24 v4, 3456, v2
    v_lshl_add_u32 v4, v3, 4, v4""")
    for m in range(8):
        e(f"buffer_load_dwordx4 {v(16+8*m,4)}, v4, {SA}, {T[4]} offen{NT_W}", tag=f"l{m}")
        e(f"buffer_load_dwordx4 {v(20+8*m,4)}, v4, {SB}, {T[4]} offen{NT_W}", tag=f"l{m}")
        if m < 7: e(f"s_add_u32 {T[4]}, {T[4]}, {8*3456}")
    e(f"""v_mul_u32_u24 v11, 272, v2
    v_lshl_add_u32 v11, v3, 4, v11
    v_add_u32 v11, {T[1]}, v11
    v_mul_u32_u24 v12, 272, v8
    v_add_u32 v12, {T[1]}, v12
    s_cmp_lt_u32 {T[2]}, 24
    s_cselect_b32 {T[4]}, 4, 3
    v_lshlrev_b32 v10, {T[4]}, v10
    v_add_u32 v12, v12, v10
    s_cselect_b32 {T[4]}, 8, 32
    v_add_u32 v13, {T[4]}, v12
    v_add_u32 v14, 64, v12
    v_add_u32 v15, 64, v13
    s_cselect_b32 {T[8]}, 4, 2
    s_lshl_b32 {T[8]}, {T[8]}, 10""")
    for m in range(8):
        e.wait(vm=f"l{m}")
        e(f"ds_write_b128 v11, {v(16+8*m,4)} offset:{m*2176}\nds_write_b128 v11, {v(20+8*m,4)} offset:{m*2176+128}", tag="w")
    e.wait(lg="w")
    fstamp("sh_ld")
    go_wait()
    fstamp("sh_go")
    for fi in range(4):
        for ss in range(2):
            for mat in range(2):
                for hh in range(2):
                    e(f"ds_read_b64_tr_b16 {v(16+16*fi+8*ss+4*mat+2*hh,2)}, v{12+fi} offset:{(32*ss+4*hh)*272+128*mat}", tag=f"t{fi}")
        e(f"""s_lshl_b32 {T[4]}, {T[2]}, 1
        s_add_u32 {T[4]}, {T[4]}, {fi >> 1}
        s_mul_i32 {T[5]}, {T[4]}, 21846
        s_lshr_b32 {T[5]}, {T[5]}, 16
        s_mul_i32 {T[6]}, {T[5]}, 3
        s_sub_u32 {T[6]}, {T[4]}, {T[6]}
        s_mul_i32 {T[6]}, {T[6]}, 80
        s_add_u32 {T[6]}, {T[6]}, {2 * (fi & 1)}
        s_lshl_b32 {T[4]}, {T[2]}, 2
        s_sub_u32 {T[4]}, {T[4]}, {96 - fi}
        s_cmp_lt_u32 {T[2]}, 24
        s_cselect_b32 {T[5]}, {T[5]}, {T[4]}
        s_cselect_b32 {T[6]}, {T[6]}, 240
        s_mul_i32 {T[5]}, {T[5]}, {WT}
        s_lshl_b32 {T[6]}, {T[6]}, 10
        s_add_u32 {T[7]}, {T[5]}, {T[6]}
        s_lshl_b32 {T[9]}, {T[3]}, 1
        s_mul_i32 {T[9]}, {T[9]}, {T[8]}
        s_add_u32 {T[7]}, {T[7]}, {T[9]}
        s_add_u32 {T[7]}, {T[7]}, {WGU}""")
        e.wait(lg=f"t{fi}")
        for ss in range(2):
            for mat in range(2):
                e(f"buffer_store_dwordx4 {v(16+16*fi+8*ss+4*mat,4)}, v1, {WS}, {T[7]} offen offset:{1024*mat} sc1", tag="st")
            if ss == 0: e(f"s_add_u32 {T[7]}, {T[7]}, {T[8]}")
    e("s_branch L_shuf_end")
    e.vm = []; e.lg = []
    e.label("L_shuf_wd")
    srd(SA, P_WD, 1728 * 1280)
    e(f"""s_sub_u32 {T[2]}, {T[0]}, 272
    s_and_b32 {T[3]}, {T[2]}, 1
    s_lshr_b32 {T[2]}, {T[2]}, 1
    s_mul_i32 {T[4]}, {T[2]}, 4682
    s_lshr_b32 {T[4]}, {T[4]}, 16
    s_mul_i32 {T[5]}, {T[4]}, 14
    s_sub_u32 {T[5]}, {T[2]}, {T[5]}
    s_and_b32 {T[6]}, {T[5]}, 3
    s_lshl_b32 {T[9]}, {T[4]}, 2
    s_add_u32 {T[7]}, {T[9]}, {T[6]}
    s_mul_i32 {T[7]}, {T[7]}, 3
    s_lshr_b32 {T[8]}, {T[5]}, 2
    s_add_u32 {T[7]}, {T[7]}, {T[8]}
    s_lshl_b32 {T[8]}, {T[4]}, 1
    s_add_u32 {T[8]}, {T[8]}, {T[6]}
    s_add_u32 {T[8]}, {T[8]}, 48
    s_cmp_ge_u32 {T[5]}, 12
    s_cselect_b32 {T[7]}, {T[8]}, {T[7]}
    s_mul_i32 {T[6]}, {T[7]}, {32*1280}
    s_mul_i32 {T[9]}, {T[3]}, 640
    s_add_u32 {T[6]}, {T[6]}, {T[9]}
    v_mul_u32_u24 v4, 1280, v2
    v_lshl_add_u32 v4, v3, 4, v4
    v_add_u32 v11, {T[6]}, v4
    v_add_u32 v12, 10240, v11
    v_add_u32 v13, 20480, v11
    v_add_u32 v14, 30720, v11""")
    for rb4 in range(4):
        for ln in range(5):
            e(f"buffer_load_dwordx4 {v(16+20*rb4+4*ln,4)}, v{11+rb4}, {SA}, 0 offen offset:{128*ln}{NT_W}", tag=f"l{rb4}")
    e(f"""v_mul_u32_u24 v4, 656, v2
    v_lshl_add_u32 v4, v3, 4, v4
    v_add_u32 v4, {T[1]}, v4
    v_mul_u32_u24 v15, 656, v8
    v_add_u32 v15, {T[1]}, v15
    v_lshl_add_u32 v2, v10, 4, v15
    v_lshl_add_u32 v3, v10, 3, v15
    s_mul_i32 {T[6]}, {T[3]}, {4*WT}
    s_mul_i32 {T[7]}, {T[4]}, 71680
    s_add_u32 {T[6]}, {T[6]}, {T[7]}
    s_mul_i32 {T[7]}, {T[5]}, 5120
    s_add_u32 {T[6]}, {T[6]}, {T[7]}
    s_add_u32 {T[6]}, {T[6]}, {WDP}""")
    for rb4 in range(4):
        e.wait(vm=f"l{rb4}")
        for ln in range(5):
            e(f"ds_write_b128 v4, {v(16+20*rb4+4*ln,4)} offset:{rb4*8*656+128*ln}", tag="w")
    e.wait(lg="w")
    if not OPT["wd_early"]: go_wait()
    for ct in range(4):
        for tau in range(5):
            base = 32 * (tau >> 1) + 4 * (tau & 1) if tau < 4 else 64
            for hh in range(2):
                e(f"ds_read_b64_tr_b16 {v(16+20*ct+4*tau+2*hh,2)}, v{2 if tau < 4 else 3} offset:{4*hh*656+2*(80*ct+base)}", tag=f"t{ct}")
        e.wait(lg=f"t{ct}")
        for tau in range(4):
            e(f"buffer_store_dwordx4 {v(16+20*ct+4*tau,4)}, v1, {WS}, {T[6]} offen offset:{1024*tau} sc1", tag="st")
        e(f"s_add_u32 {T[7]}, {T[6]}, 4096")
        e(f"buffer_store_dwordx4 {v(16+20*ct+16,4)}, v1, {WS}, {T[7]} offen sc1", tag="st")
        e(f"s_add_u32 {T[6]}, {T[6]}, {WT}")
    if OPT["wd_early"]:
        e.wait_all()
        e.raw("s_barrier")
        e(f"s_sub_u32 {T[6]}, {sCI}, 68\ns_lshl_b32 {T[6]}, {T[6]}, 3\ns_add_u32 {T[6]}, {T[6]}, {WDF}")
        wave0(lambda: e.raw(f"""s_mov_b64 exec, 0xff
        v_lshlrev_b32 v220, 8, v0
        v_add_u32 v220, {T[6]}, v220
        v_mov_b32 v222, {sTAG}
        v_mov_b32 v223, {sNTAG}
        global_store_dwordx2 v220, v[222:223], {WSP} sc1
        s_mov_b64 exec, -1"""))
        fstamp("wd_sig")
    e.label("L_shuf_go")
    go_wait()
    e.label("L_shuf_end")
    all_addr(216, 217)
    e(all_loads(216, 217, 208), tag="all")
    all_check()
    e.wait_all()
    e.raw("s_barrier")
    e(f"s_lshr_b32 {T[1]}, {sCI}, 4\ns_lshl_b32 {T[1]}, {T[1]}, 12\ns_add_u32 {T[1]}, {T[1]}, {CNT + 2048}")
    replica_add(T[1])
    fstamp("shuf_done")
    if OPT["wd_early"]:
        wd_base()
        e(WD_POLL, tag="wdf")
        wd_check()
        for it in wd_resident(OPT["wd_n"]): put(it)
    if OPT["pre_a1"] or OPT["wtouch"]:
        shuf_addr(7)
        wait_flag(7, WSP, 16)
    if OPT["wtouch"]:
        n = OPT["wtouch"]
        e(f"""s_sub_u32 {T[1]}, {sSLOT}, 20
        s_lshl_b32 {T[1]}, {T[1]}, 2
        s_add_u32 {T[1]}, {T[1]}, {sWV}
        s_and_b32 {T[3]}, {T[1]}, 7
        s_lshr_b32 {T[1]}, {T[1]}, 3
        s_mul_i32 {T[1]}, {T[1]}, {n*8192}
        s_lshl_b32 {T[2]}, {sHF}, 3
        s_add_u32 {T[2]}, {T[2]}, {T[3]}
        s_mul_i32 {T[2]}, {T[2]}, {WT}
        s_add_u32 {T[2]}, {T[2]}, {T[1]}
        s_add_u32 {T[2]}, {T[2]}, {WGU + 131072}
        v_lshlrev_b32 v8, 7, v0""")
        for k in range(n):
            e(f"buffer_load_dword v254, v8, {WS}, {T[2]} offen sc1\ns_add_u32 {T[2]}, {T[2]}, 8192", tag="touch")

class Bg:
    q = []; every = 8; n = 0
def ev(text, tag=None):
    for l in text.split("\n"):
        if not l.strip(): continue
        e(l, tag=tag)
        if l.strip().startswith("v_"):
            Bg.n += 1
            if Bg.q and Bg.n % Bg.every == 0:
                put(Bg.q.pop(0))
                while Bg.q and isinstance(Bg.q[0], str): put(Bg.q.pop(0))
def bg_flush():
    while Bg.q: put(Bg.q.pop(0))

XV, YV, RAW, NV = 16, 40, 64, 88
def unpack24(dst, src):
    for c in range(24):
        if c & 1: ev(f"v_and_b32 v{dst+c}, {sMASK}, v{src+(c>>1)}")
        else: ev(f"v_lshlrev_b32 v{dst+c}, 16, v{src+(c>>1)}")

def row_stats(x, area, scale=None):
    ev(f"v_pk_add_f32 v[112:113], {v(x,2)}, {v(x+2,2)}\nv_pk_mul_f32 v[114:115], {v(x,2)}, {v(x,2)}")
    ev(f"v_pk_fma_f32 v[114:115], {v(x+2,2)}, {v(x+2,2)}, v[114:115]")
    for p in range(2, 12):
        ev(f"v_pk_add_f32 v[112:113], v[112:113], {v(x+2*p,2)}")
        ev(f"v_pk_fma_f32 v[114:115], {v(x+2*p,2)}, {v(x+2*p,2)}, v[114:115]")
    ev("""v_add_f32 v112, v112, v113
    v_add_f32 v113, v114, v115
    v_add_f32_dpp v112, v112, v112 row_ror:8 row_mask:0xf bank_mask:0xf
    v_add_f32_dpp v113, v113, v113 row_ror:8 row_mask:0xf bank_mask:0xf""")
    for sw in ("v_permlane16_swap_b32", "v_permlane32_swap_b32"):
        ev(f"""v_mov_b32 v114, v112
        v_mov_b32 v115, v113
        {sw} v112, v114
        {sw} v113, v115
        v_add_f32 v112, v112, v114
        v_add_f32 v113, v113, v115""")
    e(f"s_mov_b64 exec, 0xff\nds_write_b64 v13, v[112:113] offset:{area}\ns_mov_b64 exec, -1", tag="w")
    e.wait_all(vm=False)
    e.raw("s_barrier")
    e(f"ds_read_b128 v[112:115], v14 offset:{area}\nds_read_b128 v[116:119], v14 offset:{area+16}", tag="r")
    e.wait(lg="r")
    ev(f"""v_pk_add_f32 v[112:113], v[112:113], v[114:115]
    v_pk_add_f32 v[116:117], v[116:117], v[118:119]
    v_pk_add_f32 v[112:113], v[112:113], v[116:117]
    v_mul_f32 v112, {f32(1/640)}, v112
    v_mul_f32 v113, {f32(1/640)}, v113
    v_fma_f32 v113, -v112, v112, v113
    v_max_f32 v113, 0, v113
    v_add_f32 v113, {f32(1e-5)}, v113
    v_rsq_f32 v120, v113""")
    if scale: ev(f"v_mul_f32 v120, {f32(scale)}, v120")
    ev("v_mul_f32_e64 v121, -v112, v120")

def normalise(dst, x):
    for p in range(12):
        ev(f"v_pk_fma_f32 {v(dst+2*p,2)}, {v(x+2*p,2)}, v[120:121], v[120:121] op_sel:[0,0,1] op_sel_hi:[1,0,1]")

def r_addr():
    e(f"""v_and_b32 v8, 7, v0
    v_lshrrev_b32 v9, 3, v0
    s_mul_i32 {T[0]}, {sWV}, 20
    v_add_u32 v9, {T[0]}, v9
    v_lshlrev_b32 v10, 8, v9
    v_lshl_add_u32 v10, v8, 4, v10
    v_add_u32 v11, 2048, v10
    v_add_u32 v12, 4096, v10
    v_mov_b32 v15, {BIG}
    v_cmp_gt_u32 vcc, 32, v0
    v_cndmask_b32 v12, v15, v12, vcc
    v_lshlrev_b32 v14, 5, v8
    v_add_u32 v14, {RED}, v14
    s_lshl_b32 {T[0]}, {sWV}, 3
    v_add_u32 v13, {T[0]}, v14
    s_lshr_b32 {T[1]}, {sRB}, 1
    s_mul_i32 {T[1]}, {T[1]}, 20480
    s_and_b32 {T[2]}, {sRB}, 1
    s_lshl_b32 {T[2]}, {T[2]}, 7
    s_add_u32 {T[1]}, {T[1]}, {T[2]}
    s_lshl_b32 {T[2]}, {sWV}, 10
    v_add_u32 v4, {T[2]}, v1""")

def r_finish(layer):
    row_stats(XV, 256, ALPHA)
    normalise(NV, XV)
    e(f"s_add_u32 {T[2]}, {T[1]}, {XN[layer]}")
    for it in range(3):
        for p in range(4 * it, 4 * it + 4):
            e(f"v_cvt_pk_bf16_f32 v{RAW+p}, v{NV+2*p}, v{NV+2*p+1}")
        e(f"buffer_store_dwordx4 {v(RAW+4*it,4)}, v{10+it}, {WS}, {T[2]} offen sc1", tag="st")
    for p in range(12):
        e(f"v_cvt_pk_bf16_f32 v{RAW+12+p}, v{XV+2*p}, v{XV+2*p+1}")
    if layer == 0:
        for it in range(3):
            e(f"ds_write_b128 v4, {v(RAW+12+4*it,4)} offset:{ST_X-131072+4096*it}", tag="w")
    else:
        e(f"s_add_u32 {T[2]}, {T[1]}, {X3}")
        for it in range(3):
            e(f"buffer_store_dwordx4 {v(RAW+12+4*it,4)}, v{10+it}, {WS}, {T[2]} offen sc1", tag="x3st")
    cnt_off(T[0], sG, 16 * layer)
    rstamp(f"r_st{layer}")
    e.wait(vm="st")
    rstamp(f"r_dr{layer}")
    e.raw("s_barrier")
    signal(T[0], WSP)
    e(f"v_mov_b32 v7, {T[0]}")
    bg_flush()
    prefill(take(8))
    Pre.done = 0

class Pre: done = 0
def take(n):
    n = min(n, 8 - Pre.done); r = range(Pre.done, Pre.done + n); Pre.done += n
    return r
def r_prefill(n, every):
    Bg.n = 0; Bg.every = every
    for sg in take(n): Bg.q += dma_stage(sg)
    while Bg.q and isinstance(Bg.q[0], str): put(Bg.q.pop(0))

def r1():
    e.label("L_r1")
    ffn_setup()
    r_addr()
    e.wait_all()
    e(f"""v_add_u32 v4, 131072, v4
    v_lshlrev_b32 v2, 8, v9
    v_lshl_add_u32 v2, v8, 3, v2
    v_add_u32 v3, 4096, v2
    v_cmp_gt_u32 vcc, 32, v0
    v_cndmask_b32 v3, v15, v3, vcc
    s_lshr_b32 {T[3]}, {sRB}, 1
    s_mul_i32 {T[3]}, {T[3]}, 20480
    s_and_b32 {T[4]}, {sRB}, 1
    s_lshl_b32 {T[4]}, {T[4]}, 6
    s_add_u32 {T[3]}, {T[3]}, {T[4]}
    s_add_u32 {T[3]}, {T[3]}, {YB}""")
    if OPT["sent_f"]:
        e(f"s_add_u32 {T[2]}, {T[1]}, {F1}\nv_mov_b32 v124, -1\nv_mov_b32 v125, -1\nv_mov_b32 v126, -1\nv_mov_b32 v127, -1")
        for it in range(3):
            e(f"buffer_store_dwordx4 v[124:127], v{10+it}, {WS}, {T[2]} offen sc1", tag="clr")
    if OPT["pre_a1"]: r_prefill(OPT["pre_a1"], 5)
    for i in range(12):
        ev(f"v_accvgpr_read_b32 v{RAW+i}, a{240+i}")
    unpack24(XV, RAW)
    row_stats(XV, 0)
    normalise(NV, XV)
    bg_flush()
    e(f"""s_lshl_b32 {T[4]}, {sX}, 8
    s_add_u32 {T[4]}, {T[4]}, {CNT}
    v_and_b32 v7, 15, v0
    v_lshlrev_b32 v6, 12, v7
    v_subrev_u32 v122, {10*4096 - 2048}, v6
    v_cmp_gt_u32 vcc, 10, v7
    v_cndmask_b32 v7, v122, v6, vcc
    v_add_u32 v7, {T[4]}, v7""")
    if OPT["hier"]:
        e(f"s_lshl_b32 {T[4]}, {sX}, 8\ns_add_u32 {T[4]}, {T[4]}, {CNT + 6*4096 + 2048}\nv_mov_b32 v7, {T[4]}")
        wait_flag(7, WSP, 16 if OPT["hier"] == 1 else 16, OPT["nap"])
    else:
        wait_flag(7, WSP, 16, OPT["nap"])
    stamp("conv_flag")
    yl = []
    for it in range(3):
        for h in range(2):
            va, off = (2, 2048 * it + 128 * h) if it < 2 else (3, 128 * h)
            yl.append(f"buffer_load_dwordx2 {v(RAW+4*it+2*h,2)}, v{va}, {WS}, {T[3]} offen offset:{off} sc1")
    yl = "\n".join(yl)
    e(yl, tag="y")
    r_prefill(OPT["pre_r1"], OPT["pre_every"])
    for _ in range(min(OPT["pre_now"], len(Bg.q))): put(Bg.q.pop(0))
    e.wait(vm="y")
    if OPT["sent_y"]: sentinel_loop(yl, RAW, 123)
    rstamp("y_arr")
    unpack24(YV, RAW)
    for p in range(12):
        ev(f"v_pk_fma_f32 {v(XV+2*p,2)}, {v(NV+2*p,2)}, {v(YV+2*p,2)}, {v(XV+2*p,2)}")
    for it in range(3):
        e(f"ds_write_b128 v4, {v(RAW+4*it,4)} offset:{ST_Y-131072+4096*it}", tag="w")
    r_finish(0)
    stamp("r1_done")

def r2_pre():
    r_addr()
    e("v_add_u32 v4, 131072, v4")
    for it in range(3):
        e(f"ds_read_b128 {v(RAW+4*it,4)}, v4 offset:{ST_X-131072+4096*it}", tag="x")
    for it in range(3):
        e(f"ds_read_b128 {v(RAW+12+4*it,4)}, v4 offset:{ST_Y-131072+4096*it}", tag="x")
    e.wait(lg="x")
    unpack24(XV, RAW)
    unpack24(YV, RAW + 12)
    e(f"s_add_u32 {T[2]}, {T[1]}, {F1}")

def r2():
    wait_flag(7, WSP, 8)
    stamp("f_flag")
    e(f"s_mov_b32 s96, {f32(INVA2)}")
    fl = "\n".join(f"buffer_load_dwordx4 {v(RAW+4*it,4)}, v{10+it}, {WS}, {T[2]} offen sc1" for it in range(3))
    e(fl, tag="f")
    r_prefill(OPT["pre_r2"], OPT["pre_every"])
    for _ in range(min(OPT["pre_now"], len(Bg.q))): put(Bg.q.pop(0))
    e.wait(vm="f")
    if OPT["sent_f"]: sentinel_loop(fl, RAW, 123)
    rstamp("f_arr")
    unpack24(NV, RAW)
    for p in range(12):
        ev(f"v_pk_fma_f32 {v(XV+2*p,2)}, {v(NV+2*p,2)}, s[96:97], {v(XV+2*p,2)} op_sel_hi:[1,0,1]")
    row_stats(XV, 0)
    normalise(NV, XV)
    for p in range(12):
        ev(f"v_pk_fma_f32 {v(XV+2*p,2)}, {v(NV+2*p,2)}, {v(YV+2*p,2)}, {v(XV+2*p,2)}")
    r_finish(1)
    stamp("r2_done")

XR = 16; ACC = (176, 208); WB0 = 220; NWB = 9; PD = OPT["pd"]; NRES = 11

def dma_stage(sg):
    out = [f"s_add_u32 {sWO}, {sWB}, {sg*16384}", f"s_add_u32 m0, {sM0}, {(sg & 7)*16384}"]
    out += [(f"buffer_load_dwordx4 v1, {WS}, {sWO} offen offset:{1024*d} sc1 lds", f"dma{sg}") for d in range(4)]
    return out

def put(item):
    if isinstance(item, tuple): e(item[0], tag=item[1])
    elif callable(item): item()
    else: e(item)

def prefill(stages):
    for sg in stages:
        for it in dma_stage(sg): put(it)

def ffn_setup():
    e(f"""s_mul_i32 {sWB}, {sJT}, {WT}
    s_lshl_b32 {sM0}, {sWV}, 12
    s_add_u32 {sWB}, {sWB}, {sM0}
    s_add_u32 {sWB}, {sWB}, {WGU}
    s_mul_i32 {sWD}, {sMI}, {WT}
    s_mul_i32 {T[0]}, {sWV}, 71680
    s_add_u32 {sWD}, {sWD}, {T[0]}
    s_add_u32 {sWD}, {sWD}, {WDP}""")

def geglu(g, u, n, outq):
    L = []
    if OPT["x_nofill"]: return L
    for z in range(n):
        L += [f"v_fma_f32 v{8+(z&3)}, v{g+z}, v{g+z}, v4", f"v_mul_f32 v{u+z}, v{g+z}, v{u+z}",
              f"v_mul_f32_e64 v{g+z}, -v{g+z}, v{8+(z&3)}", f"v_exp_f32 v{g+z}, v{g+z}", f"v_add_f32 v{g+z}, 1.0, v{g+z}",
              f"v_rcp_f32 v{g+z}, v{g+z}", f"v_mul_f32 v{u+z}, v{u+z}, v{g+z}"]
        if z & 1: L.append(f"v_cvt_pk_bf16_f32 v{outq+(z>>1)}, v{u+z-1}, v{u+z}")
    return L

def text_of(item): return item[0] if isinstance(item, tuple) else item
def slots(item):
    t = text_of(item)
    if callable(t): return 9
    return 2 if t.startswith(("v_exp", "v_rcp")) else 1
def is_mem(item):
    t = text_of(item)
    return not callable(t) and t.startswith(("buffer_", "global_", "ds_"))

class Sched:
    def __init__(self):
        self.side = []; self.fill = []; self.seq = 0; self.over = 0; self.hook = None
    def at(self, slot, items):
        for it in items:
            self.seq += 1; self.side.append((slot, self.seq, it))
        self.side.sort(key=lambda x: x[:2])
    def add(self, slot, items):
        for it in items: self.fill.append((slot, it, Ins(text_of(it))))
    def pending(self, tag): return any(isinstance(it, tuple) and it[1] == tag for _, it, _ in self.fill)
    def gap(self, n, used, extra=0):
        room = 2 + extra - used; valu = False; m0 = False
        while self.side and self.side[0][0] <= n:
            slot, _, it = self.side[0]
            late = n - slot >= OPT["slack"]
            dma = is_mem(it) and text_of(it).endswith("lds")
            if not late and (slots(it) > room or (dma and m0)) and slots(it) < 9: break
            self.side.pop(0); put(it); room -= slots(it)
            m0 = not callable(it) and " m0," in text_of(it)
        k = 0
        while room > 0 and k < min(len(self.fill), 20):
            slot, it, ins = self.fill[k]
            ok = slot <= n and slots(it) <= room and not (is_mem(it) and valu)
            for _, _, o in self.fill[:k]:
                if (o.dst & (ins.src | ins.dst)) or (o.src & ins.dst) or (o.kind in ("vmem", "ds") and ins.kind in ("vmem", "ds", "salu")) or (o.kind == "salu"):
                    ok = False; break
            if ok and ins.op.startswith("v_permlane") and valu: ok = False
            if ok:
                self.fill.pop(k); put(it); room -= slots(it); valu = valu or ins.kind == "valu"
                if self.hook: self.hook(it, n)
                if ins.op.startswith(("v_exp", "v_rcp")): break
                k = 0
            else:
                k += 1
        if room < 0: self.over -= room

def check_or_spin(vt, vaddr, target):
    def fn():
        L = e.uid("rdy")
        e.wait(vm=f"poll{vt}")
        keep = list(e.vm)
        e.raw(f"v_cmp_gt_u32 vcc, {target}, v{vt}\ns_cbranch_vccz {L}")
        spin(vaddr, WSP, target, vt)
        e.raw(f"{L}:")
        e.vm = keep
    return fn

HF = 16
WNQ = list(range(224, 240, 4)) + list(range(160, 176, 4)) + list(range(176, 204, 4))
def acc2(tau, ri): return 80 + 4 * (ri * 5 + tau)
def wdreg(fr): return a(4 * fr, 4) if fr < 5 * NRES else v(WNQ[fr - 5 * NRES], 4)
sX0, sX1, sHC, sWDO, sTMP, sHT = T[10], T[11], T[12], T[13], T[14], T[15]
sHS1, sWNO = T[16], T[17]

def ffn(layer):
    H = HB[layer]
    e(f"""v_add_u32 v2, 0x10000, v1
    v_mov_b32 v4, {f32(KAPPA)}
    v_bfe_u32 v8, v0, 4, 1
    v_mul_u32_u24 v3, 57344, v8
    v_lshrrev_b32 v8, 5, v0
    v_lshl_add_u32 v3, v8, 8, v3
    v_and_b32 v8, 15, v0
    v_lshl_add_u32 v3, v8, 4, v3
    s_lshl_b32 {T[0]}, {sG}, 3
    s_lshl_b32 {T[1]}, {sWV}, 1
    s_add_u32 {T[1]}, {T[1]}, {T[0]}
    s_mul_i32 {sX0}, {T[1]}, 20480
    s_add_u32 {sX0}, {sX0}, {XN[layer]}
    s_add_u32 {sX1}, {sX0}, 20480
    s_mul_i32 {T[1]}, {T[1]}, 57344
    s_lshr_b32 {T[2]}, {sJT}, 2
    s_mul_i32 {T[2]}, {T[2]}, 14336
    s_add_u32 {T[1]}, {T[1]}, {T[2]}
    s_add_u32 {T[1]}, {T[1]}, {H}
    s_and_b32 {T[2]}, {sJT}, 3
    s_lshl_b32 {T[3]}, {T[2]}, 10
    s_add_u32 {sHS}, {T[1]}, {T[3]}
    s_add_u32 {sHS1}, {sHS}, 57344
    s_lshl_b32 {T[3]}, {T[2]}, 9
    s_add_u32 {sHS3}, {T[1]}, {T[3]}
    s_add_u32 {sHS3}, {sHS3}, 12288
    s_lshl_b32 {T[1]}, {sHF}, 2
    s_add_u32 {T[0]}, {T[0]}, {T[1]}
    s_mul_i32 {T[2]}, {sWV}, 14336
    s_add_u32 {T[2]}, {T[2]}, {H}""")
    for ri in range(4):
        e(f"""s_add_u32 {T[1]}, {sWV}, {ri}
        s_and_b32 {T[1]}, {T[1]}, 3
        s_add_u32 {T[1]}, {T[1]}, {T[0]}
        s_mul_i32 {T[1]}, {T[1]}, 57344
        s_add_u32 {sH[ri]}, {T[1]}, {T[2]}""")
    e(f"""s_and_b32 {T[1]}, {sMI}, 1
    s_lshl_b32 {T[1]}, {T[1]}, 1
    s_add_u32 {T[1]}, {T[1]}, {T[0]}
    s_lshr_b32 {T[2]}, {sWV}, 1
    s_add_u32 {T[1]}, {T[1]}, {T[2]}
    s_mul_i32 {sHT}, {T[1]}, 57344
    s_lshr_b32 {T[1]}, {sMI}, 1
    s_mul_i32 {T[1]}, {T[1]}, 14336
    s_add_u32 {sHT}, {sHT}, {T[1]}
    s_add_u32 {sHT}, {sHT}, {H}
    s_and_b32 {T[1]}, {sWV}, 1
    s_lshl_b32 {T[2]}, {T[1]}, 11
    v_lshlrev_b32 v250, 7, v8
    v_and_b32 v251, 0x380, v250
    v_add_u32 v250, {T[2]}, v250
    s_lshl_b32 {T[2]}, {T[1]}, 10
    v_add_u32 v251, {T[2]}, v251
    s_mul_i32 {sHC}, {sG}, 3""")
    cnt_off(sHC, sHC, 64 + 48 * layer)
    e(f"v_mov_b32 v244, {sHC}\nv_add_u32 v245, 64, v244\nv_add_u32 v246, 256, v244\nv_add_u32 v248, 512, v244")
    wait_flag(7, WSP, 16)
    stamp(f"xn_flag{layer}")

    def xload(i):
        s_, rt = i >> 1, i & 1
        L = [(f"buffer_load_dwordx4 {v(XR+4*i,4)}, v1, {WS}, {(sX0, sX1)[rt]} offen offset:{1024*(s_&3)} sc1", f"x{i}")]
        if s_ & 3 == 3 and s_ < 19: L.append(f"s_add_u32 {(sX0, sX1)[rt]}, {(sX0, sX1)[rt]}, 4096")
        return L
    def wread(fr):
        addr = (fr & 127) * 1024
        e(f"ds_read_b128 {a(WB0+4*(fr%NWB),4)}, v{1 if addr < 65536 else 2} offset:{addr & 65535}", tag=f"w{fr}")
    def hload(ks, ri):
        return (f"buffer_load_dwordx4 {v(HF+16*(ks&3)+4*ri,4)}, v1, {WS}, {sH[ri]} offen offset:{1024*(ks&3)} sc1", f"h{ks}_{ri}")
    def wdload(fr):
        L = []
        so = sWDO if fr < 5 * NRES else sWNO
        if fr & 3 == 0 or fr == 5 * NRES: L.append(f"s_add_u32 {so}, {sWD}, {(fr & ~3)*1024}")
        L.append((f"buffer_load_dwordx4 {wdreg(fr)}, v1, {WS}, {so} offen offset:{1024*(fr&3)} sc1", f"wd{fr}"))
        return L
    def htouch(p):
        if not OPT["htouch"]: return []
        return [f"s_add_u32 {sTMP}, {sHT}, {4096*p}", (f"buffer_load_dword v249, v{250 if p < 3 else 251}, {WS}, {sTMP} offen sc1", "touch")]
    def sig_h(pi):
        e(f"s_add_u32 {sTMP}, {sHC}, {(0, 64, 256, 512)[pi]}")
        signal(sTMP, WSP)

    G2 = 560
    S = Sched(); at, add = S.at, S.add
    for p in range(3):
        s0 = 160 * (p + 1) + 4
        for rt in range(2):
            base = ACC[p & 1] + 16 * rt; q = (12, 240)[rt]
            add(s0, geglu(base, base + 8, 8, q))
            add(s0, [(f"buffer_store_dwordx4 {v(q,4)}, v1, {WS}, {(sHS, sHS1)[rt]} offen sc1", f"hs{p}")])
        if p < 2: add(s0, [f"s_add_u32 {sHS}, {sHS}, 4096", f"s_add_u32 {sHS1}, {sHS1}, 4096"])
    add(G2 + 4, geglu(ACC[1], ACC[1] + 4, 4, 12) + geglu(ACC[1] + 8, ACC[1] + 12, 4, 14))
    add(G2 + 4, ["v_permlane16_swap_b32 v12, v14", "v_permlane16_swap_b32 v13, v15",
                 (f"buffer_store_dwordx4 v[12:15], v3, {WS}, {sHS3} offen sc1", "hs3")])
    add(G2 + 120, f"""v_lshrrev_b32 v8, 4, v0
    v_and_b32 v9, 15, v0
    v_lshrrev_b32 v11, 1, v8
    v_lshlrev_b32 v11, 8, v11
    v_lshl_add_u32 v11, v9, 4, v11
    v_add_u32 v11, 2048, v11
    v_mov_b32 v15, {BIG}
    v_and_b32 v12, 16, v0
    v_cmp_eq_u32 s[98:99], 0, v12
    s_lshl_b32 {T[8]}, {sG}, 3
    s_lshl_b32 {T[9]}, {sHF}, 2
    s_add_u32 {T[8]}, {T[8]}, {T[9]}
    s_add_u32 {T[8]}, {T[8]}, {sWV}
    v_cndmask_b32 v11, v15, v11, s[98:99]
    s_mul_i32 {T[7]}, {T[8]}, {16*1280}
    s_mul_i32 {T[8]}, {T[8]}, 20480
    s_mul_i32 {T[9]}, {sMI}, 2560
    s_add_u32 {T[8]}, {T[8]}, {T[9]}
    s_add_u32 {T[8]}, {T[8]}, {F1 if layer == 0 else X3}
    s_mul_i32 {T[0]}, {sWV}, 15360
    v_add_u32 v204, {T[0]}, v2""".replace("    ", "").split("\n"))
    for ri in range(1, 4):
        add(G2 + 120, [f"s_add_u32 {T[0]}, {sWV}, {ri}", f"s_and_b32 {T[0]}, {T[0]}, 3", f"s_mul_i32 {T[0]}, {T[0]}, 15360", f"v_add_u32 v{204+ri}, {T[0]}, v2"])
    if layer == 1:
        add(G2 + 120, f"""s_mul_i32 {T[9]}, {sMI}, 160
        s_add_u32 {T[7]}, {T[7]}, {T[9]}
        v_mul_u32_u24 v10, 1280, v9
        v_lshrrev_b32 v13, 1, v8
        v_lshl_add_u32 v13, v13, 4, v10
        v_lshl_add_u32 v10, v8, 4, v10
        v_cndmask_b32 v13, v15, v13, s[98:99]
        s_mov_b32 s12, s{P_OUT}
        s_mov_b32 s13, s{P_OUT+1}
        s_mov_b32 s14, {ACT}
        s_mov_b32 s15, 0x20000
        s_mov_b32 s96, {f32(INVA2)}""".replace("    ", "").split("\n"))
        add(G2 + 224, [(f"buffer_load_dwordx4 v[48:51], v1, {WS}, {T[8]} offen sc1", "x3"),
                       (f"buffer_load_dwordx4 v[52:55], v1, {WS}, {T[8]} offen offset:1024 sc1", "x3"),
                       (f"buffer_load_dwordx4 v[56:59], v11, {WS}, {T[8]} offen sc1", "x3")])
    else:
        add(G2 + 120, [f"s_lshl_b32 {T[7]}, {sG}, 1", f"s_add_u32 {T[7]}, {T[7]}, {sHF}", f"s_lshl_b32 {T[7]}, {T[7]}, 8",
                       f"s_add_u32 {T[7]}, {T[7]}, {CNT + 32 * 256 + 128}"])
    order = []
    for ks in range(14 - 2 * OPT["redo"]):
        for ri in ((0, 1, 2, 3) if ks < 13 else (1, 2, 3, 0)):
            for tau in range(5): order.append((ks, ri, tau))
    if OPT["redo"]:
        order += [(ks, ri, tau) for ri in (1, 2, 3, 0) for ks in (12, 13) for tau in range(5)]
    for ri in range(1, 4):
        for tau in range(5):
            add(G2 + order.index((13, ri, tau)) + 6, [(f"ds_write_b128 v{204+ri}, {v(acc2(tau,ri),4)} offset:{(ri-1)*5120+1024*tau}", "rw")])
    if layer == 0:
        for k, sg in enumerate(take(OPT["pre_g2"])):
            st = dma_stage(sg); t0 = G2 + OPT["pre_g2_at"] + 12 * k
            at(t0, st[:2])
            for d in range(4): at(t0 + 3 * d + 1, [st[2 + d]])
    for i in range(OPT["xup"]):
        for it in xload(i): put(it)
    for i in range(OPT["xup"], 40):
        at(4 * (i - OPT["xup"]) + 1, xload(i))
    if layer == 0 and not OPT["x_nowd"]:
        n0 = OPT["wd_n"] if OPT["wd_early"] else 0
        n = 5 * NRES - n0
        for fr in range(n):
            at(OPT["wd0"] + (fr * (OPT["wd1"] - OPT["wd0"])) // n, wdload(n0 + fr))
    for k, fr in enumerate(range(5 * NRES, 70)):
        at(485 + 16 * k if k < 4 else G2 + OPT["wn0"] + OPT["wn_gap"] * (k - 4) + 2, wdload(fr))
    chk = [OPT["chk0"], OPT["chk1"], OPT["chk2"], OPT["chk3"]]
    for p, va in enumerate((244, 245, 246, 248)):
        if OPT["x_nochk"]: continue
        at(chk[p] - OPT["poll_lead"], [(f"global_load_dword v247, v{va}, {WSP} sc1", "poll247")])
        at(chk[p], [check_or_spin(247, va, 16)] + htouch(p))
    for ks in range(4):
        for ri in range(4):
            at(489 + 16 * ks + 2 * ri, [hload(ks, ri)])
    for ks in range(4, 14):
        t0 = G2 + 20 * (ks - (OPT["hd1"] if ks < 8 else OPT["hd"]))
        assert (t0 > chk[ks >> 2] or OPT["x_nochk"]) and OPT["hd"] <= 3
        if ks & 3 == 0: at(t0, [f"s_add_u32 {sH[ri]}, {sH[ri]}, 4096" for ri in range(4)])
        for k, ri in enumerate((1, 2, 3, 0) if OPT["redo"] and ks >= 12 else range(4)):
            if OPT["redo"] and ks == 13: t0 = G2 + 20 * (12 - OPT["hd"]) + 2
            if not OPT["x_nohload"]: at(t0 + 4 * k + 2, [hload(ks, ri)])
    sig_after = {"hs0": 0, "hs1": 1, "hs2": 2, "hs3": 3}
    issued = {}
    def hook(it, slot):
        if isinstance(it, tuple) and it[1] in sig_after and not S.pending(it[1]): issued[it[1]] = slot
    S.hook = hook
    dma_t = 4 * (40 - OPT["xup"]) + 3
    for n in range(-2 * PD, G2 + 280):
        ready = [t for t in sig_after if t in issued and n - issued[t] >= OPT["lag"]]
        used = 0
        if n < G2 and n % 2 == 0:
            nxt = n // 2 + PD
            if nxt < 280 and nxt % 32 == 0:
                sg = nxt // 16
                e.wait(vm=[f"dma{sg}", f"dma{sg + 1}"] + ready)
                if not OPT["x_nobar"] or ready: e.raw("s_barrier")
                for t in ready:
                    assert n < chk[sig_after[t]] - 20, (t, n)
                    sig_h(sig_after.pop(t))
                used += 2
                for k in (sg + 4, sg + 5):
                    if 8 <= k <= 17 and not OPT["x_nodma"]:
                        st = dma_stage(k)
                        dma_t = max(dma_t, n + 1)
                        at(dma_t, st[:2])
                        for d in range(4): at(dma_t + OPT["dma_gap"] * d + 2, [st[2 + d]])
                        dma_t += 4 * OPT["dma_gap"]
            if nxt < 280: wread(nxt); used += 1
        elif n >= OPT["pub_from"] and ready and OPT["x_nopub"]:
            for t in ready: sig_after.pop(t)
        elif n >= OPT["pub_from"] and ready:
            e.wait(vm=ready)
            e.raw("s_barrier")
            for t in ready:
                assert n < chk[sig_after[t]], (t, n)
                print(f"layer {layer}: {t} issued at {issued[t]} published at {n}", file=sys.stderr)
                sig_h(sig_after.pop(t))
            used += 2
        if n < 0: continue
        if n < G2:
            fr, rt = n >> 1, n & 1
            p = min(fr // 80, 3); fi = fr - 80 * p
            if p < 3: s_, acc = fi >> 2, ACC[p & 1] + 16 * rt + 8 * (fi & 1) + 4 * ((fi >> 1) & 1)
            else: s_, acc = fi >> 1, ACC[1] + 8 * rt + 4 * (fi & 1)
            if fi == 0 and p >= 2: assert f"hs{p-2}" in issued
            wv_, wl_ = [f"x{2*s_}", f"x{2*s_+1}"], [f"w{k}" for k in range(fr, fr - fr % OPT["lgw"] + OPT["lgw"])]
            mf = f"v_mfma_f32_16x16x32_bf16 {v(acc,4)}, {a(WB0+4*(fr%NWB),4)}, {v(XR+8*s_+4*rt,4)}, {v(acc,4) if s_ else 0}"
        else:
            ks, ri, tau = order[n - G2]
            fr = 5 * ks + tau
            if fr >= 5 * NRES: assert "hs3" in issued
            wv_, wl_ = [f"h{ks}_{k}" for k in (range(4) if OPT["ksw"] else [ri])] + [f"wd{k}" for k in range(5 * ks, 5 * ks + 5)], []
            acc = v(acc2(tau, ri), 4)
            mf = f"v_mfma_f32_16x16x32_bf16 {acc}, {wdreg(fr)}, {v(HF+16*(ks&3)+4*ri,4)}, {acc if ks else 0}"
        if e.would_wait(wv_, wl_): used += 1
        extra = OPT["x3"] if 484 <= n < G2 and n & 1 else OPT["x2"] if G2 <= n < G2 + 60 and n & 1 else 0
        S.gap(n, used, extra)
        if OPT["ksprof"] == layer + 1 and n >= G2 and (n - G2) % 20 == 0: lstamp(f"ks{(n-G2)//20}")
        if OPT["ksprof"] == layer + 1 and n == G2 + 268: lstamp(None)
        if n == G2 and not OPT["ksprof"]: stamp(f"g1_done{layer}")
        if OPT["passprof"] == 1 and n in (1, 160, 320, 480): stamp(f"L{layer}_at{n}")
        if OPT["passprof"] == 1 and n - G2 in (80, 160): stamp(f"L{layer}_g2at{n-G2}")
        e.wait(vm=wv_, lg=wl_)
        e(mf)
    while S.fill: put(S.fill.pop(0)[1])
    assert not S.side and not sig_after, (S.side, sig_after)
    print(f"layer {layer}: {S.over} issue slots over budget", file=sys.stderr)
    stamp(f"g2_mfma{layer}")
    e.wait_all(vm=False)
    e.raw("s_barrier")
    RD = 160
    for k in range(11):
        e(f"ds_read_b128 {v(RD+4*k,4)}, v204 offset:{1024*k}", tag=f"r{k}")
    for k in range(11, 15):
        e(f"ds_read_b128 {v(RD+4*k+4,4)}, v204 offset:{1024*k}", tag=f"r{k}")
    if layer == 1:
        e.wait(vm="x3")
        for i in range(24):
            e(f"v_and_b32 v{16+i}, {sMASK}, v{48+(i>>1)}" if i & 1 else f"v_lshlrev_b32 v{16+i}, 16, v{48+(i>>1)}")
    for k in range(15):
        e.wait(lg=f"r{k}")
        d = acc2(k % 5, 0); r = RD + 4 * k + (4 if k >= 11 else 0)
        for h in range(2):
            e(f"v_pk_add_f32 {v(d+2*h,2)}, {v(d+2*h,2)}, {v(r+2*h,2)}")
    d = acc2(4, 0)
    if layer == 0:
        for g in range(2):
            for i in range(4):
                dd = acc2(2 * g + (i >> 1), 0) + 2 * (i & 1)
                e(f"v_cvt_pk_bf16_f32 v{16+4*g+i}, v{dd}, v{dd+1}")
            e(f"buffer_store_dwordx4 {v(16+4*g,4)}, v1, {WS}, {T[8]} offen offset:{1024*g} sc1", tag="st")
        e(f"""v_cvt_pk_bf16_f32 v24, v{d}, v{d+1}
        v_cvt_pk_bf16_f32 v25, v{d+2}, v{d+3}
        v_mov_b32 v26, v24
        v_mov_b32 v27, v25
        v_permlane16_swap_b32 v24, v26
        v_permlane16_swap_b32 v25, v27
        buffer_store_dwordx4 v[24:27], v11, {WS}, {T[8]} offen sc1""", tag="st")
        if not OPT["sent_f"]:
            r2_pre()
            e.wait(vm="st")
        e.raw("s_barrier")
        signal(T[7], WSP)
        e(f"v_mov_b32 v7, {T[7]}")
        if OPT["sent_f"]:
            r_prefill(OPT["pre_a2"], 6)
            r2_pre()
            bg_flush()
        else:
            prefill(take(OPT["pre_a2"]))
    else:
        for g in range(2):
            for i in range(4):
                dd = acc2(2 * g + (i >> 1), 0) + 2 * (i & 1)
                e(f"v_pk_fma_f32 {v(dd,2)}, {v(dd,2)}, s[96:97], {v(16+8*g+2*i,2)} op_sel_hi:[1,0,1]")
            for i in range(4):
                dd = acc2(2 * g + (i >> 1), 0) + 2 * (i & 1)
                e(f"v_cvt_pk_bf16_f32 v{60+4*g+i}, v{dd}, v{dd+1}")
            e(f"buffer_store_dwordx4 {v(60+4*g,4)}, v10, {SA}, {T[7]} offen offset:{64*g}{OUTP}", tag="st")
        for i in range(4):
            e(f"v_mov_b32 v{44+i}, v{d+i}")
        for i in range(4):
            e(f"v_permlane16_swap_b32 v{d+i}, v{44+i}")
        for i in range(4):
            dd = d + 2 * i if i < 2 else 44 + 2 * (i - 2)
            e(f"v_pk_fma_f32 {v(dd,2)}, {v(dd,2)}, s[96:97], {v(32+2*i,2)} op_sel_hi:[1,0,1]")
        e(f"""v_cvt_pk_bf16_f32 v68, v{d}, v{d+1}
        v_cvt_pk_bf16_f32 v69, v{d+2}, v{d+3}
        v_cvt_pk_bf16_f32 v70, v44, v45
        v_cvt_pk_bf16_f32 v71, v46, v47
        buffer_store_dwordx4 v[68:71], v13, {SA}, {T[7]} offen offset:128{OUTP}""", tag="st")
        L = e.uid("epo")
        e.raw(f"""s_or_b32 {T[0]}, s2, {sWV}
        s_cmp_lg_u32 {T[0]}, 0
        s_cbranch_scc1 {L}
        s_mov_b64 exec, 1
        v_mov_b32 v6, {EPO}
        v_mov_b32 v7, {sTAG}
        global_store_dword v6, v7, {WSP} sc1
        s_mov_b64 exec, -1
        {L}:""")
    stamp(f"g2_done{layer}")

def finish():
    if OPT["prof"]:
        e.wait_all()
        stamp("end")
        e(f"""s_lshl_b32 {T[0]}, s2, 2
        s_add_u32 {T[0]}, {T[0]}, {sWV}
        s_lshl_b32 {T[0]}, {T[0]}, 8
        s_add_u32 {T[0]}, {T[0]}, {PROF}
        v_lshlrev_b32 v1, 2, v0
        buffer_store_dword v{VST}, v1, {WS}, {T[0]} offen""")
        if OPT["dbgout"]:
            e(f"""s_cmp_lg_u32 s2, {OPT["dbgout"] - 1}
            s_cbranch_scc1 L_exit
            s_cmp_lg_u32 {sWV}, 0
            s_cbranch_scc1 L_exit
            v_readlane_b32 {T[1]}, v{VST}, 0
            s_mov_b64 exec, 0xffff
            v_subrev_u32 v6, {T[1]}, v{VST}
            global_store_dword v1, v6, {DBG}""")
    e.label("L_exit")
    e("s_endpgm")

entry()
p0()
if OPT["stubs"]: e.raw("s_branch L_conv\n.p2align 12\nL_conv:")
conv()
e("s_branch L_r1")
e.vm = ["warm"] if OPT["warm"] == 2 else []; e.vmd = [{("v", 254)}] if OPT["warm"] == 2 else []; e.lg = []
shuffle()
r1()
ffn(0)
r2()
ffn(1)
finish()
nops = e.pad()

def insert_stubs():
    import subprocess, re, tempfile, os
    extra = "".join(f"L_page{p}:\n" for p in range(1, NPAGES))
    src = f'.amdgcn_target "amdgcn-amd-amdhsa--gfx950"\n.text\n{NAME}:\n' + e.text() + extra
    d = tempfile.mkdtemp()
    open(d + "/a.s", "w").write(src)
    subprocess.run(["clang", "-x", "assembler", "-target", "amdgcn-amd-amdhsa", "-mcpu=gfx950", "-c", d + "/a.s", "-o", d + "/a.o"], check=True)
    dis = subprocess.run(["llvm-objdump", "-d", "--mcpu=gfx950", d + "/a.o"], capture_output=True, text=True).stdout
    dis = dis[dis.index("<L_conv>:"):]
    sizes = [4 * len(m.group(1).split()) for m in re.finditer(r"// [0-9A-F]+: ([0-9A-F ]+)", dis)]
    start = next(n for n, i in enumerate(e.ins) if i.text == "L_conv:")
    real = [i for i in e.ins[start:] if i.states]
    assert len(sizes) == len(real), (len(sizes), len(real))
    out = e.ins[:start]; off = 0; page = 1; k = 0; prev = None
    for i in e.ins[start:]:
        if i.states:
            if off >= 4096 * page and page < NPAGES and not (prev and prev.op == "s_getpc_b64"):
                out += [Ins(f"s_branch L_past{page}"), Ins(f"L_page{page}:"), Ins("s_setpc_b64 s[98:99]"), Ins(f"L_past{page}:")]
                off += 8; page += 1
            off += sizes[k]; k += 1; prev = i
        out.append(i)
    for p in range(page, NPAGES):
        out += [Ins(f"L_page{p}:"), Ins("s_setpc_b64 s[98:99]")]
    e.ins = out
    print(f"{off} bytes of code, {page - 1} page stubs", file=sys.stderr)
if OPT["stubs"]: insert_stubs()

hdr = open("interleave_layers__ssm_conv_h3__glu_gated_geglu__prompt.s.ref").read().split("; Override launch")[0]
out = hdr + f"""; Single persistent launch: 256 workgroups, one per CU, phases chained by counters in d_debug / d_ws.
; @launch grid=(256,1,1) block=(256,1,1) lds={LDS_BYTES}
.amdgcn_target "amdgcn-amd-amdhsa--gfx950"
.text
.globl {NAME}
.p2align 8
.type {NAME},@function
{NAME}:
""" + e.text() + f""".section .rodata,"a"
.p2align 6
.amdhsa_kernel {NAME}
  .amdhsa_next_free_vgpr 512
  .amdhsa_next_free_sgpr 102
  .amdhsa_accum_offset 256
  .amdhsa_group_segment_fixed_size 0
  .amdhsa_kernarg_size 104
  .amdhsa_user_sgpr_count 2
  .amdhsa_user_sgpr_kernarg_segment_ptr 1
  .amdhsa_system_sgpr_workgroup_id_x 1
  .amdhsa_float_denorm_mode_32 3
.end_amdhsa_kernel
"""
open(sys.argv[1], "w").write(out)
import json
json.dump(dict(stamps=stamp_names, KVT=KVT, YB=YB, XN=XN, X3=X3, F1=F1, HB=HB, WGU=WGU, WDP=WDP, PROF=PROF, CNT=CNT), open(sys.argv[1] + ".json", "w"))
print(f"{len(e.ins)} lines, {nops} padded wait states", file=sys.stderr)
```

```python
import re

_REG = re.compile(r"^-?(?:abs\()?\|?([vas])(?:(\d+)|\[(\d+):(\d+)\])\|?\)?$")

def regs_of(tok):
    tok = tok.strip()
    if tok in ("vcc", "exec"):
        return {(tok, 0)}
    if tok == "m0":
        return {("m0", 0)}
    m = _REG.match(tok)
    if not m:
        return set()
    k = m.group(1)
    if m.group(2) is not None:
        return {(k, int(m.group(2)))}
    return {(k, i) for i in range(int(m.group(3)), int(m.group(4)) + 1)}

TRANS = ("v_exp_f32", "v_log_f32", "v_rcp_f32", "v_rsq_f32", "v_sqrt_f32", "v_sin_f32", "v_cos_f32")

class Ins:
    __slots__ = ("text", "op", "kind", "dst", "src", "passes", "srcc", "dpp", "states", "wide_store", "lds_dma")
    def __init__(self, text):
        self.text = text
        t = text.split(";")[0].strip()
        self.dst = set(); self.src = set(); self.srcc = set()
        self.passes = 0; self.dpp = False; self.states = 1; self.wide_store = set(); self.lds_dma = False
        if not t or t.endswith(":") or t.startswith("."):
            self.op = t; self.kind = "label" if t.endswith(":") else "none"; self.states = 0
            return
        parts = t.split(None, 1)
        op = self.op = parts[0]
        rest = parts[1] if len(parts) > 1 else ""
        rest = re.sub(r"\s+\w+:\[[^\]]*\]", "", rest) if "op_sel" in rest or "neg_" in rest else rest
        if "quad_perm" in rest:
            rest = re.sub(r"quad_perm:\[[^\]]*\]", "quad_perm", rest)
        ops = [x.strip() for x in rest.split(",")] if rest else []
        if ops:
            last = ops[-1].split()
            mods = last[1:]; ops[-1] = last[0] if last else ""
        else:
            mods = []
        R = [regs_of(x) for x in ops]
        if op == "s_nop":
            self.kind = "salu"; self.states = int(ops[0], 0) + 1
        elif op.startswith("v_mfma"):
            self.kind = "mfma"; self.passes = 8 if "32x32" in op else 4
            self.dst = R[0]; self.src = R[1] | R[2] | R[3]; self.srcc = R[3]
        elif op.startswith("v_"):
            self.kind = "valu"
            self.dpp = any(m.startswith(("row_", "quad_perm", "wave_")) for m in mods) or "_dpp" in op
            if op.startswith("v_permlane") and "swap" in op:
                self.dst = R[0] | R[1]; self.src = R[0] | R[1]
            elif op.startswith(("v_add_co", "v_sub_co", "v_addc_co", "v_subb_co")):
                self.dst = R[0] | R[1]; self.src = set().union(*R[2:])
            else:
                self.dst = R[0]; self.src = set().union(*R[1:]) if len(R) > 1 else set()
                if op.startswith(("v_fmac", "v_dot2c", "v_writelane", "v_pk_fmac")) or self.dpp:
                    self.src |= R[0]
                if op.startswith("v_cndmask") and len(R) == 3:
                    self.src |= {("vcc", 0)}
        elif op.startswith("ds_"):
            self.kind = "ds"
            if op.startswith("ds_read") or op.startswith("ds_bpermute") or op.startswith("ds_swizzle"):
                self.dst = R[0]; self.src = set().union(*R[1:])
            else:
                self.src = set().union(*R)
        elif op.startswith("buffer_") or op.startswith("global_"):
            self.kind = "vmem"
            if op in ("buffer_wbl2", "buffer_inv"):
                pass
            elif "lds" in mods:
                self.lds_dma = True; self.src = set().union(*R) | {("m0", 0)}
            elif "_load" in op:
                self.dst = R[0]; self.src = set().union(*R[1:])
            else:
                self.src = set().union(*R)
                if op.endswith(("x3", "x4")):
                    self.wide_store = R[0] if op.startswith("buffer_") else R[1]
        elif op.startswith(("s_load", "s_memtime", "s_memrealtime")):
            self.kind = "smem"; self.dst = R[0]; self.src = set().union(*R[1:]) if len(R) > 1 else set()
        elif op.startswith(("s_branch", "s_cbranch", "s_setpc", "s_swappc", "s_endpgm")):
            self.kind = "branch"
        else:
            self.kind = "salu"
            if op.startswith(("s_cmp", "s_waitcnt", "s_barrier", "s_sleep", "s_setprio")):
                self.src = set().union(*R) if R else set()
            elif R:
                self.dst = R[0]; self.src = set().union(*R[1:]) if len(R) > 1 else set()
                if "saveexec" in op:
                    self.dst = self.dst | {("exec", 0)}

def _vec(s):
    return {r for r in s if r[0] in ("v", "a")}
def _sca(s):
    return {r for r in s if r[0] in ("s", "vcc")}

def required_states(p, c):
    need = 0
    if p.kind == "valu":
        pv = _vec(p.dst); ps = _sca(p.dst)
        if c.kind == "mfma" and pv & c.src: need = max(need, 2)
        if c.kind == "valu":
            if c.dpp and pv & c.src: need = max(need, 2)
            if c.op.startswith("v_permlane") and pv & c.src: need = max(need, 2)
            if c.op.startswith(("v_readlane", "v_readfirstlane")) and pv & c.src: need = max(need, 1)
            if p.op.startswith(TRANS) and pv & c.src: need = max(need, 1)
            if ps & c.src: need = max(need, 4 if c.op.startswith(("v_readlane", "v_writelane")) else 2)
        if c.kind == "vmem" and ps & c.src: need = max(need, 5)
        if c.kind in ("salu", "smem", "branch") and ps & c.src: need = max(need, 1)
    elif p.kind == "mfma":
        big = p.passes + 4
        if c.kind == "mfma":
            if p.dst & (c.src - c.srcc): need = max(need, big)
            if p.dst & c.srcc and not (p.dst == c.srcc and p.passes == c.passes): need = max(need, p.passes + 2)
            if p.dst & c.dst and not (p.dst & c.srcc): need = max(need, p.passes + 2)
        elif c.kind == "valu":
            if p.dst & (c.src | c.dst): need = max(need, big)
            if p.srcc & c.dst: need = max(need, p.passes - 1)
        elif c.kind in ("vmem", "ds"):
            if p.dst & (c.src | c.dst): need = max(need, big)
    elif p.kind == "vmem":
        if p.wide_store and (p.wide_store & c.dst): need = max(need, 2)
    elif p.kind == "salu":
        if ("m0", 0) in p.dst and c.lds_dma: need = max(need, 1)
    return need

class Emit:
    def __init__(self):
        self.ins = []
        self.uid_n = 0
        self.vm = []
        self.lg = []
        self.vmd = []
        self.lgd = []
    def uid(self, base="L"):
        self.uid_n += 1
        return f"{base}{self.uid_n}"
    def raw(self, text):
        for l in text.split("\n"):
            l = l.strip()
            if l:
                i = Ins(l); self._check(i)
                self.ins.append(i)
    def _sync(self):
        self.vmd = self.vmd[len(self.vmd) - len(self.vm):] if self.vm else []
        self.lgd = self.lgd[len(self.lgd) - len(self.lg):] if self.lg else []
    def _check(self, i):
        self._sync()
        for q, kind in ((self.vmd, "vmem"), (self.lgd, "ds")):
            for d in q:
                hit = d & (i.src | (i.dst if i.kind != kind else set()))
                if hit:
                    raise AssertionError(f"'{i.text}' touches {sorted(hit)} while a load into it is outstanding")
    def __call__(self, text, tag=None):
        for l in text.split("\n"):
            l = l.strip()
            if not l:
                continue
            i = Ins(l)
            self._check(i)
            self.ins.append(i)
            if i.kind == "vmem":
                self.vm.append(tag); self.vmd.append(i.dst)
            elif i.kind == "ds":
                self.lg.append(tag); self.lgd.append(i.dst)
    def label(self, name):
        self.ins.append(Ins(name + ":"))
    def _pending(self, q, tags):
        idx = -1
        for n, t in enumerate(q):
            if t in tags:
                idx = n
        return idx
    def would_wait(self, vm=(), lg=()):
        return self._pending(self.vm, set(vm)) >= 0 or self._pending(self.lg, set(lg)) >= 0
    def wait(self, vm=(), lg=()):
        parts = []
        if not isinstance(vm, (tuple, list, set)): vm = (vm,)
        if not isinstance(lg, (tuple, list, set)): lg = (lg,)
        i = self._pending(self.vm, set(vm))
        if i >= 0:
            n = min(len(self.vm) - 1 - i, 63)
            parts.append(f"vmcnt({n})"); self.vm = self.vm[len(self.vm) - n:] if n else []
        i = self._pending(self.lg, set(lg))
        if i >= 0:
            n = min(len(self.lg) - 1 - i, 15)
            parts.append(f"lgkmcnt({n})"); self.lg = self.lg[len(self.lg) - n:] if n else []
        if parts:
            self.raw("s_waitcnt " + " ".join(parts))
    def wait_all(self, vm=True, lg=True):
        parts = []
        if vm: parts.append("vmcnt(0)"); self.vm = []
        if lg: parts.append("lgkmcnt(0)"); self.lg = []
        self.raw("s_waitcnt " + " ".join(parts))
    def pad(self):
        targets = {}
        for i in self.ins:
            if i.kind == "branch" and i.op.startswith(("s_branch", "s_cbranch")):
                targets.setdefault(i.text.split()[-1], []).append(i)
        nops = 0
        changed = True
        while changed:
            changed = False
            pos = {id(i): n for n, i in enumerate(self.ins)}
            def scan(n, dist, c, seen):
                need = 0
                while n >= 0 and dist < 20:
                    p = self.ins[n]
                    if p.kind == "label":
                        for b in targets.get(p.text[:-1], []):
                            if (id(b), dist) not in seen:
                                seen.add((id(b), dist))
                                need = max(need, scan(pos[id(b)] - 1, dist + 1, c, seen))
                    elif p.kind == "branch" and p.op in ("s_branch", "s_endpgm", "s_setpc_b64"):
                        break
                    elif p.states:
                        need = max(need, required_states(p, c) - dist)
                        dist += p.states
                    n -= 1
                return need
            out = []
            for n, c in enumerate(self.ins):
                if c.states and not changed:
                    need = scan(n - 1, 0, c, set())
                    if need > 0:
                        out.append(Ins(f"s_nop {min(need, 16) - 1}")); nops += min(need, 16)
                        changed = True
                out.append(c)
            self.ins = out
        return nops
    def text(self):
        return "\n".join((i.text if i.kind in ("label", "none") else "    " + i.text) for i in self.ins) + "\n"
```

```python
import sys, math, struct
from emit import Emit, Ins

NAME = "interleave_layers__ssm_conv_h3__glu_gated_geglu__prompt_kernel"
OPT = dict(prof=0, nt_in=0, nt_w=0, stop=99, warm=2, shufwait=0, bud=7, bud3=12, bud2=12, lag=50, poll_lead=45, chk0=480, chk1=578, chk2=678, chk3=758, hd=2, wn0=20, wn_gap=14, ld0=485, ldgap=4, maxlead=80, x_nodma=0, x_nobar=0, x_nofill=0, passprof=0, ksprof=0, xup=10, wd0=10, wd1=600, htouch=0, dbgspin=0, pre_a1=3, pre_r1=2, pre_g2=0, pre_g2_at=238, pre_a2=3, pre_r2=2, pre_every=8, pre_now=4, bar2=1, dma_gap=7, pd=8, lgw=4, slack=3, x3=4, x2=2, pub_from=480, hd1=3, ksw=0, sig_q=2, wtouch=0, go=1, go_early=1, cx=1, stubs=1, redo=1, nap=0, map=4, wnt=0, x_plain=0, x_nown=0, late_pre=0, rev=1, w3=0, a1w3=0, hier=0, outpol=0, dbgout=0, sent_y=0, sent_f=0, pwave=0, x_nochk=0, x_nopub=0, x_nohload=0, x_nowd=0, wd_early=0, wd_chk=40, wd_gap=4, wd_n=55, xtouch=0)
for a in sys.argv[2:]:
    k, v = a.split("="); OPT[k] = int(v)

C1 = 2.0 * math.sqrt(2.0 / math.pi) * math.log2(math.e); C2 = C1 * 0.044715
ALPHA = C2 ** (1.0 / 3.0); KAPPA = C1 / ALPHA; INVA2 = 1.0 / (ALPHA * ALPHA)
ACT = 0x280000
CNT = 0; EPO = 0xA000; P0F = 0xA080; GOF = 0xA800; P0W = 0xB000; WDF = 0xD000; PROF = 0x10000
KVT = 0x100000; YB = KVT + ACT; XN = [YB + ACT, YB + 2 * ACT]; X3 = YB + 3 * ACT; F1 = YB + 4 * ACT
HB = [F1 + ACT, F1 + ACT + 0x700000]
WGU = HB[1] + 0x700000; WDP = WGU + 0x460000; WS_END = WDP + 0x230000
WT = 286720
RING = 0; ST_X = 131072; ST_Y = ST_X + 12288; RED = ST_Y + 12288
P0L = 0; F0 = 16384; FCH = 16640; FCP = 4160; U0 = F0 + 4 * FCH; UCH = 4640; YA = U0 + 4 * UCH; YCS = 4624
SHST = 20992
LDS_BYTES = 163840
SPIN_LIMIT = 400000
WS = "s[8:11]"; SA = "s[12:15]"; SB = "s[44:47]"; SC = "s[48:51]"
P_Q, P_K, P_V, P_SHK, P_SSM, P_D, P_WG, P_WU, P_WD, P_OUT, P_DBG, P_WS = 16, 18, 20, 22, 24, 26, 30, 32, 34, 36, 38, 40
sWV, sX, sSLOT, sG, sHF, sMI, sCI, sCGP, sMASK, sRB, sJT = "s52", "s53", "s54", "s55", "s56", "s57", "s58", "s59", "s60", "s61", "s62"
sDV = "s63"; sTAG = "s42"; sNTAG = "s43"
T = [f"s{i}" for i in range(64, 84)]
sSPIN = "s84"; sWB = "s85"; sWO = "s86"; sM0 = "s87"; sH = ["s88", "s89", "s90", "s91"]; sHS = "s92"; sHS3 = "s93"; sWD = "s94"
DBG = f"s[{P_DBG}:{P_DBG+1}]"; WSP = f"s[{P_WS}:{P_WS+1}]"
NT_IN = " nt" if OPT["nt_in"] else ""
NT_W = " nt" if OPT["nt_w"] else ""
BIG = "0x80000000"
WNT = " nt" if OPT["wnt"] else ""
OUTP = ("", " sc1", " nt", " sc0 sc1")[OPT["outpol"]]

e = Emit()
def v(i, n=1): return f"v{i}" if n == 1 else f"v[{i}:{i+n-1}]"
def a(i, n=1): return f"a{i}" if n == 1 else f"a[{i}:{i+n-1}]"
def f32(x): return "0x%08x" % struct.unpack("<I", struct.pack("<f", x))[0]

def srd(dst, ptr, nbytes, add=None):
    d = int(dst[2:dst.index(":")])
    if add is None:
        e(f"s_mov_b32 s{d}, s{ptr}\ns_mov_b32 s{d+1}, s{ptr+1}")
    else:
        e(f"s_add_u32 s{d}, s{ptr}, {add}\ns_addc_u32 s{d+1}, s{ptr+1}, 0")
    e(f"s_mov_b32 s{d+2}, {nbytes}\ns_mov_b32 s{d+3}, 0x20000")

VST = 5
stamp_names = []
def stamp(name):
    if not OPT["prof"]:
        return
    i = stamp_names.index(name) if name in stamp_names else len(stamp_names)
    if name not in stamp_names: stamp_names.append(name)
    e.raw("s_memrealtime s[4:5]\ns_memtime s[6:7]")
    e.wait_all(vm=False)
    e(f"v_writelane_b32 v{VST}, s4, {i}\nv_writelane_b32 v{VST}, s6, {32+i}")

light_prev = [None]
def lstamp(name):
    if light_prev[0] is not None:
        i, r = light_prev[0]
        e.raw(f"s_waitcnt lgkmcnt(0)\nv_writelane_b32 v{VST}, s{r}, {32+i}\nv_writelane_b32 v{VST}, 1, {i}")
        light_prev[0] = None
    if name:
        stamp_names.append(name); i = len(stamp_names) - 1
        e.raw("s_memtime s[6:7]"); light_prev[0] = (i, 6)

def rstamp(name):
    if OPT['passprof'] == 3: stamp(name)

def fstamp(name):
    if not OPT['passprof'] and not OPT['ksprof']: stamp(name)

spin_sites = []
def spin_report(vt):
    if not OPT["dbgspin"]:
        return
    site = len(spin_sites); spin_sites.append(site)
    L = e.uid("rep")
    e.raw(f"""s_cmp_lt_u32 {sSPIN}, 3000
    s_cbranch_scc1 {L}
    s_mov_b64 exec, 1
    v_mov_b32 v252, {128 + 4 * site}
    v_mov_b32 v253, 1
    global_atomic_add v252, v253, {DBG} sc1
    s_mov_b64 exec, -1
    s_waitcnt vmcnt(0)
    {L}:""")

def spin(vaddr, base, target, vt=6, nap=0):
    L = e.uid("spin"); D = e.uid("spun")
    e.raw(f"""s_mov_b32 {sSPIN}, 0
    {L}:
    global_load_dword v{vt}, v{vaddr}, {base} sc1
    {f"s_sleep {nap}" if nap else ""}
    s_add_u32 {sSPIN}, {sSPIN}, 1
    s_cmp_gt_u32 {sSPIN}, {SPIN_LIMIT}
    s_cbranch_scc1 {D}
    s_waitcnt vmcnt(0)
    v_cmp_gt_u32 vcc, {target}, v{vt}
    s_cbranch_vccnz {L}
    {D}:
    s_waitcnt vmcnt(0)""")
    spin_report(vt)

def tag_load():
    e(f"v_mov_b32 v255, {EPO}\nglobal_load_dword v255, v255, {WSP} sc1", tag="epo")

def tag_ready():
    e.wait(vm="epo")
    e(f"v_readfirstlane_b32 {sTAG}, v255")
    e.wait_all(vm=False)
    e(f"s_add_u32 {sTAG}, {sTAG}, 1\ns_not_b32 {sNTAG}, {sTAG}")

def tag_bad(r, n):
    e.raw(f"v_xor_b32 v{r}, {sTAG}, v{r}\nv_xor_b32 v{r+1}, {sNTAG}, v{r+1}\nv_or_b32 v{r}, v{r}, v{r+1}")
    for k in range(1, n):
        e.raw(f"v_xor_b32 v{r+2*k}, {sTAG}, v{r+2*k}\nv_xor_b32 v{r+2*k+1}, {sNTAG}, v{r+2*k+1}\nv_or3_b32 v{r}, v{r}, v{r+2*k}, v{r+2*k+1}")
    e.raw(f"v_cmp_ne_u32 vcc, 0, v{r}")

def spin_tag(loads, r, n):
    L = e.uid("spin"); D = e.uid("spun")
    e.raw(f"s_mov_b32 {sSPIN}, 0\n{L}:\n{loads}")
    e.raw(f"""s_add_u32 {sSPIN}, {sSPIN}, 1
    s_cmp_gt_u32 {sSPIN}, {SPIN_LIMIT}
    s_cbranch_scc1 {D}
    s_waitcnt vmcnt(0)""")
    tag_bad(r, n)
    e.raw(f"s_cbranch_vccnz {L}\n{D}:\ns_waitcnt vmcnt(0)")
    spin_report(r)

def all_loads(va, vb, r):
    return f"global_load_dwordx4 v[{r}:{r+3}], v{va}, {WSP} sc1\nglobal_load_dwordx4 v[{r+4}:{r+7}], v{vb}, {WSP} sc1"

def all_addr(va, vb):
    e(f"v_add_u32 v{va}, {P0F}, v1\nv_and_b32 v{vb}, 0xf0, v1\nv_add_u32 v{vb}, {P0F+1024}, v{vb}")

NPAGES = 12
def page_calls(waves):
    if not OPT["stubs"]: return
    D = e.uid("pg")
    for k, w in enumerate(waves):
        L = e.uid("pgw")
        e.raw(f"s_cmp_lg_u32 {sWV}, {w}\ns_cbranch_scc1 {L}")
        for p in range(1 + k, NPAGES, len(waves)):
            C = e.uid("pc")
            e.raw(f"""s_getpc_b64 s[96:97]
            {C}:
            s_add_u32 s96, s96, L_page{p}-{C}
            s_addc_u32 s97, s97, (L_page{p}-{C})>>32
            s_swappc_b64 s[98:99], s[96:97]""")
        e.raw(f"s_branch {D}\n{L}:")
    e.raw(f"{D}:")

def wave0(fn):
    L = e.uid("w0")
    e.raw(f"s_cmp_lg_u32 {sWV}, 0\ns_cbranch_scc1 {L}")
    fn()
    e.raw(f"{L}:")

def wait_flag(vaddr, base, target, nap=0):
    wave0(lambda: spin(vaddr, base, target, nap=nap))
    e.raw("s_barrier")

def signal(soff, base, vt=6):
    def fn():
        e.raw(f"""s_mov_b64 exec, 1
        v_mov_b32 v{vt}, {soff}
        v_mov_b32 v{vt+1}, 1
        global_atomic_add v{vt}, v{vt+1}, {base} sc1
        s_mov_b64 exec, -1""")
    wave0(fn)

def cnt_off(dst, idx_expr_s, const):
    e(f"s_lshl_b32 {dst}, {idx_expr_s}, 8\ns_add_u32 {dst}, {dst}, {CNT + const * 256 + 128}")

def entry():
    e(f"""s_cmp_ge_u32 s2, 256
    s_cbranch_scc1 L_exit
    s_load_dwordx16 s[16:31], s[0:1], 0
    s_load_dwordx8 s[32:39], s[0:1], 64
    s_load_dwordx2 s[40:41], s[0:1], 96""")
    if OPT["warm"] == 2: warm_code()
    e(f"""v_lshrrev_b32 v2, 6, v0
    v_and_b32 v0, 63, v0
    v_readfirstlane_b32 {sWV}, v2
    s_and_b32 {sX}, s2, 7
    s_lshr_b32 {sSLOT}, s2, 3
    s_mov_b32 {sMASK}, 0xffff0000
    v_lshlrev_b32 v1, 4, v0""")
    if OPT["prof"]:
        e(f"v_mov_b32 v{VST}, 0")
    e(f"s_cmp_ge_u32 {sSLOT}, 20\ns_cbranch_scc1 L_shuf")

def warm_code():
    e(f"""s_getpc_b64 s[96:97]
    L_pc:
    s_sub_u32 s96, s96, L_pc-{NAME}
    s_subb_u32 s97, s97, 0""")
    if OPT["warm"] == 1:
        e(f"""s_sub_u32 {T[1]}, {sSLOT}, 20
        s_lshl_b32 {T[1]}, {T[1]}, 2
        s_add_u32 {T[1]}, {T[1]}, {sWV}
        s_lshl_b32 {T[1]}, {T[1]}, 11
        v_and_b32 v254, 15, v0
        v_lshlrev_b32 v254, 7, v254""")
    else:
        e(f"""s_lshl_b32 {T[1]}, s2, 8
        s_and_b32 {T[1]}, {T[1]}, 0xf800
        v_lshlrev_b32 v254, 3, v0
        v_and_b32 v254, 0x780, v254""")
    e(f"""v_add_u32 v254, {T[1]}, v254
    v_min_u32 v254, L_exit-{NAME}, v254
    global_load_dword v254, v254, s[96:97]""", tag="warm")

def args_ready():
    e.wait_all(vm=False)
    stamp("start")

def ffn_ids():
    srd(WS, P_WS, WS_END)
    if OPT["map"] == 8:
        e(f"""s_lshl_b32 {T[0]}, {sX}, 1
        s_lshr_b32 {T[1]}, {sSLOT}, 4
        s_add_u32 {sG}, {T[0]}, {T[1]}
        s_bfe_u32 {sHF}, {sSLOT}, 0x10003""")
    else:
        e(f"""s_lshr_b32 {T[0]}, {sX}, 1
        s_lshl_b32 {T[0]}, {T[0]}, 2
        s_lshr_b32 {T[1]}, {sSLOT}, 3
        s_add_u32 {sG}, {T[0]}, {T[1]}
        s_and_b32 {sHF}, {sX}, 1""")
    e(f"""s_and_b32 {sMI}, {sSLOT}, 7
    s_lshl_b32 {T[0]}, {sHF}, 3
    s_add_u32 {sJT}, {T[0]}, {sMI}
    s_lshl_b32 {sRB}, {sG}, 4
    s_add_u32 {sRB}, {sRB}, {sJT}""")

def q_prefetch(t):
    srd(SC, P_Q, ACT)
    e(f"""v_and_b32 v{t}, 7, v0
    v_lshrrev_b32 v{t+1}, 3, v0
    v_mul_u32_u24 v{t}, 1280, v{t}
    v_lshl_add_u32 v{t}, v{t+1}, 4, v{t}
    s_mul_i32 {T[18]}, {sRB}, 10240
    s_mul_i32 {T[19]}, {sWV}, 320
    s_add_u32 {T[18]}, {T[18]}, {T[19]}
    v_mov_b32 v{t+1}, {BIG}
    v_cmp_gt_u32 vcc, 32, v0
    v_cndmask_b32 v{t+1}, v{t+1}, v{t}, vcc""")
    return [(f"buffer_load_dwordx4 a[240:243], v{t}, {SC}, {T[18]} offen{NT_IN}", "q"),
            (f"buffer_load_dwordx4 a[244:247], v{t}, {SC}, {T[18]} offen offset:128{NT_IN}", "q"),
            (f"buffer_load_dwordx4 a[248:251], v{t+1}, {SC}, {T[18]} offen offset:256{NT_IN}", "q")]

def replica_add(line0):
    def fn2():
        L = e.uid("notlast")
        e.raw(f"""s_mov_b64 exec, 1
        v_mov_b32 v6, {line0}
        v_mov_b32 v7, 1
        global_atomic_add v8, v6, v7, {WSP} sc0 sc1
        s_waitcnt vmcnt(0)
        v_cmp_eq_u32 vcc, 15, v8
        s_cbranch_vccz {L}
        s_mov_b64 exec, 0xff
        v_lshlrev_b32 v6, 8, v0
        v_add_u32 v6, {CNT + 6*4096 + 2048}, v6
        v_mov_b32 v7, 1
        global_atomic_add v6, v7, {WSP} sc1
        {L}:
        s_mov_b64 exec, -1""")
    if OPT["hier"]:
        wave0(fn2)
        return
    def fn():
        e.raw(f"""s_mov_b64 exec, 0xff
        v_lshlrev_b32 v6, 8, v0
        v_add_u32 v6, {line0}, v6
        v_mov_b32 v7, 1
        global_atomic_add v6, v7, {WSP} sc1
        s_mov_b64 exec, -1""")
    wave0(fn)

def shuf_addr(r):
    e(f"s_lshl_b32 {T[4]}, {sX}, 8\ns_add_u32 {T[4]}, {T[4]}, {CNT + 2048}\nv_min_u32 v{r}, 5, v0\nv_lshlrev_b32 v{r}, 12, v{r}\nv_add_u32 v{r}, {T[4]}, v{r}")

def wd_base():
    e(f"""s_mul_i32 {sWD}, {sMI}, {WT}
    s_mul_i32 {T[12]}, {sWV}, 71680
    s_add_u32 {sWD}, {sWD}, {T[12]}
    s_add_u32 {sWD}, {sWD}, {WDP}
    v_min_u32 v226, 27, v0
    v_lshlrev_b32 v226, 3, v226
    s_lshl_b32 {T[12]}, {sX}, 8
    s_add_u32 {T[12]}, {T[12]}, {WDF}
    v_add_u32 v226, {T[12]}, v226""")
WD_POLL = f"global_load_dwordx2 v[228:229], v226, {WSP} sc1"
def wd_check():
    L = e.uid("wdok")
    e.wait(vm="wdf")
    keep = list(e.vm)
    tag_bad(228, 1)
    e.raw(f"s_cbranch_vccz {L}")
    spin_tag(WD_POLL, 228, 1)
    e.raw(f"{L}:")
    e.vm = keep
    fstamp("wd_ok")
def wd_resident(n):
    L = []
    for fr in range(n):
        if fr & 3 == 0: L.append(f"s_add_u32 {T[13]}, {sWD}, {fr*1024}")
        L.append((f"buffer_load_dwordx4 {a(4*fr,4)}, v1, {WS}, {T[13]} offen offset:{1024*(fr&3)} sc1", "wdres"))
    return L

def all_check():
    L = e.uid("allok")
    e.wait(vm="all")
    keep = list(e.vm)
    tag_bad(208, 4)
    e.raw(f"s_cbranch_vccz {L}")
    spin_tag(all_loads(216, 217, 208), 208, 4)
    e.raw(f"{L}:")
    e.vm = keep

def p0():
    KR, VR, WR, WF, KF, AC, VF, PK, HR = 16, 44, 60, 76, 108, 164, 196, 200, 216
    e(f"""s_mul_i32 {sCI}, {sX}, 20
    s_add_u32 {sCI}, {sCI}, {sSLOT}
    s_lshr_b32 {sCGP}, {sCI}, 4
    s_and_b32 {T[0]}, {sCI}, 15
    s_lshl_b32 {T[0]}, {T[0]}, 7
    s_lshl_b32 {T[1]}, {sWV}, 5
    s_add_u32 {T[2]}, {T[0]}, {T[1]}
    s_mul_i32 {T[3]}, {T[2]}, 1280
    s_lshl_b32 {T[4]}, {sCGP}, 7
    s_add_u32 {T[3]}, {T[3]}, {T[4]}
    v_and_b32 v2, 7, v0
    v_lshrrev_b32 v3, 3, v0
    v_mul_u32_u24 v4, 5120, v3
    v_lshl_add_u32 v4, v2, 4, v4
    v_add_u32 v4, {T[3]}, v4
    v_subrev_u32 v8, 3840, v4
    v_mov_b32 v9, {BIG}
    v_cmp_gt_u32 vcc, 1280, v4
    s_lshl_b32 {T[4]}, {sCGP}, 9
    s_lshl_b32 {T[5]}, {sCI}, 2
    v_cndmask_b32 v8, v8, v9, vcc
    v_lshlrev_b32 v9, 6, v2
    s_add_u32 {T[5]}, {T[5]}, {sWV}
    s_lshl_b32 {T[6]}, {T[5]}, 12
    s_lshr_b32 {T[7]}, {T[5]}, 1
    s_lshl_b32 {T[7]}, {T[7]}, 2
    v_subrev_u32 v10, 32, v1
    v_subrev_u32 v11, 16, v1
    v_add_u32 v12, 992, v1""")
    args_ready()
    srd(SA, P_K, ACT)
    for i in range(3):
        e(f"buffer_load_dwordx4 {v(KR+4*i,4)}, v8, {SA}, 0 offen offset:{1280*i}{NT_IN}", tag=f"k{i}")
    for i in range(4):
        e(f"buffer_load_dwordx4 {v(KR+12+4*i,4)}, v4, {SA}, 0 offen offset:{1280*i}{NT_IN}", tag=f"k{i+3}")
    srd(SC, P_SHK, 5120)
    for i in range(4):
        e(f"buffer_load_dwordx4 {v(WR+4*i,4)}, v9, {SC}, {T[4]} offen offset:{16*i}", tag="shk")
    srd(SB, P_V, ACT)
    for i in range(4):
        e(f"buffer_load_dwordx4 {v(VR+4*i,4)}, v4, {SB}, 0 offen offset:{1280*i}{NT_IN}", tag=f"v{i}")
    tag_load()
    e.raw(f"s_load_dword {sDV}, s[{P_D}:{P_D+1}], {T[7]}")
    srd(SA, P_SSM, 4096, add=T[6])
    e(f"buffer_load_dwordx4 {v(HR,4)}, v10, {SA}, 0 offen{NT_IN}\nbuffer_load_dwordx2 {v(HR+4,2)}, v11, {SA}, 0 offen{NT_IN}", tag="h0")
    for q in range(1, 5):
        e(f"buffer_load_dwordx4 {v(HR+8*q,4)}, v12, {SA}, 0 offen offset:{1024*(q-1)}{NT_IN}", tag=f"h{q}")
        e(f"buffer_load_dwordx2 {v(HR+8*q+4,2)}, v12, {SA}, 0 offen offset:{1024*(q-1)+16}{NT_IN}", tag=f"h{q}")
    ffn_ids()
    def clr():
        e.raw(f"""s_lshl_b32 {T[8]}, {sCI}, 8
        s_mov_b64 exec, 0xffff
        v_mov_b32 v196, 0
        v_mov_b32 v197, 0
        v_mov_b32 v198, 0
        v_mov_b32 v199, 0
        buffer_store_dwordx4 v[196:199], v1, {WS}, {T[8]} offen sc1
        s_mov_b64 exec, -1""")
    wave0(clr)
    if OPT["sent_y"]:
        e(f"""v_mul_u32_u24 v12, 20480, v3
        v_lshl_add_u32 v12, v2, 4, v12
        s_mul_i32 {T[10]}, {sWV}, {32*20480}
        s_lshl_b32 {T[11]}, {sCI}, 7
        s_add_u32 {T[10]}, {T[10]}, {T[11]}
        s_add_u32 {T[10]}, {T[10]}, {YB}
        v_mov_b32 v196, -1
        v_mov_b32 v197, -1
        v_mov_b32 v198, -1
        v_mov_b32 v199, -1""")
        for m in range(4):
            e(f"buffer_store_dwordx4 v[196:199], v12, {WS}, {T[10]} offen sc1\ns_add_u32 {T[10]}, {T[10]}, {8*20480}", tag="clr")
    e(f"""s_lshl_b32 {T[8]}, {sWV}, 12
    v_lshlrev_b32 v13, 9, v3
    v_sub_u32 v13, {P0L + 28*128}, v13
    v_lshl_add_u32 v13, v2, 4, v13
    v_add_u32 v13, {T[8]}, v13
    v_bfe_u32 v14, v0, 2, 2
    v_lshlrev_b32 v14, 7, v14
    v_lshrrev_b32 v15, 4, v0
    v_lshl_add_u32 v14, v15, 5, v14
    v_and_b32 v15, 3, v0
    v_lshl_add_u32 v14, v15, 3, v14
    v_add_u32 v14, {T[8]}, v14
    s_sub_u32 {T[8]}, 2016, {T[2]}
    s_lshr_b32 {T[8]}, {T[8]}, 3
    s_mul_i32 {T[8]}, {T[8]}, 10240
    s_lshl_b32 {T[9]}, {sCGP}, 10
    s_add_u32 {T[8]}, {T[8]}, {T[9]}
    s_add_u32 {T[8]}, {T[8]}, {KVT}""")
    def unpack(dst, src, n):
        for c in range(n):
            if c & 1: e(f"v_and_b32 v{dst+c}, {sMASK}, v{src+(c>>1)}")
            else: e(f"v_lshlrev_b32 v{dst+c}, 16, v{src+(c>>1)}")
    for i in range(7):
        e.wait(vm=f"k{i}")
        unpack(KF + 8 * i, KR + 4 * i, 8)
    e.wait(vm="shk")
    for c in range(8):
        for tau in range(4):
            src = WR + 2 * c + (tau >> 1)
            if tau & 1: e(f"v_and_b32 v{WF+8*tau+c}, {sMASK}, v{src}")
            else: e(f"v_lshlrev_b32 v{WF+8*tau+c}, 16, v{src}")
    fstamp("k_done")
    for i in range(4):
        for p in range(4):
            d = v(AC + 8 * i + 2 * p, 2)
            e(f"v_pk_mul_f32 {d}, {v(KF+8*(i+3)+2*p,2)}, {v(WF+2*p,2)}")
        for tau in range(1, 4):
            for p in range(4):
                d = v(AC + 8 * i + 2 * p, 2)
                e(f"v_pk_fma_f32 {d}, {v(KF+8*(i+3-tau)+2*p,2)}, {v(WF+8*tau+2*p,2)}, {d}")
        e.wait(vm=f"v{i}")
        unpack(KF + 8 * i, VR + 4 * i, 8)
        for p in range(4):
            d = v(AC + 8 * i + 2 * p, 2)
            e(f"v_pk_mul_f32 {d}, {d}, {v(KF+8*i+2*p,2)}")
        for p in range(4):
            e(f"v_cvt_pk_bf16_f32 v{PK+4*i+p}, v{AC+8*i+2*p}, v{AC+8*i+2*p+1}")
        e(f"ds_write_b128 v13, {v(PK+4*i,4)} offset:{128*(3-i)}", tag="w")
    for m in range(4):
        for hh in range(2):
            e(f"ds_read_b64_tr_b16 {v(16+4*m+2*hh,2)}, v14 offset:{(8*m+4*hh)*128}", tag=f"t{m}")
    tag_ready()
    for m in range(4):
        e(f"buffer_store_dwordx4 {v(16+4*m,4)}, v1, {WS}, {T[8]} offen sc1", tag="st")
        if m < 3: e(f"s_add_u32 {T[8]}, {T[8]}, 10240")
    fstamp("p0_st")
    e(f"s_mul_i32 {T[9]}, {sWV}, {FCH}\ns_add_u32 {T[9]}, {T[9]}, {F0}\nv_add_u32 v13, {T[9]}, v1")
    for q in range(5):
        d = HR + 8 * q; t = 108 + 12 * q
        e.wait(vm=f"h{q}")
        for j in range(4):
            e(f"v_alignbit_b32 v{t+j}, v{d+j+1}, v{d+j}, 16")
            e(f"v_mov_b32 v{t+4+j}, v{d+j+1}")
            e(f"v_alignbit_b32 v{t+8+j}, v{d+j+2}, v{d+j+1}, 16")
        if q == 4: e("s_mov_b64 exec, 3")
        e(f"ds_write_b128 v13, {v(d,4)} offset:{1024*q}", tag="w")
        for sg in range(1, 4):
            e(f"ds_write_b128 v13, {v(t+4*sg-4,4)} offset:{sg*FCP+1024*q}", tag="w")
        if q == OPT["sig_q"]:
            e("s_mov_b64 exec, -1")
            p0_signal()
    e(f"""s_mul_i32 {T[9]}, {sWV}, {UCH}
    s_add_u32 {T[9]}, {T[9]}, {U0}
    s_mov_b64 exec, -1
    v_add_u32 v13, {T[9]}, v1
    v_mov_b32 v32, 0
    v_mov_b32 v33, 0
    v_mov_b32 v34, 0
    v_mov_b32 v35, 0
    s_mov_b32 exec_lo, -1
    s_mov_b32 exec_hi, 3
    ds_write_b128 v13, v[32:35] offset:4096
    s_mov_b64 exec, -1""", tag="w")
    e(f"""s_and_b32 {T[7]}, {T[5]}, 1
    s_lshl_b32 {T[6]}, {sDV}, 16
    s_and_b32 {sDV}, {sDV}, {sMASK}
    s_cmp_eq_u32 {T[7]}, 0
    s_cselect_b32 {sDV}, {T[6]}, {sDV}
    v_and_b32 v7, 15, v0
    v_lshlrev_b32 v7, 3, v7""")
    if OPT["pwave"]:
        e(f"s_lshl_b32 {T[8]}, {sCGP}, 2\ns_sub_u32 {T[8]}, {T[8]}, {sWV}\ns_lshl_b32 {T[8]}, {T[8]}, 7\ns_add_u32 {T[8]}, {T[8]}, {P0W + 384}")
    else:
        e(f"s_lshl_b32 {T[8]}, {sCGP}, 7\ns_add_u32 {T[8]}, {T[8]}, {P0F}")
    e(f"v_add_u32 v7, {T[8]}, v7")

def tag_store(soff, t):
    e.raw(f"""s_mov_b64 exec, 1
    v_mov_b32 v{t}, {soff}
    v_mov_b32 v{t+2}, {sTAG}
    v_mov_b32 v{t+3}, {sNTAG}
    global_store_dwordx2 v{t}, v[{t+2}:{t+3}], {WSP} sc1
    s_mov_b64 exec, -1""")

def wg_flag(t):
    e(f"s_lshl_b32 {T[8]}, {sCI}, 3\ns_add_u32 {T[8]}, {T[8]}, {P0F}")
    wave0(lambda: tag_store(T[8], t))

def p0_signal():
    if OPT["pwave"]:
        e(f"s_lshl_b32 {T[8]}, {sCI}, 5\ns_lshl_b32 {T[10]}, {sWV}, 3\ns_add_u32 {T[8]}, {T[8]}, {T[10]}\ns_add_u32 {T[8]}, {T[8]}, {P0W}")
    e.wait_all(lg=False)
    fstamp("p0_drain")
    if OPT["pwave"]:
        tag_store(T[8], 36)
    else:
        e.raw("s_barrier")
        wg_flag(36)

def sentinel_loop(loads, r, vt):
    L = e.uid("sent"); D = e.uid("sentok")
    def chk():
        e.raw("\n".join([f"v_max3_u32 v{vt}, v{r}, v{r+1}, v{r+2}"] + [f"v_max3_u32 v{vt}, v{vt}, v{r+k}, v{r+k+1}" for k in range(3, 11, 2)] +
                        [f"v_max_u32 v{vt}, v{vt}, v{r+11}", f"v_cmp_eq_u32 vcc, -1, v{vt}"]))
    keep = list(e.vm)
    chk()
    e.raw(f"s_cbranch_vccz {D}\ns_mov_b32 {sSPIN}, 0\n{L}:\n{loads}")
    e.raw(f"""s_add_u32 {sSPIN}, {sSPIN}, 1
    s_waitcnt vmcnt(0)
    s_cmp_gt_u32 {sSPIN}, {SPIN_LIMIT}
    s_cbranch_scc1 {D}""")
    chk()
    e.raw(f"s_cbranch_vccnz {L}\n{D}:")
    e.vm = keep

def go_raise():
    if True:
        L = e.uid("go")
        e.raw(f"""s_or_b32 {T[2]}, {sSLOT}, {sWV}
        s_cmp_lg_u32 {T[2]}, 0
        s_cbranch_scc1 {L}
        s_lshl_b32 {T[2]}, {sX}, 7
        s_add_u32 {T[2]}, {T[2]}, {GOF}
        s_mov_b64 exec, 1
        v_mov_b32 v220, {T[2]}
        v_mov_b32 v222, {sTAG}
        v_mov_b32 v223, {sNTAG}
        global_store_dwordx2 v220, v[222:223], {WSP} sc1
        s_mov_b64 exec, -1
        {L}:""")

def conv():
    AC, GB, FB, KV, KU, YP = 16, (48, 80), 112, 144, 160, 192
    e(f"""v_lshrrev_b32 v8, 2, v0
    v_and_b32 v9, 3, v0
    v_mul_u32_u24 v10, 10240, v8
    v_lshl_add_u32 v10, v9, 4, v10
    v_mul_u32_u24 v11, {UCH}, v9
    v_lshl_add_u32 v11, v8, 4, v11
    s_lshl_b32 {T[0]}, {sWV}, 10
    s_add_u32 {T[0]}, {T[0]}, {U0}
    v_add_u32 v11, {T[0]}, v11
    s_mul_i32 {T[0]}, {sWV}, {64*10240}
    s_lshl_b32 {T[1]}, {sCI}, 6
    s_add_u32 {T[0]}, {T[0]}, {T[1]}
    s_add_u32 {T[0]}, {T[0]}, {KVT}
    v_and_b32 v8, 15, v0
    v_lshrrev_b32 v9, 4, v0
    v_add_u32 v12, 1, v8
    v_and_b32 v13, 3, v12
    v_sub_u32 v12, v12, v13
    v_mul_u32_u24 v13, {FCP}, v13
    v_lshl_add_u32 v12, v12, 1, v13
    v_lshl_add_u32 v12, v9, 4, v12
    s_mul_i32 {T[1]}, {sWV}, {FCH}
    s_add_u32 {T[1]}, {T[1]}, {F0}
    v_add_u32 v2, {T[1]}, v12
    s_mul_i32 {T[1]}, {sWV}, {UCH}
    s_add_u32 {T[1]}, {T[1]}, {U0}
    v_lshlrev_b32 v12, 5, v8
    v_sub_u32 v12, {T[1]}, v12
    v_lshl_add_u32 v3, v9, 4, v12
    v_add_u32 v3, 480, v3
    v_lshlrev_b32 v13, 3, v9
    v_sub_u32 v4, v12, v13
    v_add_u32 v4, 504, v4""")
    if OPT["pwave"]:
        spin_tag(f"global_load_dwordx2 v[14:15], v7, {WSP} sc1", 14, 1)
    else:
        page_calls((1, 2, 3))
        wave0(lambda: spin_tag(f"global_load_dwordx2 v[14:15], v7, {WSP} sc1", 14, 1))
        e.raw("s_barrier")
    stamp("p0_flag")
    for m in range(4):
        e(f"buffer_load_dwordx4 {v(16+4*m,4)}, v10, {WS}, {T[0]} offen sc1", tag=f"u{m}")
        if m < 3: e(f"s_add_u32 {T[0]}, {T[0]}, {16*10240}")
    if OPT["go"] and OPT["go_early"]: go_raise()
    ql = q_prefetch(218)
    all_addr(216, 217)
    shuf_addr(224)
    if OPT["wd_early"]:
        wd_base()
    e(f"""v_lshrrev_b32 v10, 1, v8
    v_mul_u32_u24 v10, 72, v10
    v_and_b32 v12, 1, v8
    v_lshl_add_u32 v10, v12, 4, v10
    v_lshl_add_u32 v10, v9, 2, v10
    s_mul_i32 {T[1]}, {sWV}, {YCS}
    s_add_u32 {T[1]}, {T[1]}, {YA}
    v_add_u32 v10, {T[1]}, v10
    v_lshrrev_b32 v14, 2, v8
    v_mul_u32_u24 v14, {YCS}, v14
    v_mul_u32_u24 v12, 72, v9
    v_add_u32 v14, v14, v12
    v_and_b32 v12, 3, v8
    v_lshl_add_u32 v14, v12, 3, v14
    s_mul_i32 {T[1]}, {sWV}, {72*16}
    s_add_u32 {T[1]}, {T[1]}, {YA}
    v_add_u32 v14, {T[1]}, v14
    v_lshrrev_b32 v12, 3, v0
    v_mul_u32_u24 v12, 20480, v12
    v_and_b32 v13, 7, v0
    v_lshl_add_u32 v12, v13, 4, v12
    s_mul_i32 {T[0]}, {sWV}, {32*20480}
    s_lshl_b32 {T[1]}, {sCI}, 7
    s_add_u32 {T[0]}, {T[0]}, {T[1]}
    s_add_u32 {T[0]}, {T[0]}, {YB}
    s_lshl_b32 {T[1]}, {sCGP}, 12
    s_add_u32 {T[1]}, {T[1]}, {CNT}""")
    seq = []
    for r in range(8):
        for aa in range(8):
            for b in range(7 - aa, -1, -1):
                seq.append((r, aa, b))
    first = {}; last = {}; fin = {}
    for t, (r, aa, b) in enumerate(seq):
        fin[aa + b] = t
        for key in (("F", r, aa), ("G", r, b)):
            first.setdefault(key, t); last[key] = t
    reads = []
    for key, t in first.items():
        kind, r, i = key
        prev = (kind, r - (1 if kind == "F" else 2), i)
        earliest = last[prev] + 1 if prev in last else -99
        if kind == "F":
            for h in range(2):
                reads.append((t, earliest, f"ds_read_b64 {v(FB+4*i+2*h,2)}, v2 offset:{512*i+64*r+8*h}", key))
        else:
            reads.append((t, earliest, f"ds_read_b128 {v(GB[r&1]+4*i,4)}, v3 offset:{512*(7-i)+64*r}", key))
    reads.sort(key=lambda x: x[0])
    early = [x for x in reads if x[3][0] == "F" and x[3][1] == 0]
    for x in early:
        e(x[2], tag=x[3]); reads.remove(x)
    for m in range(4):
        e.wait(vm=f"u{m}")
        e(f"ds_write_b128 v11, {v(16+4*m,4)} offset:{256*m}", tag="w")
    e.wait_all(vm=False)
    e.raw("s_barrier")
    if OPT["pwave"]: wg_flag(220)
    if OPT["go"] and not OPT["go_early"]: go_raise()
    fstamp("u_ready")
    S = Sched()
    if OPT["wd_early"]:
        S.at(OPT["wd_chk"] - 40, [(WD_POLL, "wdf")])
        S.at(OPT["wd_chk"], [wd_check])
        t = OPT["wd_chk"] + 1
        for it in wd_resident(OPT["wd_n"]):
            S.at(t, [it])
            if isinstance(it, tuple): t += OPT["wd_gap"]
    S.at(20, ql)
    S.at(200, [(l, "all") for l in all_loads(216, 217, 208).split("\n")])
    for n in range(8):
        S.at(150 + 4 * n, [(f"ds_read_b64 {v(KV+2*n,2)}, v4 offset:{512*(7-n)}", f"kv{n}")])
        d0, d1 = KV + 2 * n, KV + 2 * n + 1
        S.add(205, [f"v_and_b32 v{KU+4*n}, {sMASK}, v{d1}", f"v_lshlrev_b32 v{KU+4*n+1}, 16, v{d1}",
                    f"v_and_b32 v{KU+4*n+2}, {sMASK}, v{d0}", f"v_lshlrev_b32 v{KU+4*n+3}, 16, v{d0}"])
    for n in range(8):
        S.add(fin[n] + 6, [f"v_fmac_f32 v{AC+4*n+k}, {sDV}, v{KU+4*n+k}" for k in range(4)] +
              [f"v_cvt_pk_bf16_f32 v{YP+2*n}, v{AC+4*n}, v{AC+4*n+2}", f"v_cvt_pk_bf16_f32 v{YP+2*n+1}, v{AC+4*n+1}, v{AC+4*n+3}",
               (f"ds_write_b32 v10, v{YP+2*n} offset:{576*n}", "w"), (f"ds_write_b32 v10, v{YP+2*n+1} offset:{576*n+32}", "w")])
    LOOK = 22; ri = 0
    done_acc = set()
    for t, (r, aa, b) in enumerate(seq):
        n = 0
        while ri < len(reads) and reads[ri][1] <= t and (reads[ri][0] - t <= 6 or (n < 1 and reads[ri][0] - t <= LOOK)):
            e(reads[ri][2], tag=reads[ri][3]); ri += 1; n += 1
        need = [("F", r, aa), ("G", r, b)]
        S.gap(t, n + (1 if e.would_wait(lg=need) else 0), OPT["cx"] if t >= 262 else 0)
        e.wait(lg=need)
        acc = v(AC + 4 * (aa + b), 4)
        c = acc if (aa + b) in done_acc else "0"
        done_acc.add(aa + b)
        e(f"v_mfma_f32_16x16x32_bf16 {acc}, {v(FB+4*aa,4)}, {v(GB[r&1]+4*b,4)}, {c}")
    assert ri == len(reads) and not S.side
    print(f"conv: {len(S.fill)} epilogue instructions left after the last MFMA", file=sys.stderr)
    fstamp("conv_mfma")
    while S.fill: put(S.fill.pop(0)[1])
    e.wait_all(vm=False)
    e.raw("s_barrier")
    for m in range(4):
        for par in range(2):
            e(f"ds_read_b64_tr_b16 {v(48+4*m+2*par,2)}, v14 offset:{288*m+32*par}", tag=f"t{m}")
    for m in range(4):
        e.wait(lg=f"t{m}")
        e(f"buffer_store_dwordx4 {v(48+4*m,4)}, v12, {WS}, {T[0]} offen sc1", tag="st")
        if m < 3: e(f"s_add_u32 {T[0]}, {T[0]}, {8*20480}")
    if not OPT["sent_y"]: e.wait(vm="st")
    e.raw("s_barrier")
    replica_add(T[1])
    all_check()
    e(f"global_load_dword v225, v224, {WSP} sc1", tag="shuf")
    if OPT["pre_a1"]:
        L = e.uid("shufok")
        e.wait_all()
        e.raw(f"v_cmp_gt_u32 vcc, 16, v225\ns_cbranch_vccz {L}")
        spin(224, WSP, 16, 225)
        e.raw(f"{L}:")
    stamp("conv_done")

def go_wait(early=False):
    if not OPT["go"] or (OPT["go"] == 2) != early: return
    e(f"s_lshl_b32 {T[10]}, {sX}, 7\ns_add_u32 {T[10]}, {T[10]}, {GOF}\nv_mov_b32 v220, {T[10]}")
    e.wait_all()
    spin_tag(f"global_load_dwordx2 v[222:223], v220, {WSP} sc1\ns_sleep 2", 222, 1)

def shuffle():
    e.label("L_shuf")
    e(f"s_sub_u32 {sCI}, s2, 160")
    args_ready()
    tag_load()
    ffn_ids()
    for it in q_prefetch(8): put(it)
    e(f"s_lshl_b32 {T[0]}, {sCI}, 2\ns_add_u32 {T[0]}, {T[0]}, {sWV}")
    if OPT["warm"] == 1: warm_code()
    L = e.uid("nz")
    e.raw(f"""s_cmp_ge_u32 {T[0]}, 160
    s_cbranch_scc1 {L}
    s_mul_i32 {T[1]}, {T[0]}, 1639
    s_lshr_b32 {T[1]}, {T[1]}, 16
    s_mul_i32 {T[2]}, {T[1]}, 40
    s_sub_u32 {T[2]}, {T[0]}, {T[2]}
    s_lshl_b32 {T[2]}, {T[2]}, 10
    s_mul_i32 {T[3]}, {T[1]}, {WT}
    s_add_u32 {T[3]}, {T[3]}, {T[2]}
    s_add_u32 {T[3]}, {T[3]}, {WGU + 12*WT + 240*1024}
    v_mov_b32 v16, 0
    v_mov_b32 v17, 0
    v_mov_b32 v18, 0
    v_mov_b32 v19, 0
    buffer_store_dwordx4 v[16:19], v1, {WS}, {T[3]} offen sc1
    {L}:""")
    tag_ready()
    e(f"""s_mul_i32 {T[1]}, {sWV}, {SHST}
    v_lshrrev_b32 v2, 3, v0
    v_and_b32 v3, 7, v0
    v_lshrrev_b32 v8, 4, v0
    v_bfe_u32 v9, v0, 2, 2
    v_and_b32 v10, 3, v0
    v_lshl_add_u32 v8, v8, 3, v9""")
    if OPT["shufwait"]:
        e.wait_all()
    if OPT["stubs"]:
        e.wait_all()
        page_calls((1, 2, 3))
    if OPT["go"] == 2: go_wait(True)
    fstamp("shuf_go")
    e(f"s_cmp_ge_u32 {T[0]}, 272\ns_cbranch_scc1 L_shuf_wd\ns_cmp_ge_u32 {T[0]}, 270\ns_cbranch_scc1 L_shuf_go")
    srd(SA, P_WG, 640 * 3456); srd(SB, P_WU, 640 * 3456)
    e(f"""s_mul_i32 {T[2]}, {T[0]}, 6554
    s_lshr_b32 {T[2]}, {T[2]}, 16
    s_mul_i32 {T[3]}, {T[2]}, 10
    s_sub_u32 {T[3]}, {T[0]}, {T[3]}
    s_mul_i32 {T[4]}, {T[3]}, {64*3456}
    s_lshl_b32 {T[5]}, {T[2]}, 7
    s_add_u32 {T[4]}, {T[4]}, {T[5]}
    v_mul_u32_u24 v4, 3456, v2
    v_lshl_add_u32 v4, v3, 4, v4""")
    for m in range(8):
        e(f"buffer_load_dwordx4 {v(16+8*m,4)}, v4, {SA}, {T[4]} offen{NT_W}", tag=f"l{m}")
        e(f"buffer_load_dwordx4 {v(20+8*m,4)}, v4, {SB}, {T[4]} offen{NT_W}", tag=f"l{m}")
        if m < 7: e(f"s_add_u32 {T[4]}, {T[4]}, {8*3456}")
    e(f"""v_mul_u32_u24 v11, 272, v2
    v_lshl_add_u32 v11, v3, 4, v11
    v_add_u32 v11, {T[1]}, v11
    v_mul_u32_u24 v12, 272, v8
    v_add_u32 v12, {T[1]}, v12
    s_cmp_lt_u32 {T[2]}, 24
    s_cselect_b32 {T[4]}, 4, 3
    v_lshlrev_b32 v10, {T[4]}, v10
    v_add_u32 v12, v12, v10
    s_cselect_b32 {T[4]}, 8, 32
    v_add_u32 v13, {T[4]}, v12
    v_add_u32 v14, 64, v12
    v_add_u32 v15, 64, v13
    s_cselect_b32 {T[8]}, 4, 2
    s_lshl_b32 {T[8]}, {T[8]}, 10""")
    for m in range(8):
        e.wait(vm=f"l{m}")
        e(f"ds_write_b128 v11, {v(16+8*m,4)} offset:{m*2176}\nds_write_b128 v11, {v(20+8*m,4)} offset:{m*2176+128}", tag="w")
    e.wait(lg="w")
    fstamp("sh_ld")
    go_wait()
    fstamp("sh_go")
    for fi in range(4):
        for ss in range(2):
            for mat in range(2):
                for hh in range(2):
                    e(f"ds_read_b64_tr_b16 {v(16+16*fi+8*ss+4*mat+2*hh,2)}, v{12+fi} offset:{(32*ss+4*hh)*272+128*mat}", tag=f"t{fi}")
        e(f"""s_lshl_b32 {T[4]}, {T[2]}, 1
        s_add_u32 {T[4]}, {T[4]}, {fi >> 1}
        s_mul_i32 {T[5]}, {T[4]}, 21846
        s_lshr_b32 {T[5]}, {T[5]}, 16
        s_mul_i32 {T[6]}, {T[5]}, 3
        s_sub_u32 {T[6]}, {T[4]}, {T[6]}
        s_mul_i32 {T[6]}, {T[6]}, 80
        s_add_u32 {T[6]}, {T[6]}, {2 * (fi & 1)}
        s_lshl_b32 {T[4]}, {T[2]}, 2
        s_sub_u32 {T[4]}, {T[4]}, {96 - fi}
        s_cmp_lt_u32 {T[2]}, 24
        s_cselect_b32 {T[5]}, {T[5]}, {T[4]}
        s_cselect_b32 {T[6]}, {T[6]}, 240
        s_mul_i32 {T[5]}, {T[5]}, {WT}
        s_lshl_b32 {T[6]}, {T[6]}, 10
        s_add_u32 {T[7]}, {T[5]}, {T[6]}
        s_lshl_b32 {T[9]}, {T[3]}, 1
        s_mul_i32 {T[9]}, {T[9]}, {T[8]}
        s_add_u32 {T[7]}, {T[7]}, {T[9]}
        s_add_u32 {T[7]}, {T[7]}, {WGU}""")
        e.wait(lg=f"t{fi}")
        for ss in range(2):
            for mat in range(2):
                e(f"buffer_store_dwordx4 {v(16+16*fi+8*ss+4*mat,4)}, v1, {WS}, {T[7]} offen offset:{1024*mat} sc1", tag="st")
            if ss == 0: e(f"s_add_u32 {T[7]}, {T[7]}, {T[8]}")
    e("s_branch L_shuf_end")
    e.vm = []; e.lg = []
    e.label("L_shuf_wd")
    srd(SA, P_WD, 1728 * 1280)
    e(f"""s_sub_u32 {T[2]}, {T[0]}, 272
    s_and_b32 {T[3]}, {T[2]}, 1
    s_lshr_b32 {T[2]}, {T[2]}, 1
    s_mul_i32 {T[4]}, {T[2]}, 4682
    s_lshr_b32 {T[4]}, {T[4]}, 16
    s_mul_i32 {T[5]}, {T[4]}, 14
    s_sub_u32 {T[5]}, {T[2]}, {T[5]}
    s_and_b32 {T[6]}, {T[5]}, 3
    s_lshl_b32 {T[9]}, {T[4]}, 2
    s_add_u32 {T[7]}, {T[9]}, {T[6]}
    s_mul_i32 {T[7]}, {T[7]}, 3
    s_lshr_b32 {T[8]}, {T[5]}, 2
    s_add_u32 {T[7]}, {T[7]}, {T[8]}
    s_lshl_b32 {T[8]}, {T[4]}, 1
    s_add_u32 {T[8]}, {T[8]}, {T[6]}
    s_add_u32 {T[8]}, {T[8]}, 48
    s_cmp_ge_u32 {T[5]}, 12
    s_cselect_b32 {T[7]}, {T[8]}, {T[7]}
    s_mul_i32 {T[6]}, {T[7]}, {32*1280}
    s_mul_i32 {T[9]}, {T[3]}, 640
    s_add_u32 {T[6]}, {T[6]}, {T[9]}
    v_mul_u32_u24 v4, 1280, v2
    v_lshl_add_u32 v4, v3, 4, v4
    v_add_u32 v11, {T[6]}, v4
    v_add_u32 v12, 10240, v11
    v_add_u32 v13, 20480, v11
    v_add_u32 v14, 30720, v11""")
    for rb4 in range(4):
        for ln in range(5):
            e(f"buffer_load_dwordx4 {v(16+20*rb4+4*ln,4)}, v{11+rb4}, {SA}, 0 offen offset:{128*ln}{NT_W}", tag=f"l{rb4}")
    e(f"""v_mul_u32_u24 v4, 656, v2
    v_lshl_add_u32 v4, v3, 4, v4
    v_add_u32 v4, {T[1]}, v4
    v_mul_u32_u24 v15, 656, v8
    v_add_u32 v15, {T[1]}, v15
    v_lshl_add_u32 v2, v10, 4, v15
    v_lshl_add_u32 v3, v10, 3, v15
    s_mul_i32 {T[6]}, {T[3]}, {4*WT}
    s_mul_i32 {T[7]}, {T[4]}, 71680
    s_add_u32 {T[6]}, {T[6]}, {T[7]}
    s_mul_i32 {T[7]}, {T[5]}, 5120
    s_add_u32 {T[6]}, {T[6]}, {T[7]}
    s_add_u32 {T[6]}, {T[6]}, {WDP}""")
    for rb4 in range(4):
        e.wait(vm=f"l{rb4}")
        for ln in range(5):
            e(f"ds_write_b128 v4, {v(16+20*rb4+4*ln,4)} offset:{rb4*8*656+128*ln}", tag="w")
    e.wait(lg="w")
    if not OPT["wd_early"]: go_wait()
    for ct in range(4):
        for tau in range(5):
            base = 32 * (tau >> 1) + 4 * (tau & 1) if tau < 4 else 64
            for hh in range(2):
                e(f"ds_read_b64_tr_b16 {v(16+20*ct+4*tau+2*hh,2)}, v{2 if tau < 4 else 3} offset:{4*hh*656+2*(80*ct+base)}", tag=f"t{ct}")
        e.wait(lg=f"t{ct}")
        for tau in range(4):
            e(f"buffer_store_dwordx4 {v(16+20*ct+4*tau,4)}, v1, {WS}, {T[6]} offen offset:{1024*tau} sc1", tag="st")
        e(f"s_add_u32 {T[7]}, {T[6]}, 4096")
        e(f"buffer_store_dwordx4 {v(16+20*ct+16,4)}, v1, {WS}, {T[7]} offen sc1", tag="st")
        e(f"s_add_u32 {T[6]}, {T[6]}, {WT}")
    if OPT["wd_early"]:
        e.wait_all()
        e.raw("s_barrier")
        e(f"s_sub_u32 {T[6]}, {sCI}, 68\ns_lshl_b32 {T[6]}, {T[6]}, 3\ns_add_u32 {T[6]}, {T[6]}, {WDF}")
        wave0(lambda: e.raw(f"""s_mov_b64 exec, 0xff
        v_lshlrev_b32 v220, 8, v0
        v_add_u32 v220, {T[6]}, v220
        v_mov_b32 v222, {sTAG}
        v_mov_b32 v223, {sNTAG}
        global_store_dwordx2 v220, v[222:223], {WSP} sc1
        s_mov_b64 exec, -1"""))
        fstamp("wd_sig")
    e.label("L_shuf_go")
    go_wait()
    e.label("L_shuf_end")
    all_addr(216, 217)
    e(all_loads(216, 217, 208), tag="all")
    all_check()
    e.wait_all()
    e.raw("s_barrier")
    e(f"s_lshr_b32 {T[1]}, {sCI}, 4\ns_lshl_b32 {T[1]}, {T[1]}, 12\ns_add_u32 {T[1]}, {T[1]}, {CNT + 2048}")
    replica_add(T[1])
    fstamp("shuf_done")
    if OPT["wd_early"]:
        wd_base()
        e(WD_POLL, tag="wdf")
        wd_check()
        for it in wd_resident(OPT["wd_n"]): put(it)
    if OPT["pre_a1"] or OPT["wtouch"]:
        shuf_addr(7)
        wait_flag(7, WSP, 16)
    if OPT["wtouch"]:
        n = OPT["wtouch"]
        e(f"""s_sub_u32 {T[1]}, {sSLOT}, 20
        s_lshl_b32 {T[1]}, {T[1]}, 2
        s_add_u32 {T[1]}, {T[1]}, {sWV}
        s_and_b32 {T[3]}, {T[1]}, 7
        s_lshr_b32 {T[1]}, {T[1]}, 3
        s_mul_i32 {T[1]}, {T[1]}, {n*8192}
        s_lshl_b32 {T[2]}, {sHF}, 3
        s_add_u32 {T[2]}, {T[2]}, {T[3]}
        s_mul_i32 {T[2]}, {T[2]}, {WT}
        s_add_u32 {T[2]}, {T[2]}, {T[1]}
        s_add_u32 {T[2]}, {T[2]}, {WGU + 131072}
        v_lshlrev_b32 v8, 7, v0""")
        for k in range(n):
            e(f"buffer_load_dword v254, v8, {WS}, {T[2]} offen sc1\ns_add_u32 {T[2]}, {T[2]}, 8192", tag="touch")

class Bg:
    q = []; every = 8; n = 0
def ev(text, tag=None):
    for l in text.split("\n"):
        if not l.strip(): continue
        e(l, tag=tag)
        if l.strip().startswith("v_"):
            Bg.n += 1
            if Bg.q and Bg.n % Bg.every == 0:
                put(Bg.q.pop(0))
                while Bg.q and isinstance(Bg.q[0], str): put(Bg.q.pop(0))
def bg_flush():
    while Bg.q: put(Bg.q.pop(0))

XV, YV, RAW, NV = 16, 40, 64, 88
def unpack24(dst, src):
    for c in range(24):
        if c & 1: ev(f"v_and_b32 v{dst+c}, {sMASK}, v{src+(c>>1)}")
        else: ev(f"v_lshlrev_b32 v{dst+c}, 16, v{src+(c>>1)}")

def row_stats(x, area, scale=None):
    ev(f"v_pk_add_f32 v[112:113], {v(x,2)}, {v(x+2,2)}\nv_pk_mul_f32 v[114:115], {v(x,2)}, {v(x,2)}")
    ev(f"v_pk_fma_f32 v[114:115], {v(x+2,2)}, {v(x+2,2)}, v[114:115]")
    for p in range(2, 12):
        ev(f"v_pk_add_f32 v[112:113], v[112:113], {v(x+2*p,2)}")
        ev(f"v_pk_fma_f32 v[114:115], {v(x+2*p,2)}, {v(x+2*p,2)}, v[114:115]")
    ev("""v_add_f32 v112, v112, v113
    v_add_f32 v113, v114, v115
    v_add_f32_dpp v112, v112, v112 row_ror:8 row_mask:0xf bank_mask:0xf
    v_add_f32_dpp v113, v113, v113 row_ror:8 row_mask:0xf bank_mask:0xf""")
    for sw in ("v_permlane16_swap_b32", "v_permlane32_swap_b32"):
        ev(f"""v_mov_b32 v114, v112
        v_mov_b32 v115, v113
        {sw} v112, v114
        {sw} v113, v115
        v_add_f32 v112, v112, v114
        v_add_f32 v113, v113, v115""")
    e(f"s_mov_b64 exec, 0xff\nds_write_b64 v13, v[112:113] offset:{area}\ns_mov_b64 exec, -1", tag="w")
    e.wait_all(vm=False)
    e.raw("s_barrier")
    e(f"ds_read_b128 v[112:115], v14 offset:{area}\nds_read_b128 v[116:119], v14 offset:{area+16}", tag="r")
    e.wait(lg="r")
    ev(f"""v_pk_add_f32 v[112:113], v[112:113], v[114:115]
    v_pk_add_f32 v[116:117], v[116:117], v[118:119]
    v_pk_add_f32 v[112:113], v[112:113], v[116:117]
    v_mul_f32 v112, {f32(1/640)}, v112
    v_mul_f32 v113, {f32(1/640)}, v113
    v_fma_f32 v113, -v112, v112, v113
    v_max_f32 v113, 0, v113
    v_add_f32 v113, {f32(1e-5)}, v113
    v_rsq_f32 v120, v113""")
    if scale: ev(f"v_mul_f32 v120, {f32(scale)}, v120")
    ev("v_mul_f32_e64 v121, -v112, v120")

def normalise(dst, x):
    for p in range(12):
        ev(f"v_pk_fma_f32 {v(dst+2*p,2)}, {v(x+2*p,2)}, v[120:121], v[120:121] op_sel:[0,0,1] op_sel_hi:[1,0,1]")

def r_addr():
    e(f"""v_and_b32 v8, 7, v0
    v_lshrrev_b32 v9, 3, v0
    s_mul_i32 {T[0]}, {sWV}, 20
    v_add_u32 v9, {T[0]}, v9
    v_lshlrev_b32 v10, 8, v9
    v_lshl_add_u32 v10, v8, 4, v10
    v_add_u32 v11, 2048, v10
    v_add_u32 v12, 4096, v10
    v_mov_b32 v15, {BIG}
    v_cmp_gt_u32 vcc, 32, v0
    v_cndmask_b32 v12, v15, v12, vcc
    v_lshlrev_b32 v14, 5, v8
    v_add_u32 v14, {RED}, v14
    s_lshl_b32 {T[0]}, {sWV}, 3
    v_add_u32 v13, {T[0]}, v14
    s_lshr_b32 {T[1]}, {sRB}, 1
    s_mul_i32 {T[1]}, {T[1]}, 20480
    s_and_b32 {T[2]}, {sRB}, 1
    s_lshl_b32 {T[2]}, {T[2]}, 7
    s_add_u32 {T[1]}, {T[1]}, {T[2]}
    s_lshl_b32 {T[2]}, {sWV}, 10
    v_add_u32 v4, {T[2]}, v1""")

def r_finish(layer):
    row_stats(XV, 256, ALPHA)
    normalise(NV, XV)
    e(f"s_add_u32 {T[2]}, {T[1]}, {XN[layer]}")
    for it in range(3):
        for p in range(4 * it, 4 * it + 4):
            e(f"v_cvt_pk_bf16_f32 v{RAW+p}, v{NV+2*p}, v{NV+2*p+1}")
        e(f"buffer_store_dwordx4 {v(RAW+4*it,4)}, v{10+it}, {WS}, {T[2]} offen sc1", tag="st")
    for p in range(12):
        e(f"v_cvt_pk_bf16_f32 v{RAW+12+p}, v{XV+2*p}, v{XV+2*p+1}")
    if layer == 0:
        for it in range(3):
            e(f"ds_write_b128 v4, {v(RAW+12+4*it,4)} offset:{ST_X-131072+4096*it}", tag="w")
    else:
        e(f"s_add_u32 {T[2]}, {T[1]}, {X3}")
        for it in range(3):
            e(f"buffer_store_dwordx4 {v(RAW+12+4*it,4)}, v{10+it}, {WS}, {T[2]} offen sc1", tag="x3st")
    cnt_off(T[0], sG, 16 * layer)
    rstamp(f"r_st{layer}")
    e.wait(vm="st")
    rstamp(f"r_dr{layer}")
    e.raw("s_barrier")
    signal(T[0], WSP)
    e(f"v_mov_b32 v7, {T[0]}")
    bg_flush()
    rest = list(take(8))
    if OPT["late_pre"]:
        Pre.late = rest[-OPT["late_pre"]:]; rest = rest[:-OPT["late_pre"]]
    prefill(rest)
    Pre.done = 0

class Pre: done = 0; late = []; raw = []
def take(n):
    n = min(n, 8 - Pre.done); r = range(Pre.done, Pre.done + n); Pre.done += n
    return r
def r_prefill(n, every):
    Bg.n = 0; Bg.every = every
    for sg in take(n): Bg.q += dma_stage(sg)
    while Bg.q and isinstance(Bg.q[0], str): put(Bg.q.pop(0))

def r1():
    e.label("L_r1")
    ffn_setup()
    r_addr()
    e.wait_all()
    e(f"""v_add_u32 v4, 131072, v4
    v_lshlrev_b32 v2, 8, v9
    v_lshl_add_u32 v2, v8, 3, v2
    v_add_u32 v3, 4096, v2
    v_cmp_gt_u32 vcc, 32, v0
    v_cndmask_b32 v3, v15, v3, vcc
    s_lshr_b32 {T[3]}, {sRB}, 1
    s_mul_i32 {T[3]}, {T[3]}, 20480
    s_and_b32 {T[4]}, {sRB}, 1
    s_lshl_b32 {T[4]}, {T[4]}, 6
    s_add_u32 {T[3]}, {T[3]}, {T[4]}
    s_add_u32 {T[3]}, {T[3]}, {YB}""")
    if OPT["sent_f"]:
        e(f"s_add_u32 {T[2]}, {T[1]}, {F1}\nv_mov_b32 v124, -1\nv_mov_b32 v125, -1\nv_mov_b32 v126, -1\nv_mov_b32 v127, -1")
        for it in range(3):
            e(f"buffer_store_dwordx4 v[124:127], v{10+it}, {WS}, {T[2]} offen sc1", tag="clr")
    if OPT["pre_a1"] and not OPT["a1w3"]: r_prefill(OPT["pre_a1"], 5)
    for i in range(12):
        ev(f"v_accvgpr_read_b32 v{RAW+i}, a{240+i}")
    unpack24(XV, RAW)
    row_stats(XV, 0)
    normalise(NV, XV)
    bg_flush()
    e(f"""s_lshl_b32 {T[4]}, {sX}, 8
    s_add_u32 {T[4]}, {T[4]}, {CNT}
    v_and_b32 v7, 15, v0
    v_lshlrev_b32 v6, 12, v7
    v_subrev_u32 v122, {10*4096 - 2048}, v6
    v_cmp_gt_u32 vcc, 10, v7
    v_cndmask_b32 v7, v122, v6, vcc
    v_add_u32 v7, {T[4]}, v7""")
    if OPT["pre_a1"] and OPT["a1w3"]: prefill(take(OPT["pre_a1"]))
    if OPT["hier"]:
        e(f"s_lshl_b32 {T[4]}, {sX}, 8\ns_add_u32 {T[4]}, {T[4]}, {CNT + 6*4096 + 2048}\nv_mov_b32 v7, {T[4]}")
        wait_flag(7, WSP, 16 if OPT["hier"] == 1 else 16, OPT["nap"])
    else:
        wait_flag(7, WSP, 16, OPT["nap"])
    stamp("conv_flag")
    yl = []
    for it in range(3):
        for h in range(2):
            va, off = (2, 2048 * it + 128 * h) if it < 2 else (3, 128 * h)
            yl.append(f"buffer_load_dwordx2 {v(RAW+4*it+2*h,2)}, v{va}, {WS}, {T[3]} offen offset:{off} sc1")
    yl = "\n".join(yl)
    e(yl, tag="y")
    r_prefill(OPT["pre_r1"], OPT["pre_every"])
    for _ in range(min(OPT["pre_now"], len(Bg.q))): put(Bg.q.pop(0))
    e.wait(vm="y")
    if OPT["sent_y"]: sentinel_loop(yl, RAW, 123)
    rstamp("y_arr")
    unpack24(YV, RAW)
    for p in range(12):
        ev(f"v_pk_fma_f32 {v(XV+2*p,2)}, {v(NV+2*p,2)}, {v(YV+2*p,2)}, {v(XV+2*p,2)}")
    for it in range(3):
        e(f"ds_write_b128 v4, {v(RAW+4*it,4)} offset:{ST_Y-131072+4096*it}", tag="w")
    r_finish(0)
    stamp("r1_done")

def r2_pre():
    r_addr()
    e("v_add_u32 v4, 131072, v4")
    for it in range(3):
        e(f"ds_read_b128 {v(RAW+4*it,4)}, v4 offset:{ST_X-131072+4096*it}", tag="x")
    for it in range(3):
        e(f"ds_read_b128 {v(RAW+12+4*it,4)}, v4 offset:{ST_Y-131072+4096*it}", tag="x")
    e.wait(lg="x")
    unpack24(XV, RAW)
    unpack24(YV, RAW + 12)
    e(f"s_add_u32 {T[2]}, {T[1]}, {F1}")

def r2():
    wait_flag(7, WSP, 8)
    stamp("f_flag")
    e(f"s_mov_b32 s96, {f32(INVA2)}")
    fl = "\n".join(f"buffer_load_dwordx4 {v(RAW+4*it,4)}, v{10+it}, {WS}, {T[2]} offen sc1" for it in range(3))
    e(fl, tag="f")
    r_prefill(OPT["pre_r2"], OPT["pre_every"])
    for _ in range(min(OPT["pre_now"], len(Bg.q))): put(Bg.q.pop(0))
    e.wait(vm="f")
    if OPT["sent_f"]: sentinel_loop(fl, RAW, 123)
    rstamp("f_arr")
    unpack24(NV, RAW)
    for p in range(12):
        ev(f"v_pk_fma_f32 {v(XV+2*p,2)}, {v(NV+2*p,2)}, s[96:97], {v(XV+2*p,2)} op_sel_hi:[1,0,1]")
    row_stats(XV, 0)
    normalise(NV, XV)
    for p in range(12):
        ev(f"v_pk_fma_f32 {v(XV+2*p,2)}, {v(NV+2*p,2)}, {v(YV+2*p,2)}, {v(XV+2*p,2)}")
    r_finish(1)
    stamp("r2_done")

XR = 16; ACC = (176, 208); WB0 = 220; NWB = 9; PD = OPT["pd"]; NRES = 11

class Lay: n = 0
def dma_stage(sg):
    ph = phys_stage(sg)
    out = [f"s_add_u32 {sWO}, {sWB}, {ph*16384}", f"s_add_u32 m0, {sM0}, {(sg & 7)*16384}"]
    out += [(f"buffer_load_dwordx4 v1, {WS}, {sWO} offen offset:{1024*d} sc1{WNT} lds", f"dma{sg}") for d in range(4)]
    return out

def put(item):
    if isinstance(item, tuple): e(item[0], tag=item[1])
    elif callable(item): item()
    else: e(item)

def phys_stage(sg): return 5 * (2 - sg // 5) + sg % 5 if OPT["rev"] and Lay.n == 1 and sg < 15 else sg
def prefill(stages):
    stages = list(stages)
    if OPT["w3"] and len(stages) == 3:
        L = e.uid("w3")
        ph = [phys_stage(k) for k in stages]
        e.raw(f"""s_cmp_eq_u32 {sWV}, 0
        s_cbranch_scc1 {L}
        s_sub_u32 {sWO}, {sWB}, {sM0}
        s_mov_b32 {T[14]}, {ph[0]*16384}
        s_cmp_eq_u32 {sWV}, 2
        s_cselect_b32 {T[14]}, {ph[1]*16384}, {T[14]}
        s_cmp_eq_u32 {sWV}, 3
        s_cselect_b32 {T[14]}, {ph[2]*16384}, {T[14]}
        s_add_u32 {sWO}, {sWO}, {T[14]}
        s_lshl_b32 {T[14]}, {sWV}, 14
        s_add_u32 m0, {T[14]}, {(stages[0] - 1) * 16384 & 0xffffffff}""")
        for q in range(4):
            if q: e.raw(f"s_add_u32 {sWO}, {sWO}, 4096\ns_add_u32 m0, m0, 4096")
            for d in range(4):
                e.raw(f"buffer_load_dwordx4 v1, {WS}, {sWO} offen offset:{1024*d} sc1{WNT} lds")
        e.raw(f"{L}:")
        Pre.raw = stages
        return
    for sg in stages:
        for it in dma_stage(sg): put(it)

def ffn_setup():
    e(f"""s_mul_i32 {sWB}, {sJT}, {WT}
    s_lshl_b32 {sM0}, {sWV}, 12
    s_add_u32 {sWB}, {sWB}, {sM0}
    s_add_u32 {sWB}, {sWB}, {WGU}
    s_mul_i32 {sWD}, {sMI}, {WT}
    s_mul_i32 {T[0]}, {sWV}, 71680
    s_add_u32 {sWD}, {sWD}, {T[0]}
    s_add_u32 {sWD}, {sWD}, {WDP}""")

def geglu(g, u, n, outq):
    L = []
    if OPT["x_nofill"]: return L
    for z in range(n):
        L += [f"v_fma_f32 v{8+(z&3)}, v{g+z}, v{g+z}, v4", f"v_mul_f32 v{u+z}, v{g+z}, v{u+z}",
              f"v_mul_f32_e64 v{g+z}, -v{g+z}, v{8+(z&3)}", f"v_exp_f32 v{g+z}, v{g+z}", f"v_add_f32 v{g+z}, 1.0, v{g+z}",
              f"v_rcp_f32 v{g+z}, v{g+z}", f"v_mul_f32 v{u+z}, v{u+z}, v{g+z}"]
        if z & 1: L.append(f"v_cvt_pk_bf16_f32 v{outq+(z>>1)}, v{u+z-1}, v{u+z}")
    return L

def text_of(item): return item[0] if isinstance(item, tuple) else item
def slots(item):
    t = text_of(item)
    if callable(t): return 9
    return 2 if t.startswith(("v_exp", "v_rcp")) else 1
def is_mem(item):
    t = text_of(item)
    return not callable(t) and t.startswith(("buffer_", "global_", "ds_"))

class Sched:
    def __init__(self):
        self.side = []; self.fill = []; self.seq = 0; self.over = 0; self.hook = None
    def at(self, slot, items):
        for it in items:
            self.seq += 1; self.side.append((slot, self.seq, it))
        self.side.sort(key=lambda x: x[:2])
    def add(self, slot, items):
        for it in items: self.fill.append((slot, it, Ins(text_of(it))))
    def pending(self, tag): return any(isinstance(it, tuple) and it[1] == tag for _, it, _ in self.fill)
    def gap(self, n, used, extra=0):
        room = 2 + extra - used; valu = False; m0 = False
        while self.side and self.side[0][0] <= n:
            slot, _, it = self.side[0]
            late = n - slot >= OPT["slack"]
            dma = is_mem(it) and text_of(it).endswith("lds")
            if not late and (slots(it) > room or (dma and m0)) and slots(it) < 9: break
            self.side.pop(0); put(it); room -= slots(it)
            m0 = not callable(it) and " m0," in text_of(it)
        k = 0
        while room > 0 and k < min(len(self.fill), 20):
            slot, it, ins = self.fill[k]
            ok = slot <= n and slots(it) <= room and not (is_mem(it) and valu)
            for _, _, o in self.fill[:k]:
                if (o.dst & (ins.src | ins.dst)) or (o.src & ins.dst) or (o.kind in ("vmem", "ds") and ins.kind in ("vmem", "ds", "salu")) or (o.kind == "salu"):
                    ok = False; break
            if ok and ins.op.startswith("v_permlane") and valu: ok = False
            if ok:
                self.fill.pop(k); put(it); room -= slots(it); valu = valu or ins.kind == "valu"
                if self.hook: self.hook(it, n)
                if ins.op.startswith(("v_exp", "v_rcp")): break
                k = 0
            else:
                k += 1
        if room < 0: self.over -= room

def check_or_spin(vt, vaddr, target):
    def fn():
        L = e.uid("rdy")
        e.wait(vm=f"poll{vt}")
        keep = list(e.vm)
        e.raw(f"v_cmp_gt_u32 vcc, {target}, v{vt}\ns_cbranch_vccz {L}")
        spin(vaddr, WSP, target, vt)
        e.raw(f"{L}:")
        e.vm = keep
    return fn

HF = 16
WNQ = list(range(224, 240, 4)) + list(range(160, 176, 4)) + list(range(176, 204, 4))
def acc2(tau, ri): return 80 + 4 * (ri * 5 + tau)
NONRES = [5 * ks + t for ks in (7, 12, 13) for t in range(5)]
RES = [fr for fr in range(70) if fr not in NONRES]
def wdreg(fr): return a(4 * RES.index(fr), 4) if fr in RES else v(WNQ[NONRES.index(fr)], 4)
sX0, sX1, sHC, sWDO, sTMP, sHT = T[10], T[11], T[12], T[13], T[14], T[15]
sHS1, sWNO = T[16], T[17]

def ffn(layer):
    H = HB[layer]
    e(f"""v_add_u32 v2, 0x10000, v1
    v_mov_b32 v4, {f32(KAPPA)}
    v_bfe_u32 v8, v0, 4, 1
    v_mul_u32_u24 v3, 57344, v8
    v_lshrrev_b32 v8, 5, v0
    v_lshl_add_u32 v3, v8, 8, v3
    v_and_b32 v8, 15, v0
    v_lshl_add_u32 v3, v8, 4, v3
    s_lshl_b32 {T[0]}, {sG}, 3
    s_lshl_b32 {T[1]}, {sWV}, 1
    s_add_u32 {T[1]}, {T[1]}, {T[0]}
    s_mul_i32 {sX0}, {T[1]}, 20480
    s_add_u32 {sX0}, {sX0}, {XN[layer]}
    s_add_u32 {sX1}, {sX0}, 20480
    s_mul_i32 {T[1]}, {T[1]}, 57344
    s_lshr_b32 {T[2]}, {sJT}, 2
    s_mul_i32 {T[2]}, {T[2]}, 14336
    s_add_u32 {T[1]}, {T[1]}, {T[2]}
    s_add_u32 {T[1]}, {T[1]}, {H}
    s_and_b32 {T[2]}, {sJT}, 3
    s_lshl_b32 {T[3]}, {T[2]}, 10
    s_add_u32 {sHS}, {T[1]}, {T[3]}
    s_add_u32 {sHS1}, {sHS}, 57344
    s_lshl_b32 {T[3]}, {T[2]}, 9
    s_add_u32 {sHS3}, {T[1]}, {T[3]}
    s_add_u32 {sHS3}, {sHS3}, 12288
    s_lshl_b32 {T[1]}, {sHF}, 2
    s_add_u32 {T[0]}, {T[0]}, {T[1]}
    s_mul_i32 {T[2]}, {sWV}, 14336
    s_add_u32 {T[2]}, {T[2]}, {H}""")
    for ri in range(4):
        e(f"""s_add_u32 {T[1]}, {sWV}, {ri}
        s_and_b32 {T[1]}, {T[1]}, 3
        s_add_u32 {T[1]}, {T[1]}, {T[0]}
        s_mul_i32 {T[1]}, {T[1]}, 57344
        s_add_u32 {sH[ri]}, {T[1]}, {T[2]}""")
    e(f"""s_and_b32 {T[1]}, {sMI}, 1
    s_lshl_b32 {T[1]}, {T[1]}, 1
    s_add_u32 {T[1]}, {T[1]}, {T[0]}
    s_lshr_b32 {T[2]}, {sWV}, 1
    s_add_u32 {T[1]}, {T[1]}, {T[2]}
    s_mul_i32 {sHT}, {T[1]}, 57344
    s_lshr_b32 {T[1]}, {sMI}, 1
    s_mul_i32 {T[1]}, {T[1]}, 14336
    s_add_u32 {sHT}, {sHT}, {T[1]}
    s_add_u32 {sHT}, {sHT}, {H}
    s_and_b32 {T[1]}, {sWV}, 1
    s_lshl_b32 {T[2]}, {T[1]}, 11
    v_lshlrev_b32 v250, 7, v8
    v_and_b32 v251, 0x380, v250
    v_add_u32 v250, {T[2]}, v250
    s_lshl_b32 {T[2]}, {T[1]}, 10
    v_add_u32 v251, {T[2]}, v251
    s_mul_i32 {sHC}, {sG}, 3""")
    cnt_off(sHC, sHC, 64 + 48 * layer)
    e(f"v_mov_b32 v244, {sHC}\nv_add_u32 v245, 64, v244\nv_add_u32 v246, 256, v244\nv_add_u32 v248, 512, v244")
    wait_flag(7, WSP, 16)
    stamp(f"xn_flag{layer}")

    def xload(i):
        s_, rt = i >> 1, i & 1
        L = [(f"buffer_load_dwordx4 {v(XR+4*i,4)}, v1, {WS}, {(sX0, sX1)[rt]} offen offset:{1024*(s_&3)} sc1", f"x{i}")]
        if s_ & 3 == 3 and s_ < 19: L.append(f"s_add_u32 {(sX0, sX1)[rt]}, {(sX0, sX1)[rt]}, 4096")
        return L
    def wread(fr):
        addr = (fr & 127) * 1024
        e(f"ds_read_b128 {a(WB0+4*(fr%NWB),4)}, v{1 if addr < 65536 else 2} offset:{addr & 65535}", tag=f"w{fr}")
    def hload(ks, ri):
        return (f"buffer_load_dwordx4 {v(HF+16*(ks&3)+4*ri,4)}, v1, {WS}, {sH[ri]} offen offset:{1024*(ks&3)} sc1", f"h{ks}_{ri}")
    wd_at = {}
    def wdload(fr):
        L = []
        so = sWDO if fr in RES else sWNO
        if wd_at.get(so) != fr & ~3:
            wd_at[so] = fr & ~3
            L.append(f"s_add_u32 {so}, {sWD}, {(fr & ~3)*1024}")
        L.append((f"buffer_load_dwordx4 {wdreg(fr)}, v1, {WS}, {so} offen offset:{1024*(fr&3)} sc1", f"wd{fr}"))
        return L
    rev = OPT["rev"] and layer == 1
    def phys(i): return 4 * (2 - i // 4) + i % 4 if rev and i < 12 else i
    def htouch(p):
        if not OPT["htouch"]: return []
        return [f"s_add_u32 {sTMP}, {sHT}, {4096*p}", (f"buffer_load_dword v249, v{250 if p < 3 else 251}, {WS}, {sTMP} offen sc1", "touch")]
    def sig_h(pi):
        e(f"s_add_u32 {sTMP}, {sHC}, {(0, 64, 256, 512)[pi]}")
        signal(sTMP, WSP)

    if rev:
        for r_ in [sHS, sHS1] + sH: e(f"s_add_u32 {r_}, {r_}, 8192")
    G2 = 560
    S = Sched(); at, add = S.at, S.add
    for p in range(3):
        s0 = 160 * (p + 1) + 4
        for rt in range(2):
            base = ACC[p & 1] + 16 * rt; q = (12, 240)[rt]
            add(s0, geglu(base, base + 8, 8, q))
            add(s0, [(f"buffer_store_dwordx4 {v(q,4)}, v1, {WS}, {(sHS, sHS1)[rt]} offen sc1", f"hs{p}")])
        op = "s_sub_u32" if rev else "s_add_u32"
        if p < 2: add(s0, [f"{op} {sHS}, {sHS}, 4096", f"{op} {sHS1}, {sHS1}, 4096"])
    add(G2 + 4, geglu(ACC[1], ACC[1] + 4, 4, 12) + geglu(ACC[1] + 8, ACC[1] + 12, 4, 14))
    add(G2 + 4, ["v_permlane16_swap_b32 v12, v14", "v_permlane16_swap_b32 v13, v15",
                 (f"buffer_store_dwordx4 v[12:15], v3, {WS}, {sHS3} offen sc1", "hs3")])
    add(G2 + 120, f"""v_lshrrev_b32 v8, 4, v0
    v_and_b32 v9, 15, v0
    v_lshrrev_b32 v11, 1, v8
    v_lshlrev_b32 v11, 8, v11
    v_lshl_add_u32 v11, v9, 4, v11
    v_add_u32 v11, 2048, v11
    v_mov_b32 v15, {BIG}
    v_and_b32 v12, 16, v0
    v_cmp_eq_u32 s[98:99], 0, v12
    s_lshl_b32 {T[8]}, {sG}, 3
    s_lshl_b32 {T[9]}, {sHF}, 2
    s_add_u32 {T[8]}, {T[8]}, {T[9]}
    s_add_u32 {T[8]}, {T[8]}, {sWV}
    v_cndmask_b32 v11, v15, v11, s[98:99]
    s_mul_i32 {T[7]}, {T[8]}, {16*1280}
    s_mul_i32 {T[8]}, {T[8]}, 20480
    s_mul_i32 {T[9]}, {sMI}, 2560
    s_add_u32 {T[8]}, {T[8]}, {T[9]}
    s_add_u32 {T[8]}, {T[8]}, {F1 if layer == 0 else X3}
    s_mul_i32 {T[0]}, {sWV}, 15360
    v_add_u32 v204, {T[0]}, v2""".replace("    ", "").split("\n"))
    for ri in range(1, 4):
        add(G2 + 120, [f"s_add_u32 {T[0]}, {sWV}, {ri}", f"s_and_b32 {T[0]}, {T[0]}, 3", f"s_mul_i32 {T[0]}, {T[0]}, 15360", f"v_add_u32 v{204+ri}, {T[0]}, v2"])
    if layer == 1:
        add(G2 + 120, f"""s_mul_i32 {T[9]}, {sMI}, 160
        s_add_u32 {T[7]}, {T[7]}, {T[9]}
        v_mul_u32_u24 v10, 1280, v9
        v_lshrrev_b32 v13, 1, v8
        v_lshl_add_u32 v13, v13, 4, v10
        v_lshl_add_u32 v10, v8, 4, v10
        v_cndmask_b32 v13, v15, v13, s[98:99]
        s_mov_b32 s12, s{P_OUT}
        s_mov_b32 s13, s{P_OUT+1}
        s_mov_b32 s14, {ACT}
        s_mov_b32 s15, 0x20000
        s_mov_b32 s96, {f32(INVA2)}""".replace("    ", "").split("\n"))
        add(G2 + 224, [(f"buffer_load_dwordx4 v[48:51], v1, {WS}, {T[8]} offen sc1", "x3"),
                       (f"buffer_load_dwordx4 v[52:55], v1, {WS}, {T[8]} offen offset:1024 sc1", "x3"),
                       (f"buffer_load_dwordx4 v[56:59], v11, {WS}, {T[8]} offen sc1", "x3")])
    else:
        add(G2 + 120, [f"s_lshl_b32 {T[7]}, {sG}, 1", f"s_add_u32 {T[7]}, {T[7]}, {sHF}", f"s_lshl_b32 {T[7]}, {T[7]}, 8",
                       f"s_add_u32 {T[7]}, {T[7]}, {CNT + 32 * 256 + 128}"])
    order = []
    for ks in range(14 - 2 * OPT["redo"]):
        for ri in ((0, 1, 2, 3) if ks < 13 else (1, 2, 3, 0)):
            for tau in range(5): order.append((ks, ri, tau))
    if OPT["redo"]:
        order += [(ks, ri, tau) for ri in (1, 2, 3, 0) for ks in (12, 13) for tau in range(5)]
    for ri in range(1, 4):
        for tau in range(5):
            add(G2 + order.index((13, ri, tau)) + 6, [(f"ds_write_b128 v{204+ri}, {v(acc2(tau,ri),4)} offset:{(ri-1)*5120+1024*tau}", "rw")])
    if layer == 0:
        for k, sg in enumerate(take(OPT["pre_g2"])):
            st = dma_stage(sg); t0 = G2 + OPT["pre_g2_at"] + 12 * k
            at(t0, st[:2])
            for d in range(4): at(t0 + 3 * d + 1, [st[2 + d]])
    for i in range(OPT["xup"]):
        for it in xload(i): put(it)
    for i in range(OPT["xup"], 40):
        at(4 * (i - OPT["xup"]) + 1, xload(i))
    if layer == 0 and not OPT["x_nowd"]:
        n0 = OPT["wd_n"] if OPT["wd_early"] else 0
        n = 5 * NRES - n0
        for fr in range(n):
            at(OPT["wd0"] + (fr * (OPT["wd1"] - OPT["wd0"])) // n, wdload(RES[n0 + fr]))
    chk = [OPT["chk0"], OPT["chk1"], OPT["chk2"], OPT["chk3"]]
    for p, va in enumerate((244, 245, 246, 248)):
        if OPT["x_nochk"]: continue
        at(chk[p] - OPT["poll_lead"], [(f"global_load_dword v247, v{va}, {WSP} sc1", "poll247")])
        at(chk[p], [check_or_spin(247, va, 16)] + htouch(p))
    need = {}
    for n_, (ks, ri, tau) in enumerate(order):
        need.setdefault(("h", ks, ri), G2 + n_); need.setdefault(("w", 5 * phys(ks) + tau), G2 + n_)
    last_use = {}
    for n_, (ks, ri, tau) in enumerate(order): last_use[(ks, ri)] = G2 + n_
    jobs = []
    for ks in range(14):
        for ri in range(4):
            free = 480 + 8 * ks + 4 * (ri >> 1) + 5 if ks < 4 else last_use[(ks - 4, ri)] + 1
            jobs.append((need[("h", ks, ri)], max(free, chk[ks >> 2] + 1 if not OPT["x_nochk"] else 0), ("h", ks, ri)))
    for k, fr in enumerate(NONRES):
        jobs.append((G2 + OPT["wn0"] + OPT["wn_gap"] * k, 485 if k < 4 else G2 + 8, ("w", fr)))
    jobs.sort()
    t = OPT["ld0"]; bumped = [0] * 4
    for dl, free, job in jobs:
        t = max(t, free, dl - OPT["maxlead"])
        if job[0] == "h":
            ks, ri = job[1:]
            pre = []
            if ks >> 2 > bumped[ri]:
                bumped[ri] = ks >> 2
                pre = [f"s_add_u32 {sH[ri]}, {sH[ri]}, {4096 if not rev else 12288}" if not rev or ks >= 12 else f"s_sub_u32 {sH[ri]}, {sH[ri]}, 4096"]
            if not OPT["x_nohload"] or ks < 4: at(t, pre + [hload(ks, ri)])
            lead = need[job] - t
        else:
            at(t, wdload(job[1])); lead = need[job] - t
        assert lead >= 12, (job, t)
        if lead < 40: print(f"layer {layer}: short lead {lead} for {job}", file=sys.stderr)
        t += OPT["ldgap"]
    sig_after = {"hs0": 0, "hs1": 1, "hs2": 2, "hs3": 3}
    issued = {}
    def hook(it, slot):
        if isinstance(it, tuple) and it[1] in sig_after and not S.pending(it[1]): issued[it[1]] = slot
    S.hook = hook
    dma_t = 4 * (40 - OPT["xup"]) + 3
    for k in Pre.late:
        st = dma_stage(k)
        at(dma_t, st[:2])
        for d in range(4): at(dma_t + 4 * d + 2, [st[2 + d]])
        dma_t += 16
    Pre.late = []
    for n in range(-2 * PD, G2 + 280):
        ready = [t for t in sig_after if t in issued and n - issued[t] >= OPT["lag"]]
        used = 0
        if n < G2 and n % 2 == 0:
            nxt = n // 2 + PD
            if nxt < 280 and nxt % 32 == 0:
                sg = nxt // 16
                e.wait(vm=[f"dma{sg}", f"dma{sg + 1}"] + ready + (["x0"] if sg in Pre.raw or sg + 1 in Pre.raw else []))
                if not OPT["x_nobar"] or ready: e.raw("s_barrier")
                for t in ready:
                    assert n < chk[sig_after[t]] - 20, (t, n)
                    sig_h(sig_after.pop(t))
                used += 2
                for k in (sg + 4, sg + 5):
                    if 8 <= k <= 17 and not OPT["x_nodma"]:
                        st = dma_stage(k)
                        dma_t = max(dma_t, n + 1)
                        at(dma_t, st[:2])
                        for d in range(4): at(dma_t + OPT["dma_gap"] * d + 2, [st[2 + d]])
                        dma_t += 4 * OPT["dma_gap"]
            if nxt < 280: wread(nxt); used += 1
        elif n >= OPT["pub_from"] and ready and OPT["x_nopub"]:
            for t in ready: sig_after.pop(t)
        elif n >= OPT["pub_from"] and ready:
            e.wait(vm=ready)
            e.raw("s_barrier")
            for t in ready:
                assert n < chk[sig_after[t]], (t, n)
                print(f"layer {layer}: {t} issued at {issued[t]} published at {n}", file=sys.stderr)
                sig_h(sig_after.pop(t))
            used += 2
        if n < 0: continue
        if n < G2:
            fr, rt = n >> 1, n & 1
            p = min(fr // 80, 3); fi = fr - 80 * p
            if p < 3: s_, acc = fi >> 2, ACC[p & 1] + 16 * rt + 8 * (fi & 1) + 4 * ((fi >> 1) & 1)
            else: s_, acc = fi >> 1, ACC[1] + 8 * rt + 4 * (fi & 1)
            if fi == 0 and p >= 2: assert f"hs{p-2}" in issued
            wv_, wl_ = [f"x{2*s_}", f"x{2*s_+1}"], [f"w{k}" for k in range(fr, fr - fr % OPT["lgw"] + OPT["lgw"])]
            mf = f"v_mfma_f32_16x16x32_bf16 {v(acc,4)}, {a(WB0+4*(fr%NWB),4)}, {v(XR+8*s_+4*rt,4)}, {v(acc,4) if s_ else 0}"
        else:
            ks, ri, tau = order[n - G2]
            fr = 5 * phys(ks) + tau
            wv_, wl_ = [f"h{ks}_{k}" for k in (range(4) if OPT["ksw"] else [ri])] + [f"wd{k}" for k in range(5 * phys(ks), 5 * phys(ks) + 5)], []
            acc = v(acc2(tau, ri), 4)
            mf = f"v_mfma_f32_16x16x32_bf16 {acc}, {wdreg(fr)}, {v(HF+16*(ks&3)+4*ri,4)}, {acc if ks else 0}"
        if e.would_wait(wv_, wl_): used += 1
        extra = OPT["x3"] if 484 <= n < G2 and n & 1 else OPT["x2"] if G2 <= n < G2 + 60 and n & 1 else 0
        S.gap(n, used, extra)
        if OPT["ksprof"] == layer + 1 and n >= G2 and (n - G2) % 20 == 0: lstamp(f"ks{(n-G2)//20}")
        if OPT["ksprof"] == layer + 1 and n == G2 + 268: lstamp(None)
        if n == G2 and not OPT["ksprof"]: stamp(f"g1_done{layer}")
        if OPT["passprof"] == 1 and n in (1, 160, 320, 480): stamp(f"L{layer}_at{n}")
        if OPT["passprof"] == 1 and n - G2 in (80, 160): stamp(f"L{layer}_g2at{n-G2}")
        e.wait(vm=wv_, lg=wl_)
        e(mf)
    while S.fill: put(S.fill.pop(0)[1])
    Lay.n = 1
    assert not S.side and not sig_after, (S.side, sig_after)
    print(f"layer {layer}: {S.over} issue slots over budget", file=sys.stderr)
    stamp(f"g2_mfma{layer}")
    e.wait_all(vm=False)
    e.raw("s_barrier")
    RD = 160
    for k in range(11):
        e(f"ds_read_b128 {v(RD+4*k,4)}, v204 offset:{1024*k}", tag=f"r{k}")
    for k in range(11, 15):
        e(f"ds_read_b128 {v(RD+4*k+4,4)}, v204 offset:{1024*k}", tag=f"r{k}")
    if layer == 1:
        e.wait(vm="x3")
        for i in range(24):
            e(f"v_and_b32 v{16+i}, {sMASK}, v{48+(i>>1)}" if i & 1 else f"v_lshlrev_b32 v{16+i}, 16, v{48+(i>>1)}")
    for k in range(15):
        e.wait(lg=f"r{k}")
        d = acc2(k % 5, 0); r = RD + 4 * k + (4 if k >= 11 else 0)
        for h in range(2):
            e(f"v_pk_add_f32 {v(d+2*h,2)}, {v(d+2*h,2)}, {v(r+2*h,2)}")
    d = acc2(4, 0)
    if layer == 0:
        for g in range(2):
            for i in range(4):
                dd = acc2(2 * g + (i >> 1), 0) + 2 * (i & 1)
                e(f"v_cvt_pk_bf16_f32 v{16+4*g+i}, v{dd}, v{dd+1}")
            e(f"buffer_store_dwordx4 {v(16+4*g,4)}, v1, {WS}, {T[8]} offen offset:{1024*g} sc1", tag="st")
        e(f"""v_cvt_pk_bf16_f32 v24, v{d}, v{d+1}
        v_cvt_pk_bf16_f32 v25, v{d+2}, v{d+3}
        v_mov_b32 v26, v24
        v_mov_b32 v27, v25
        v_permlane16_swap_b32 v24, v26
        v_permlane16_swap_b32 v25, v27
        buffer_store_dwordx4 v[24:27], v11, {WS}, {T[8]} offen sc1""", tag="st")
        if not OPT["sent_f"]:
            r2_pre()
            e.wait(vm="st")
        e.raw("s_barrier")
        signal(T[7], WSP)
        e(f"v_mov_b32 v7, {T[7]}")
        if OPT["sent_f"]:
            r_prefill(OPT["pre_a2"], 6)
            r2_pre()
            bg_flush()
        else:
            prefill(take(OPT["pre_a2"]))
    else:
        for g in range(2):
            for i in range(4):
                dd = acc2(2 * g + (i >> 1), 0) + 2 * (i & 1)
                e(f"v_pk_fma_f32 {v(dd,2)}, {v(dd,2)}, s[96:97], {v(16+8*g+2*i,2)} op_sel_hi:[1,0,1]")
            for i in range(4):
                dd = acc2(2 * g + (i >> 1), 0) + 2 * (i & 1)
                e(f"v_cvt_pk_bf16_f32 v{60+4*g+i}, v{dd}, v{dd+1}")
            e(f"buffer_store_dwordx4 {v(60+4*g,4)}, v10, {SA}, {T[7]} offen offset:{64*g}{OUTP}", tag="st")
        for i in range(4):
            e(f"v_mov_b32 v{44+i}, v{d+i}")
        for i in range(4):
            e(f"v_permlane16_swap_b32 v{d+i}, v{44+i}")
        for i in range(4):
            dd = d + 2 * i if i < 2 else 44 + 2 * (i - 2)
            e(f"v_pk_fma_f32 {v(dd,2)}, {v(dd,2)}, s[96:97], {v(32+2*i,2)} op_sel_hi:[1,0,1]")
        e(f"""v_cvt_pk_bf16_f32 v68, v{d}, v{d+1}
        v_cvt_pk_bf16_f32 v69, v{d+2}, v{d+3}
        v_cvt_pk_bf16_f32 v70, v44, v45
        v_cvt_pk_bf16_f32 v71, v46, v47
        buffer_store_dwordx4 v[68:71], v13, {SA}, {T[7]} offen offset:128{OUTP}""", tag="st")
        L = e.uid("epo")
        e.raw(f"""s_or_b32 {T[0]}, s2, {sWV}
        s_cmp_lg_u32 {T[0]}, 0
        s_cbranch_scc1 {L}
        s_mov_b64 exec, 1
        v_mov_b32 v6, {EPO}
        v_mov_b32 v7, {sTAG}
        global_store_dword v6, v7, {WSP} sc1
        s_mov_b64 exec, -1
        {L}:""")
    stamp(f"g2_done{layer}")

def finish():
    if OPT["prof"]:
        e.wait_all()
        stamp("end")
        e(f"""s_lshl_b32 {T[0]}, s2, 2
        s_add_u32 {T[0]}, {T[0]}, {sWV}
        s_lshl_b32 {T[0]}, {T[0]}, 8
        s_add_u32 {T[0]}, {T[0]}, {PROF}
        v_lshlrev_b32 v1, 2, v0
        buffer_store_dword v{VST}, v1, {WS}, {T[0]} offen""")
        if OPT["dbgout"]:
            e(f"""s_cmp_lg_u32 s2, {OPT["dbgout"] - 1}
            s_cbranch_scc1 L_exit
            s_cmp_lg_u32 {sWV}, 0
            s_cbranch_scc1 L_exit
            v_readlane_b32 {T[1]}, v{VST}, 0
            s_mov_b64 exec, 0xffff
            v_subrev_u32 v6, {T[1]}, v{VST}
            global_store_dword v1, v6, {DBG}""")
    e.label("L_exit")
    e("s_endpgm")

entry()
p0()
if OPT["stubs"]: e.raw("s_branch L_conv\n.p2align 12\nL_conv:")
conv()
e("s_branch L_r1")
e.vm = ["warm"] if OPT["warm"] == 2 else []; e.vmd = [{("v", 254)}] if OPT["warm"] == 2 else []; e.lg = []
shuffle()
r1()
ffn(0)
r2()
ffn(1)
finish()
nops = e.pad()

def insert_stubs():
    import subprocess, re, tempfile, os
    extra = "".join(f"L_page{p}:\n" for p in range(1, NPAGES))
    src = f'.amdgcn_target "amdgcn-amd-amdhsa--gfx950"\n.text\n{NAME}:\n' + e.text() + extra
    d = tempfile.mkdtemp()
    open(d + "/a.s", "w").write(src)
    subprocess.run(["clang", "-x", "assembler", "-target", "amdgcn-amd-amdhsa", "-mcpu=gfx950", "-c", d + "/a.s", "-o", d + "/a.o"], check=True)
    dis = subprocess.run(["llvm-objdump", "-d", "--mcpu=gfx950", d + "/a.o"], capture_output=True, text=True).stdout
    dis = dis[dis.index("<L_conv>:"):]
    sizes = [4 * len(m.group(1).split()) for m in re.finditer(r"// [0-9A-F]+: ([0-9A-F ]+)", dis)]
    start = next(n for n, i in enumerate(e.ins) if i.text == "L_conv:")
    real = [i for i in e.ins[start:] if i.states]
    assert len(sizes) == len(real), (len(sizes), len(real))
    out = e.ins[:start]; off = 0; page = 1; k = 0; prev = None
    for i in e.ins[start:]:
        if i.states:
            if off >= 4096 * page and page < NPAGES and not (prev and prev.op == "s_getpc_b64"):
                out += [Ins(f"s_branch L_past{page}"), Ins(f"L_page{page}:"), Ins("s_setpc_b64 s[98:99]"), Ins(f"L_past{page}:")]
                off += 8; page += 1
            off += sizes[k]; k += 1; prev = i
        out.append(i)
    for p in range(page, NPAGES):
        out += [Ins(f"L_page{p}:"), Ins("s_setpc_b64 s[98:99]")]
    e.ins = out
    print(f"{off} bytes of code, {page - 1} page stubs", file=sys.stderr)
if OPT["stubs"]: insert_stubs()

hdr = open("interleave_layers__ssm_conv_h3__glu_gated_geglu__prompt.s.ref").read().split("; Override launch")[0]
out = hdr + f"""; Single persistent launch: 256 workgroups, one per CU, phases chained by counters in d_debug / d_ws.
; @launch grid=(256,1,1) block=(256,1,1) lds={LDS_BYTES}
.amdgcn_target "amdgcn-amd-amdhsa--gfx950"
.text
.globl {NAME}
.p2align 8
.type {NAME},@function
{NAME}:
""" + e.text() + f""".section .rodata,"a"
.p2align 6
.amdhsa_kernel {NAME}
  .amdhsa_next_free_vgpr 512
  .amdhsa_next_free_sgpr 102
  .amdhsa_accum_offset 256
  .amdhsa_group_segment_fixed_size 0
  .amdhsa_kernarg_size 104
  .amdhsa_user_sgpr_count 2
  .amdhsa_user_sgpr_kernarg_segment_ptr 1
  .amdhsa_system_sgpr_workgroup_id_x 1
  .amdhsa_float_denorm_mode_32 3
.end_amdhsa_kernel
"""
open(sys.argv[1], "w").write(out)
import json
json.dump(dict(stamps=stamp_names, KVT=KVT, YB=YB, XN=XN, X3=X3, F1=F1, HB=HB, WGU=WGU, WDP=WDP, PROF=PROF, CNT=CNT), open(sys.argv[1] + ".json", "w"))
print(f"{len(e.ins)} lines, {nops} padded wait states", file=sys.stderr)
```

```python
import sys, math, struct
from emit import Emit, Ins

NAME = "interleave_layers__ssm_conv_h3__glu_gated_geglu__prompt_kernel"
OPT = dict(prof=0, nt_in=0, nt_w=0, stop=99, warm=2, shufwait=0, bud=7, bud3=12, bud2=12, lag=50, poll_lead=45, chk0=480, chk1=578, chk2=678, chk3=758, hd=2, wn0=20, wn_gap=14, ld0=485, ldgap=4, maxlead=80, x_nodma=0, x_nobar=0, x_nofill=0, passprof=0, ksprof=0, xup=10, wd0=10, wd1=600, htouch=0, dbgspin=0, pre_a1=3, pre_r1=2, pre_g2=0, pre_g2_at=238, pre_a2=3, pre_r2=1, pre_every=8, pre_now=4, bar2=1, dma_gap=7, pd=8, lgw=4, slack=3, x3=4, x2=2, pub_from=480, hd1=3, ksw=0, sig_q=2, wtouch=0, go=1, go_early=1, cx=1, stubs=1, redo=1, nap=0, map=4, wnt=0, x_plain=0, x_nown=0, late_pre=0, rev=1, w3=0, a1w3=0, x_skipr1=0, wdt=0, wd_a=0, wd_r=0, wd_s=0, wdt_n=24, wdt_p=8, hier=0, outpol=0, dbgout=0, sent_y=0, sent_f=0, pwave=0, x_nochk=0, x_nopub=0, x_nohload=0, x_nowd=0, wd_early=0, wd_chk=40, wd_gap=4, wd_n=55, xtouch=0)
for a in sys.argv[2:]:
    k, v = a.split("="); OPT[k] = int(v)

C1 = 2.0 * math.sqrt(2.0 / math.pi) * math.log2(math.e); C2 = C1 * 0.044715
ALPHA = C2 ** (1.0 / 3.0); KAPPA = C1 / ALPHA; INVA2 = 1.0 / (ALPHA * ALPHA)
ACT = 0x280000
CNT = 0; EPO = 0xA000; P0F = 0xA080; GOF = 0xA800; P0W = 0xB000; WDF = 0xD000; PROF = 0x10000
KVT = 0x100000; YB = KVT + ACT; XN = [YB + ACT, YB + 2 * ACT]; X3 = YB + 3 * ACT; F1 = YB + 4 * ACT
HB = [F1 + ACT, F1 + ACT + 0x700000]
WGU = HB[1] + 0x700000; WDP = WGU + 0x460000; WS_END = WDP + 0x230000
WT = 286720
RING = 0; ST_X = 131072; ST_Y = ST_X + 12288; RED = ST_Y + 12288
P0L = 0; F0 = 16384; FCH = 16640; FCP = 4160; U0 = F0 + 4 * FCH; UCH = 4640; YA = U0 + 4 * UCH; YCS = 4624
SHST = 20992
LDS_BYTES = 163840
SPIN_LIMIT = 400000
WS = "s[8:11]"; SA = "s[12:15]"; SB = "s[44:47]"; SC = "s[48:51]"
P_Q, P_K, P_V, P_SHK, P_SSM, P_D, P_WG, P_WU, P_WD, P_OUT, P_DBG, P_WS = 16, 18, 20, 22, 24, 26, 30, 32, 34, 36, 38, 40
sWV, sX, sSLOT, sG, sHF, sMI, sCI, sCGP, sMASK, sRB, sJT = "s52", "s53", "s54", "s55", "s56", "s57", "s58", "s59", "s60", "s61", "s62"
sDV = "s63"; sTAG = "s42"; sNTAG = "s43"
T = [f"s{i}" for i in range(64, 84)]
sSPIN = "s84"; sWB = "s85"; sWO = "s86"; sM0 = "s87"; sH = ["s88", "s89", "s90", "s91"]; sHS = "s92"; sHS3 = "s93"; sWD = "s94"
DBG = f"s[{P_DBG}:{P_DBG+1}]"; WSP = f"s[{P_WS}:{P_WS+1}]"
NT_IN = " nt" if OPT["nt_in"] else ""
NT_W = " nt" if OPT["nt_w"] else ""
BIG = "0x80000000"
WNT = " nt" if OPT["wnt"] else ""
OUTP = ("", " sc1", " nt", " sc0 sc1")[OPT["outpol"]]

e = Emit()
def v(i, n=1): return f"v{i}" if n == 1 else f"v[{i}:{i+n-1}]"
def a(i, n=1): return f"a{i}" if n == 1 else f"a[{i}:{i+n-1}]"
def f32(x): return "0x%08x" % struct.unpack("<I", struct.pack("<f", x))[0]

def srd(dst, ptr, nbytes, add=None):
    d = int(dst[2:dst.index(":")])
    if add is None:
        e(f"s_mov_b32 s{d}, s{ptr}\ns_mov_b32 s{d+1}, s{ptr+1}")
    else:
        e(f"s_add_u32 s{d}, s{ptr}, {add}\ns_addc_u32 s{d+1}, s{ptr+1}, 0")
    e(f"s_mov_b32 s{d+2}, {nbytes}\ns_mov_b32 s{d+3}, 0x20000")

VST = 5
stamp_names = []
def stamp(name):
    if not OPT["prof"]:
        return
    i = stamp_names.index(name) if name in stamp_names else len(stamp_names)
    if name not in stamp_names: stamp_names.append(name)
    e.raw("s_memrealtime s[4:5]\ns_memtime s[6:7]")
    e.wait_all(vm=False)
    e(f"v_writelane_b32 v{VST}, s4, {i}\nv_writelane_b32 v{VST}, s6, {32+i}")

light_prev = [None]
def lstamp(name):
    if light_prev[0] is not None:
        i, r = light_prev[0]
        e.raw(f"s_waitcnt lgkmcnt(0)\nv_writelane_b32 v{VST}, s{r}, {32+i}\nv_writelane_b32 v{VST}, 1, {i}")
        light_prev[0] = None
    if name:
        stamp_names.append(name); i = len(stamp_names) - 1
        e.raw("s_memtime s[6:7]"); light_prev[0] = (i, 6)

def rstamp(name):
    if OPT['passprof'] == 3: stamp(name)

def fstamp(name):
    if not OPT['passprof'] and not OPT['ksprof']: stamp(name)

spin_sites = []
def spin_report(vt):
    if not OPT["dbgspin"]:
        return
    site = len(spin_sites); spin_sites.append(site)
    L = e.uid("rep")
    e.raw(f"""s_cmp_lt_u32 {sSPIN}, 3000
    s_cbranch_scc1 {L}
    s_mov_b64 exec, 1
    v_mov_b32 v252, {128 + 4 * site}
    v_mov_b32 v253, 1
    global_atomic_add v252, v253, {DBG} sc1
    s_mov_b64 exec, -1
    s_waitcnt vmcnt(0)
    {L}:""")

def spin(vaddr, base, target, vt=6, nap=0):
    L = e.uid("spin"); D = e.uid("spun")
    e.raw(f"""s_mov_b32 {sSPIN}, 0
    {L}:
    global_load_dword v{vt}, v{vaddr}, {base} sc1
    {f"s_sleep {nap}" if nap else ""}
    s_add_u32 {sSPIN}, {sSPIN}, 1
    s_cmp_gt_u32 {sSPIN}, {SPIN_LIMIT}
    s_cbranch_scc1 {D}
    s_waitcnt vmcnt(0)
    v_cmp_gt_u32 vcc, {target}, v{vt}
    s_cbranch_vccnz {L}
    {D}:
    s_waitcnt vmcnt(0)""")
    spin_report(vt)

def tag_load():
    e(f"v_mov_b32 v255, {EPO}\nglobal_load_dword v255, v255, {WSP} sc1", tag="epo")

def tag_ready():
    e.wait(vm="epo")
    e(f"v_readfirstlane_b32 {sTAG}, v255")
    e.wait_all(vm=False)
    e(f"s_add_u32 {sTAG}, {sTAG}, 1\ns_not_b32 {sNTAG}, {sTAG}")

def tag_bad(r, n):
    e.raw(f"v_xor_b32 v{r}, {sTAG}, v{r}\nv_xor_b32 v{r+1}, {sNTAG}, v{r+1}\nv_or_b32 v{r}, v{r}, v{r+1}")
    for k in range(1, n):
        e.raw(f"v_xor_b32 v{r+2*k}, {sTAG}, v{r+2*k}\nv_xor_b32 v{r+2*k+1}, {sNTAG}, v{r+2*k+1}\nv_or3_b32 v{r}, v{r}, v{r+2*k}, v{r+2*k+1}")
    e.raw(f"v_cmp_ne_u32 vcc, 0, v{r}")

def spin_tag(loads, r, n):
    L = e.uid("spin"); D = e.uid("spun")
    e.raw(f"s_mov_b32 {sSPIN}, 0\n{L}:\n{loads}")
    e.raw(f"""s_add_u32 {sSPIN}, {sSPIN}, 1
    s_cmp_gt_u32 {sSPIN}, {SPIN_LIMIT}
    s_cbranch_scc1 {D}
    s_waitcnt vmcnt(0)""")
    tag_bad(r, n)
    e.raw(f"s_cbranch_vccnz {L}\n{D}:\ns_waitcnt vmcnt(0)")
    spin_report(r)

def all_loads(va, vb, r):
    return f"global_load_dwordx4 v[{r}:{r+3}], v{va}, {WSP} sc1\nglobal_load_dwordx4 v[{r+4}:{r+7}], v{vb}, {WSP} sc1"

def all_addr(va, vb):
    e(f"v_add_u32 v{va}, {P0F}, v1\nv_and_b32 v{vb}, 0xf0, v1\nv_add_u32 v{vb}, {P0F+1024}, v{vb}")

NPAGES = 12
def page_calls(waves):
    if not OPT["stubs"]: return
    D = e.uid("pg")
    for k, w in enumerate(waves):
        L = e.uid("pgw")
        e.raw(f"s_cmp_lg_u32 {sWV}, {w}\ns_cbranch_scc1 {L}")
        for p in range(1 + k, NPAGES, len(waves)):
            C = e.uid("pc")
            e.raw(f"""s_getpc_b64 s[96:97]
            {C}:
            s_add_u32 s96, s96, L_page{p}-{C}
            s_addc_u32 s97, s97, (L_page{p}-{C})>>32
            s_swappc_b64 s[98:99], s[96:97]""")
        e.raw(f"s_branch {D}\n{L}:")
    e.raw(f"{D}:")

def wave0(fn):
    L = e.uid("w0")
    e.raw(f"s_cmp_lg_u32 {sWV}, 0\ns_cbranch_scc1 {L}")
    fn()
    e.raw(f"{L}:")

def wait_flag(vaddr, base, target, nap=0):
    wave0(lambda: spin(vaddr, base, target, nap=nap))
    e.raw("s_barrier")

def signal(soff, base, vt=6):
    def fn():
        e.raw(f"""s_mov_b64 exec, 1
        v_mov_b32 v{vt}, {soff}
        v_mov_b32 v{vt+1}, 1
        global_atomic_add v{vt}, v{vt+1}, {base} sc1
        s_mov_b64 exec, -1""")
    wave0(fn)

def cnt_off(dst, idx_expr_s, const):
    e(f"s_lshl_b32 {dst}, {idx_expr_s}, 8\ns_add_u32 {dst}, {dst}, {CNT + const * 256 + 128}")

def entry():
    e(f"""s_cmp_ge_u32 s2, 256
    s_cbranch_scc1 L_exit
    s_load_dwordx16 s[16:31], s[0:1], 0
    s_load_dwordx8 s[32:39], s[0:1], 64
    s_load_dwordx2 s[40:41], s[0:1], 96""")
    if OPT["warm"] == 2: warm_code()
    e(f"""v_lshrrev_b32 v2, 6, v0
    v_and_b32 v0, 63, v0
    v_readfirstlane_b32 {sWV}, v2
    s_and_b32 {sX}, s2, 7
    s_lshr_b32 {sSLOT}, s2, 3
    s_mov_b32 {sMASK}, 0xffff0000
    v_lshlrev_b32 v1, 4, v0""")
    if OPT["prof"]:
        e(f"v_mov_b32 v{VST}, 0")
    e(f"s_cmp_ge_u32 {sSLOT}, 20\ns_cbranch_scc1 L_shuf")

def warm_code():
    e(f"""s_getpc_b64 s[96:97]
    L_pc:
    s_sub_u32 s96, s96, L_pc-{NAME}
    s_subb_u32 s97, s97, 0""")
    if OPT["warm"] == 1:
        e(f"""s_sub_u32 {T[1]}, {sSLOT}, 20
        s_lshl_b32 {T[1]}, {T[1]}, 2
        s_add_u32 {T[1]}, {T[1]}, {sWV}
        s_lshl_b32 {T[1]}, {T[1]}, 11
        v_and_b32 v254, 15, v0
        v_lshlrev_b32 v254, 7, v254""")
    else:
        e(f"""s_lshl_b32 {T[1]}, s2, 8
        s_and_b32 {T[1]}, {T[1]}, 0xf800
        v_lshlrev_b32 v254, 3, v0
        v_and_b32 v254, 0x780, v254""")
    e(f"""v_add_u32 v254, {T[1]}, v254
    v_min_u32 v254, L_exit-{NAME}, v254
    global_load_dword v254, v254, s[96:97]""", tag="warm")

def args_ready():
    e.wait_all(vm=False)
    stamp("start")

def ffn_ids():
    srd(WS, P_WS, WS_END)
    if OPT["map"] == 8:
        e(f"""s_lshl_b32 {T[0]}, {sX}, 1
        s_lshr_b32 {T[1]}, {sSLOT}, 4
        s_add_u32 {sG}, {T[0]}, {T[1]}
        s_bfe_u32 {sHF}, {sSLOT}, 0x10003""")
    else:
        e(f"""s_lshr_b32 {T[0]}, {sX}, 1
        s_lshl_b32 {T[0]}, {T[0]}, 2
        s_lshr_b32 {T[1]}, {sSLOT}, 3
        s_add_u32 {sG}, {T[0]}, {T[1]}
        s_and_b32 {sHF}, {sX}, 1""")
    e(f"""s_and_b32 {sMI}, {sSLOT}, 7
    s_lshl_b32 {T[0]}, {sHF}, 3
    s_add_u32 {sJT}, {T[0]}, {sMI}
    s_lshl_b32 {sRB}, {sG}, 4
    s_add_u32 {sRB}, {sRB}, {sJT}""")

def q_prefetch(t):
    srd(SC, P_Q, ACT)
    e(f"""v_and_b32 v{t}, 7, v0
    v_lshrrev_b32 v{t+1}, 3, v0
    v_mul_u32_u24 v{t}, 1280, v{t}
    v_lshl_add_u32 v{t}, v{t+1}, 4, v{t}
    s_mul_i32 {T[18]}, {sRB}, 10240
    s_mul_i32 {T[19]}, {sWV}, 320
    s_add_u32 {T[18]}, {T[18]}, {T[19]}
    v_mov_b32 v{t+1}, {BIG}
    v_cmp_gt_u32 vcc, 32, v0
    v_cndmask_b32 v{t+1}, v{t+1}, v{t}, vcc""")
    return [(f"buffer_load_dwordx4 a[240:243], v{t}, {SC}, {T[18]} offen{NT_IN}", "q"),
            (f"buffer_load_dwordx4 a[244:247], v{t}, {SC}, {T[18]} offen offset:128{NT_IN}", "q"),
            (f"buffer_load_dwordx4 a[248:251], v{t+1}, {SC}, {T[18]} offen offset:256{NT_IN}", "q")]

def replica_add(line0):
    def fn2():
        L = e.uid("notlast")
        e.raw(f"""s_mov_b64 exec, 1
        v_mov_b32 v6, {line0}
        v_mov_b32 v7, 1
        global_atomic_add v8, v6, v7, {WSP} sc0 sc1
        s_waitcnt vmcnt(0)
        v_cmp_eq_u32 vcc, 15, v8
        s_cbranch_vccz {L}
        s_mov_b64 exec, 0xff
        v_lshlrev_b32 v6, 8, v0
        v_add_u32 v6, {CNT + 6*4096 + 2048}, v6
        v_mov_b32 v7, 1
        global_atomic_add v6, v7, {WSP} sc1
        {L}:
        s_mov_b64 exec, -1""")
    if OPT["hier"]:
        wave0(fn2)
        return
    def fn():
        e.raw(f"""s_mov_b64 exec, 0xff
        v_lshlrev_b32 v6, 8, v0
        v_add_u32 v6, {line0}, v6
        v_mov_b32 v7, 1
        global_atomic_add v6, v7, {WSP} sc1
        s_mov_b64 exec, -1""")
    wave0(fn)

def shuf_addr(r):
    e(f"s_lshl_b32 {T[4]}, {sX}, 8\ns_add_u32 {T[4]}, {T[4]}, {CNT + 2048}\nv_min_u32 v{r}, 5, v0\nv_lshlrev_b32 v{r}, 12, v{r}\nv_add_u32 v{r}, {T[4]}, v{r}")

def wd_base():
    e(f"""s_mul_i32 {sWD}, {sMI}, {WT}
    s_mul_i32 {T[12]}, {sWV}, 71680
    s_add_u32 {sWD}, {sWD}, {T[12]}
    s_add_u32 {sWD}, {sWD}, {WDP}
    v_min_u32 v226, 27, v0
    v_lshlrev_b32 v226, 3, v226
    s_lshl_b32 {T[12]}, {sX}, 8
    s_add_u32 {T[12]}, {T[12]}, {WDF}
    v_add_u32 v226, {T[12]}, v226""")
WD_POLL = f"global_load_dwordx2 v[228:229], v226, {WSP} sc1"
def wd_check():
    L = e.uid("wdok")
    e.wait(vm="wdf")
    keep = list(e.vm)
    tag_bad(228, 1)
    e.raw(f"s_cbranch_vccz {L}")
    spin_tag(WD_POLL, 228, 1)
    e.raw(f"{L}:")
    e.vm = keep
    fstamp("wd_ok")
def wd_resident(n):
    L = []
    for fr in range(n):
        if fr & 3 == 0: L.append(f"s_add_u32 {T[13]}, {sWD}, {fr*1024}")
        L.append((f"buffer_load_dwordx4 {a(4*fr,4)}, v1, {WS}, {T[13]} offen offset:{1024*(fr&3)} sc1", "wdres"))
    return L

def all_check():
    L = e.uid("allok")
    e.wait(vm="all")
    keep = list(e.vm)
    tag_bad(208, 4)
    e.raw(f"s_cbranch_vccz {L}")
    spin_tag(all_loads(216, 217, 208), 208, 4)
    e.raw(f"{L}:")
    e.vm = keep

def p0():
    KR, VR, WR, WF, KF, AC, VF, PK, HR = 16, 44, 60, 76, 108, 164, 196, 200, 216
    e(f"""s_mul_i32 {sCI}, {sX}, 20
    s_add_u32 {sCI}, {sCI}, {sSLOT}
    s_lshr_b32 {sCGP}, {sCI}, 4
    s_and_b32 {T[0]}, {sCI}, 15
    s_lshl_b32 {T[0]}, {T[0]}, 7
    s_lshl_b32 {T[1]}, {sWV}, 5
    s_add_u32 {T[2]}, {T[0]}, {T[1]}
    s_mul_i32 {T[3]}, {T[2]}, 1280
    s_lshl_b32 {T[4]}, {sCGP}, 7
    s_add_u32 {T[3]}, {T[3]}, {T[4]}
    v_and_b32 v2, 7, v0
    v_lshrrev_b32 v3, 3, v0
    v_mul_u32_u24 v4, 5120, v3
    v_lshl_add_u32 v4, v2, 4, v4
    v_add_u32 v4, {T[3]}, v4
    v_subrev_u32 v8, 3840, v4
    v_mov_b32 v9, {BIG}
    v_cmp_gt_u32 vcc, 1280, v4
    s_lshl_b32 {T[4]}, {sCGP}, 9
    s_lshl_b32 {T[5]}, {sCI}, 2
    v_cndmask_b32 v8, v8, v9, vcc
    v_lshlrev_b32 v9, 6, v2
    s_add_u32 {T[5]}, {T[5]}, {sWV}
    s_lshl_b32 {T[6]}, {T[5]}, 12
    s_lshr_b32 {T[7]}, {T[5]}, 1
    s_lshl_b32 {T[7]}, {T[7]}, 2
    v_subrev_u32 v10, 32, v1
    v_subrev_u32 v11, 16, v1
    v_add_u32 v12, 992, v1""")
    args_ready()
    srd(SA, P_K, ACT)
    for i in range(3):
        e(f"buffer_load_dwordx4 {v(KR+4*i,4)}, v8, {SA}, 0 offen offset:{1280*i}{NT_IN}", tag=f"k{i}")
    for i in range(4):
        e(f"buffer_load_dwordx4 {v(KR+12+4*i,4)}, v4, {SA}, 0 offen offset:{1280*i}{NT_IN}", tag=f"k{i+3}")
    srd(SC, P_SHK, 5120)
    for i in range(4):
        e(f"buffer_load_dwordx4 {v(WR+4*i,4)}, v9, {SC}, {T[4]} offen offset:{16*i}", tag="shk")
    srd(SB, P_V, ACT)
    for i in range(4):
        e(f"buffer_load_dwordx4 {v(VR+4*i,4)}, v4, {SB}, 0 offen offset:{1280*i}{NT_IN}", tag=f"v{i}")
    tag_load()
    e.raw(f"s_load_dword {sDV}, s[{P_D}:{P_D+1}], {T[7]}")
    srd(SA, P_SSM, 4096, add=T[6])
    e(f"buffer_load_dwordx4 {v(HR,4)}, v10, {SA}, 0 offen{NT_IN}\nbuffer_load_dwordx2 {v(HR+4,2)}, v11, {SA}, 0 offen{NT_IN}", tag="h0")
    for q in range(1, 5):
        e(f"buffer_load_dwordx4 {v(HR+8*q,4)}, v12, {SA}, 0 offen offset:{1024*(q-1)}{NT_IN}", tag=f"h{q}")
        e(f"buffer_load_dwordx2 {v(HR+8*q+4,2)}, v12, {SA}, 0 offen offset:{1024*(q-1)+16}{NT_IN}", tag=f"h{q}")
    ffn_ids()
    def clr():
        e.raw(f"""s_lshl_b32 {T[8]}, {sCI}, 8
        s_mov_b64 exec, 0xffff
        v_mov_b32 v196, 0
        v_mov_b32 v197, 0
        v_mov_b32 v198, 0
        v_mov_b32 v199, 0
        buffer_store_dwordx4 v[196:199], v1, {WS}, {T[8]} offen sc1
        s_mov_b64 exec, -1""")
    wave0(clr)
    if OPT["sent_y"]:
        e(f"""v_mul_u32_u24 v12, 20480, v3
        v_lshl_add_u32 v12, v2, 4, v12
        s_mul_i32 {T[10]}, {sWV}, {32*20480}
        s_lshl_b32 {T[11]}, {sCI}, 7
        s_add_u32 {T[10]}, {T[10]}, {T[11]}
        s_add_u32 {T[10]}, {T[10]}, {YB}
        v_mov_b32 v196, -1
        v_mov_b32 v197, -1
        v_mov_b32 v198, -1
        v_mov_b32 v199, -1""")
        for m in range(4):
            e(f"buffer_store_dwordx4 v[196:199], v12, {WS}, {T[10]} offen sc1\ns_add_u32 {T[10]}, {T[10]}, {8*20480}", tag="clr")
    e(f"""s_lshl_b32 {T[8]}, {sWV}, 12
    v_lshlrev_b32 v13, 9, v3
    v_sub_u32 v13, {P0L + 28*128}, v13
    v_lshl_add_u32 v13, v2, 4, v13
    v_add_u32 v13, {T[8]}, v13
    v_bfe_u32 v14, v0, 2, 2
    v_lshlrev_b32 v14, 7, v14
    v_lshrrev_b32 v15, 4, v0
    v_lshl_add_u32 v14, v15, 5, v14
    v_and_b32 v15, 3, v0
    v_lshl_add_u32 v14, v15, 3, v14
    v_add_u32 v14, {T[8]}, v14
    s_sub_u32 {T[8]}, 2016, {T[2]}
    s_lshr_b32 {T[8]}, {T[8]}, 3
    s_mul_i32 {T[8]}, {T[8]}, 10240
    s_lshl_b32 {T[9]}, {sCGP}, 10
    s_add_u32 {T[8]}, {T[8]}, {T[9]}
    s_add_u32 {T[8]}, {T[8]}, {KVT}""")
    def unpack(dst, src, n):
        for c in range(n):
            if c & 1: e(f"v_and_b32 v{dst+c}, {sMASK}, v{src+(c>>1)}")
            else: e(f"v_lshlrev_b32 v{dst+c}, 16, v{src+(c>>1)}")
    for i in range(7):
        e.wait(vm=f"k{i}")
        unpack(KF + 8 * i, KR + 4 * i, 8)
    e.wait(vm="shk")
    for c in range(8):
        for tau in range(4):
            src = WR + 2 * c + (tau >> 1)
            if tau & 1: e(f"v_and_b32 v{WF+8*tau+c}, {sMASK}, v{src}")
            else: e(f"v_lshlrev_b32 v{WF+8*tau+c}, 16, v{src}")
    fstamp("k_done")
    for i in range(4):
        for p in range(4):
            d = v(AC + 8 * i + 2 * p, 2)
            e(f"v_pk_mul_f32 {d}, {v(KF+8*(i+3)+2*p,2)}, {v(WF+2*p,2)}")
        for tau in range(1, 4):
            for p in range(4):
                d = v(AC + 8 * i + 2 * p, 2)
                e(f"v_pk_fma_f32 {d}, {v(KF+8*(i+3-tau)+2*p,2)}, {v(WF+8*tau+2*p,2)}, {d}")
        e.wait(vm=f"v{i}")
        unpack(KF + 8 * i, VR + 4 * i, 8)
        for p in range(4):
            d = v(AC + 8 * i + 2 * p, 2)
            e(f"v_pk_mul_f32 {d}, {d}, {v(KF+8*i+2*p,2)}")
        for p in range(4):
            e(f"v_cvt_pk_bf16_f32 v{PK+4*i+p}, v{AC+8*i+2*p}, v{AC+8*i+2*p+1}")
        e(f"ds_write_b128 v13, {v(PK+4*i,4)} offset:{128*(3-i)}", tag="w")
    for m in range(4):
        for hh in range(2):
            e(f"ds_read_b64_tr_b16 {v(16+4*m+2*hh,2)}, v14 offset:{(8*m+4*hh)*128}", tag=f"t{m}")
    tag_ready()
    for m in range(4):
        e(f"buffer_store_dwordx4 {v(16+4*m,4)}, v1, {WS}, {T[8]} offen sc1", tag="st")
        if m < 3: e(f"s_add_u32 {T[8]}, {T[8]}, 10240")
    fstamp("p0_st")
    e(f"s_mul_i32 {T[9]}, {sWV}, {FCH}\ns_add_u32 {T[9]}, {T[9]}, {F0}\nv_add_u32 v13, {T[9]}, v1")
    for q in range(5):
        d = HR + 8 * q; t = 108 + 12 * q
        e.wait(vm=f"h{q}")
        for j in range(4):
            e(f"v_alignbit_b32 v{t+j}, v{d+j+1}, v{d+j}, 16")
            e(f"v_mov_b32 v{t+4+j}, v{d+j+1}")
            e(f"v_alignbit_b32 v{t+8+j}, v{d+j+2}, v{d+j+1}, 16")
        if q == 4: e("s_mov_b64 exec, 3")
        e(f"ds_write_b128 v13, {v(d,4)} offset:{1024*q}", tag="w")
        for sg in range(1, 4):
            e(f"ds_write_b128 v13, {v(t+4*sg-4,4)} offset:{sg*FCP+1024*q}", tag="w")
        if q == OPT["sig_q"]:
            e("s_mov_b64 exec, -1")
            p0_signal()
    e(f"""s_mul_i32 {T[9]}, {sWV}, {UCH}
    s_add_u32 {T[9]}, {T[9]}, {U0}
    s_mov_b64 exec, -1
    v_add_u32 v13, {T[9]}, v1
    v_mov_b32 v32, 0
    v_mov_b32 v33, 0
    v_mov_b32 v34, 0
    v_mov_b32 v35, 0
    s_mov_b32 exec_lo, -1
    s_mov_b32 exec_hi, 3
    ds_write_b128 v13, v[32:35] offset:4096
    s_mov_b64 exec, -1""", tag="w")
    e(f"""s_and_b32 {T[7]}, {T[5]}, 1
    s_lshl_b32 {T[6]}, {sDV}, 16
    s_and_b32 {sDV}, {sDV}, {sMASK}
    s_cmp_eq_u32 {T[7]}, 0
    s_cselect_b32 {sDV}, {T[6]}, {sDV}
    v_and_b32 v7, 15, v0
    v_lshlrev_b32 v7, 3, v7""")
    if OPT["pwave"]:
        e(f"s_lshl_b32 {T[8]}, {sCGP}, 2\ns_sub_u32 {T[8]}, {T[8]}, {sWV}\ns_lshl_b32 {T[8]}, {T[8]}, 7\ns_add_u32 {T[8]}, {T[8]}, {P0W + 384}")
    else:
        e(f"s_lshl_b32 {T[8]}, {sCGP}, 7\ns_add_u32 {T[8]}, {T[8]}, {P0F}")
    e(f"v_add_u32 v7, {T[8]}, v7")

def tag_store(soff, t):
    e.raw(f"""s_mov_b64 exec, 1
    v_mov_b32 v{t}, {soff}
    v_mov_b32 v{t+2}, {sTAG}
    v_mov_b32 v{t+3}, {sNTAG}
    global_store_dwordx2 v{t}, v[{t+2}:{t+3}], {WSP} sc1
    s_mov_b64 exec, -1""")

def wg_flag(t):
    e(f"s_lshl_b32 {T[8]}, {sCI}, 3\ns_add_u32 {T[8]}, {T[8]}, {P0F}")
    wave0(lambda: tag_store(T[8], t))

def p0_signal():
    if OPT["pwave"]:
        e(f"s_lshl_b32 {T[8]}, {sCI}, 5\ns_lshl_b32 {T[10]}, {sWV}, 3\ns_add_u32 {T[8]}, {T[8]}, {T[10]}\ns_add_u32 {T[8]}, {T[8]}, {P0W}")
    e.wait_all(lg=False)
    fstamp("p0_drain")
    if OPT["pwave"]:
        tag_store(T[8], 36)
    else:
        e.raw("s_barrier")
        wg_flag(36)

def sentinel_loop(loads, r, vt):
    L = e.uid("sent"); D = e.uid("sentok")
    def chk():
        e.raw("\n".join([f"v_max3_u32 v{vt}, v{r}, v{r+1}, v{r+2}"] + [f"v_max3_u32 v{vt}, v{vt}, v{r+k}, v{r+k+1}" for k in range(3, 11, 2)] +
                        [f"v_max_u32 v{vt}, v{vt}, v{r+11}", f"v_cmp_eq_u32 vcc, -1, v{vt}"]))
    keep = list(e.vm)
    chk()
    e.raw(f"s_cbranch_vccz {D}\ns_mov_b32 {sSPIN}, 0\n{L}:\n{loads}")
    e.raw(f"""s_add_u32 {sSPIN}, {sSPIN}, 1
    s_waitcnt vmcnt(0)
    s_cmp_gt_u32 {sSPIN}, {SPIN_LIMIT}
    s_cbranch_scc1 {D}""")
    chk()
    e.raw(f"s_cbranch_vccnz {L}\n{D}:")
    e.vm = keep

def go_raise():
    if True:
        L = e.uid("go")
        e.raw(f"""s_or_b32 {T[2]}, {sSLOT}, {sWV}
        s_cmp_lg_u32 {T[2]}, 0
        s_cbranch_scc1 {L}
        s_lshl_b32 {T[2]}, {sX}, 7
        s_add_u32 {T[2]}, {T[2]}, {GOF}
        s_mov_b64 exec, 1
        v_mov_b32 v220, {T[2]}
        v_mov_b32 v222, {sTAG}
        v_mov_b32 v223, {sNTAG}
        global_store_dwordx2 v220, v[222:223], {WSP} sc1
        s_mov_b64 exec, -1
        {L}:""")

def conv():
    AC, GB, FB, KV, KU, YP = 16, (48, 80), 112, 144, 160, 192
    e(f"""v_lshrrev_b32 v8, 2, v0
    v_and_b32 v9, 3, v0
    v_mul_u32_u24 v10, 10240, v8
    v_lshl_add_u32 v10, v9, 4, v10
    v_mul_u32_u24 v11, {UCH}, v9
    v_lshl_add_u32 v11, v8, 4, v11
    s_lshl_b32 {T[0]}, {sWV}, 10
    s_add_u32 {T[0]}, {T[0]}, {U0}
    v_add_u32 v11, {T[0]}, v11
    s_mul_i32 {T[0]}, {sWV}, {64*10240}
    s_lshl_b32 {T[1]}, {sCI}, 6
    s_add_u32 {T[0]}, {T[0]}, {T[1]}
    s_add_u32 {T[0]}, {T[0]}, {KVT}
    v_and_b32 v8, 15, v0
    v_lshrrev_b32 v9, 4, v0
    v_add_u32 v12, 1, v8
    v_and_b32 v13, 3, v12
    v_sub_u32 v12, v12, v13
    v_mul_u32_u24 v13, {FCP}, v13
    v_lshl_add_u32 v12, v12, 1, v13
    v_lshl_add_u32 v12, v9, 4, v12
    s_mul_i32 {T[1]}, {sWV}, {FCH}
    s_add_u32 {T[1]}, {T[1]}, {F0}
    v_add_u32 v2, {T[1]}, v12
    s_mul_i32 {T[1]}, {sWV}, {UCH}
    s_add_u32 {T[1]}, {T[1]}, {U0}
    v_lshlrev_b32 v12, 5, v8
    v_sub_u32 v12, {T[1]}, v12
    v_lshl_add_u32 v3, v9, 4, v12
    v_add_u32 v3, 480, v3
    v_lshlrev_b32 v13, 3, v9
    v_sub_u32 v4, v12, v13
    v_add_u32 v4, 504, v4""")
    if OPT["pwave"]:
        spin_tag(f"global_load_dwordx2 v[14:15], v7, {WSP} sc1", 14, 1)
    else:
        page_calls((1, 2, 3))
        wave0(lambda: spin_tag(f"global_load_dwordx2 v[14:15], v7, {WSP} sc1", 14, 1))
        e.raw("s_barrier")
    stamp("p0_flag")
    for m in range(4):
        e(f"buffer_load_dwordx4 {v(16+4*m,4)}, v10, {WS}, {T[0]} offen sc1", tag=f"u{m}")
        if m < 3: e(f"s_add_u32 {T[0]}, {T[0]}, {16*10240}")
    if OPT["go"] and OPT["go_early"]: go_raise()
    ql = q_prefetch(218)
    all_addr(216, 217)
    shuf_addr(224)
    if OPT["wd_early"]:
        wd_base()
    e(f"""v_lshrrev_b32 v10, 1, v8
    v_mul_u32_u24 v10, 72, v10
    v_and_b32 v12, 1, v8
    v_lshl_add_u32 v10, v12, 4, v10
    v_lshl_add_u32 v10, v9, 2, v10
    s_mul_i32 {T[1]}, {sWV}, {YCS}
    s_add_u32 {T[1]}, {T[1]}, {YA}
    v_add_u32 v10, {T[1]}, v10
    v_lshrrev_b32 v14, 2, v8
    v_mul_u32_u24 v14, {YCS}, v14
    v_mul_u32_u24 v12, 72, v9
    v_add_u32 v14, v14, v12
    v_and_b32 v12, 3, v8
    v_lshl_add_u32 v14, v12, 3, v14
    s_mul_i32 {T[1]}, {sWV}, {72*16}
    s_add_u32 {T[1]}, {T[1]}, {YA}
    v_add_u32 v14, {T[1]}, v14
    v_lshrrev_b32 v12, 3, v0
    v_mul_u32_u24 v12, 20480, v12
    v_and_b32 v13, 7, v0
    v_lshl_add_u32 v12, v13, 4, v12
    s_mul_i32 {T[0]}, {sWV}, {32*20480}
    s_lshl_b32 {T[1]}, {sCI}, 7
    s_add_u32 {T[0]}, {T[0]}, {T[1]}
    s_add_u32 {T[0]}, {T[0]}, {YB}
    s_lshl_b32 {T[1]}, {sCGP}, 12
    s_add_u32 {T[1]}, {T[1]}, {CNT}""")
    seq = []
    for r in range(8):
        for aa in range(8):
            for b in range(7 - aa, -1, -1):
                seq.append((r, aa, b))
    first = {}; last = {}; fin = {}
    for t, (r, aa, b) in enumerate(seq):
        fin[aa + b] = t
        for key in (("F", r, aa), ("G", r, b)):
            first.setdefault(key, t); last[key] = t
    reads = []
    for key, t in first.items():
        kind, r, i = key
        prev = (kind, r - (1 if kind == "F" else 2), i)
        earliest = last[prev] + 1 if prev in last else -99
        if kind == "F":
            for h in range(2):
                reads.append((t, earliest, f"ds_read_b64 {v(FB+4*i+2*h,2)}, v2 offset:{512*i+64*r+8*h}", key))
        else:
            reads.append((t, earliest, f"ds_read_b128 {v(GB[r&1]+4*i,4)}, v3 offset:{512*(7-i)+64*r}", key))
    reads.sort(key=lambda x: x[0])
    early = [x for x in reads if x[3][0] == "F" and x[3][1] == 0]
    for x in early:
        e(x[2], tag=x[3]); reads.remove(x)
    for m in range(4):
        e.wait(vm=f"u{m}")
        e(f"ds_write_b128 v11, {v(16+4*m,4)} offset:{256*m}", tag="w")
    e.wait_all(vm=False)
    e.raw("s_barrier")
    if OPT["pwave"]: wg_flag(220)
    if OPT["go"] and not OPT["go_early"]: go_raise()
    fstamp("u_ready")
    S = Sched()
    if OPT["wd_early"]:
        S.at(OPT["wd_chk"] - 40, [(WD_POLL, "wdf")])
        S.at(OPT["wd_chk"], [wd_check])
        t = OPT["wd_chk"] + 1
        for it in wd_resident(OPT["wd_n"]):
            S.at(t, [it])
            if isinstance(it, tuple): t += OPT["wd_gap"]
    S.at(20, ql)
    S.at(200, [(l, "all") for l in all_loads(216, 217, 208).split("\n")])
    for n in range(8):
        S.at(150 + 4 * n, [(f"ds_read_b64 {v(KV+2*n,2)}, v4 offset:{512*(7-n)}", f"kv{n}")])
        d0, d1 = KV + 2 * n, KV + 2 * n + 1
        S.add(205, [f"v_and_b32 v{KU+4*n}, {sMASK}, v{d1}", f"v_lshlrev_b32 v{KU+4*n+1}, 16, v{d1}",
                    f"v_and_b32 v{KU+4*n+2}, {sMASK}, v{d0}", f"v_lshlrev_b32 v{KU+4*n+3}, 16, v{d0}"])
    for n in range(8):
        S.add(fin[n] + 6, [f"v_fmac_f32 v{AC+4*n+k}, {sDV}, v{KU+4*n+k}" for k in range(4)] +
              [f"v_cvt_pk_bf16_f32 v{YP+2*n}, v{AC+4*n}, v{AC+4*n+2}", f"v_cvt_pk_bf16_f32 v{YP+2*n+1}, v{AC+4*n+1}, v{AC+4*n+3}",
               (f"ds_write_b32 v10, v{YP+2*n} offset:{576*n}", "w"), (f"ds_write_b32 v10, v{YP+2*n+1} offset:{576*n+32}", "w")])
    LOOK = 22; ri = 0
    done_acc = set()
    for t, (r, aa, b) in enumerate(seq):
        n = 0
        while ri < len(reads) and reads[ri][1] <= t and (reads[ri][0] - t <= 6 or (n < 1 and reads[ri][0] - t <= LOOK)):
            e(reads[ri][2], tag=reads[ri][3]); ri += 1; n += 1
        need = [("F", r, aa), ("G", r, b)]
        S.gap(t, n + (1 if e.would_wait(lg=need) else 0), OPT["cx"] if t >= 262 else 0)
        e.wait(lg=need)
        acc = v(AC + 4 * (aa + b), 4)
        c = acc if (aa + b) in done_acc else "0"
        done_acc.add(aa + b)
        e(f"v_mfma_f32_16x16x32_bf16 {acc}, {v(FB+4*aa,4)}, {v(GB[r&1]+4*b,4)}, {c}")
    assert ri == len(reads) and not S.side
    print(f"conv: {len(S.fill)} epilogue instructions left after the last MFMA", file=sys.stderr)
    fstamp("conv_mfma")
    while S.fill: put(S.fill.pop(0)[1])
    e.wait_all(vm=False)
    e.raw("s_barrier")
    for m in range(4):
        for par in range(2):
            e(f"ds_read_b64_tr_b16 {v(48+4*m+2*par,2)}, v14 offset:{288*m+32*par}", tag=f"t{m}")
    for m in range(4):
        e.wait(lg=f"t{m}")
        e(f"buffer_store_dwordx4 {v(48+4*m,4)}, v12, {WS}, {T[0]} offen sc1", tag="st")
        if m < 3: e(f"s_add_u32 {T[0]}, {T[0]}, {8*20480}")
    if not OPT["sent_y"]: e.wait(vm="st")
    e.raw("s_barrier")
    replica_add(T[1])
    all_check()
    e(f"global_load_dword v225, v224, {WSP} sc1", tag="shuf")
    if OPT["pre_a1"]:
        L = e.uid("shufok")
        e.wait_all()
        e.raw(f"v_cmp_gt_u32 vcc, 16, v225\ns_cbranch_vccz {L}")
        spin(224, WSP, 16, 225)
        e.raw(f"{L}:")
    stamp("conv_done")

def go_wait(early=False):
    if not OPT["go"] or (OPT["go"] == 2) != early: return
    e(f"s_lshl_b32 {T[10]}, {sX}, 7\ns_add_u32 {T[10]}, {T[10]}, {GOF}\nv_mov_b32 v220, {T[10]}")
    e.wait_all()
    spin_tag(f"global_load_dwordx2 v[222:223], v220, {WSP} sc1\ns_sleep 2", 222, 1)

def shuffle():
    e.label("L_shuf")
    e(f"s_sub_u32 {sCI}, s2, 160")
    args_ready()
    tag_load()
    ffn_ids()
    for it in q_prefetch(8): put(it)
    e(f"s_lshl_b32 {T[0]}, {sCI}, 2\ns_add_u32 {T[0]}, {T[0]}, {sWV}")
    if OPT["warm"] == 1: warm_code()
    L = e.uid("nz")
    e.raw(f"""s_cmp_ge_u32 {T[0]}, 160
    s_cbranch_scc1 {L}
    s_mul_i32 {T[1]}, {T[0]}, 1639
    s_lshr_b32 {T[1]}, {T[1]}, 16
    s_mul_i32 {T[2]}, {T[1]}, 40
    s_sub_u32 {T[2]}, {T[0]}, {T[2]}
    s_lshl_b32 {T[2]}, {T[2]}, 10
    s_mul_i32 {T[3]}, {T[1]}, {WT}
    s_add_u32 {T[3]}, {T[3]}, {T[2]}
    s_add_u32 {T[3]}, {T[3]}, {WGU + 12*WT + 240*1024}
    v_mov_b32 v16, 0
    v_mov_b32 v17, 0
    v_mov_b32 v18, 0
    v_mov_b32 v19, 0
    buffer_store_dwordx4 v[16:19], v1, {WS}, {T[3]} offen sc1
    {L}:""")
    tag_ready()
    e(f"""s_mul_i32 {T[1]}, {sWV}, {SHST}
    v_lshrrev_b32 v2, 3, v0
    v_and_b32 v3, 7, v0
    v_lshrrev_b32 v8, 4, v0
    v_bfe_u32 v9, v0, 2, 2
    v_and_b32 v10, 3, v0
    v_lshl_add_u32 v8, v8, 3, v9""")
    if OPT["shufwait"]:
        e.wait_all()
    if OPT["stubs"]:
        e.wait_all()
        page_calls((1, 2, 3))
    if OPT["go"] == 2: go_wait(True)
    fstamp("shuf_go")
    e(f"s_cmp_ge_u32 {T[0]}, 272\ns_cbranch_scc1 L_shuf_wd\ns_cmp_ge_u32 {T[0]}, 270\ns_cbranch_scc1 L_shuf_go")
    srd(SA, P_WG, 640 * 3456); srd(SB, P_WU, 640 * 3456)
    e(f"""s_mul_i32 {T[2]}, {T[0]}, 6554
    s_lshr_b32 {T[2]}, {T[2]}, 16
    s_mul_i32 {T[3]}, {T[2]}, 10
    s_sub_u32 {T[3]}, {T[0]}, {T[3]}
    s_mul_i32 {T[4]}, {T[3]}, {64*3456}
    s_lshl_b32 {T[5]}, {T[2]}, 7
    s_add_u32 {T[4]}, {T[4]}, {T[5]}
    v_mul_u32_u24 v4, 3456, v2
    v_lshl_add_u32 v4, v3, 4, v4""")
    for m in range(8):
        e(f"buffer_load_dwordx4 {v(16+8*m,4)}, v4, {SA}, {T[4]} offen{NT_W}", tag=f"l{m}")
        e(f"buffer_load_dwordx4 {v(20+8*m,4)}, v4, {SB}, {T[4]} offen{NT_W}", tag=f"l{m}")
        if m < 7: e(f"s_add_u32 {T[4]}, {T[4]}, {8*3456}")
    e(f"""v_mul_u32_u24 v11, 272, v2
    v_lshl_add_u32 v11, v3, 4, v11
    v_add_u32 v11, {T[1]}, v11
    v_mul_u32_u24 v12, 272, v8
    v_add_u32 v12, {T[1]}, v12
    s_cmp_lt_u32 {T[2]}, 24
    s_cselect_b32 {T[4]}, 4, 3
    v_lshlrev_b32 v10, {T[4]}, v10
    v_add_u32 v12, v12, v10
    s_cselect_b32 {T[4]}, 8, 32
    v_add_u32 v13, {T[4]}, v12
    v_add_u32 v14, 64, v12
    v_add_u32 v15, 64, v13
    s_cselect_b32 {T[8]}, 4, 2
    s_lshl_b32 {T[8]}, {T[8]}, 10""")
    for m in range(8):
        e.wait(vm=f"l{m}")
        e(f"ds_write_b128 v11, {v(16+8*m,4)} offset:{m*2176}\nds_write_b128 v11, {v(20+8*m,4)} offset:{m*2176+128}", tag="w")
    e.wait(lg="w")
    fstamp("sh_ld")
    go_wait()
    fstamp("sh_go")
    for fi in range(4):
        for ss in range(2):
            for mat in range(2):
                for hh in range(2):
                    e(f"ds_read_b64_tr_b16 {v(16+16*fi+8*ss+4*mat+2*hh,2)}, v{12+fi} offset:{(32*ss+4*hh)*272+128*mat}", tag=f"t{fi}")
        e(f"""s_lshl_b32 {T[4]}, {T[2]}, 1
        s_add_u32 {T[4]}, {T[4]}, {fi >> 1}
        s_mul_i32 {T[5]}, {T[4]}, 21846
        s_lshr_b32 {T[5]}, {T[5]}, 16
        s_mul_i32 {T[6]}, {T[5]}, 3
        s_sub_u32 {T[6]}, {T[4]}, {T[6]}
        s_mul_i32 {T[6]}, {T[6]}, 80
        s_add_u32 {T[6]}, {T[6]}, {2 * (fi & 1)}
        s_lshl_b32 {T[4]}, {T[2]}, 2
        s_sub_u32 {T[4]}, {T[4]}, {96 - fi}
        s_cmp_lt_u32 {T[2]}, 24
        s_cselect_b32 {T[5]}, {T[5]}, {T[4]}
        s_cselect_b32 {T[6]}, {T[6]}, 240
        s_mul_i32 {T[5]}, {T[5]}, {WT}
        s_lshl_b32 {T[6]}, {T[6]}, 10
        s_add_u32 {T[7]}, {T[5]}, {T[6]}
        s_lshl_b32 {T[9]}, {T[3]}, 1
        s_mul_i32 {T[9]}, {T[9]}, {T[8]}
        s_add_u32 {T[7]}, {T[7]}, {T[9]}
        s_add_u32 {T[7]}, {T[7]}, {WGU}""")
        e.wait(lg=f"t{fi}")
        for ss in range(2):
            for mat in range(2):
                e(f"buffer_store_dwordx4 {v(16+16*fi+8*ss+4*mat,4)}, v1, {WS}, {T[7]} offen offset:{1024*mat} sc1", tag="st")
            if ss == 0: e(f"s_add_u32 {T[7]}, {T[7]}, {T[8]}")
    e("s_branch L_shuf_end")
    e.vm = []; e.lg = []
    e.label("L_shuf_wd")
    srd(SA, P_WD, 1728 * 1280)
    e(f"""s_sub_u32 {T[2]}, {T[0]}, 272
    s_and_b32 {T[3]}, {T[2]}, 1
    s_lshr_b32 {T[2]}, {T[2]}, 1
    s_mul_i32 {T[4]}, {T[2]}, 4682
    s_lshr_b32 {T[4]}, {T[4]}, 16
    s_mul_i32 {T[5]}, {T[4]}, 14
    s_sub_u32 {T[5]}, {T[2]}, {T[5]}
    s_and_b32 {T[6]}, {T[5]}, 3
    s_lshl_b32 {T[9]}, {T[4]}, 2
    s_add_u32 {T[7]}, {T[9]}, {T[6]}
    s_mul_i32 {T[7]}, {T[7]}, 3
    s_lshr_b32 {T[8]}, {T[5]}, 2
    s_add_u32 {T[7]}, {T[7]}, {T[8]}
    s_lshl_b32 {T[8]}, {T[4]}, 1
    s_add_u32 {T[8]}, {T[8]}, {T[6]}
    s_add_u32 {T[8]}, {T[8]}, 48
    s_cmp_ge_u32 {T[5]}, 12
    s_cselect_b32 {T[7]}, {T[8]}, {T[7]}
    s_mul_i32 {T[6]}, {T[7]}, {32*1280}
    s_mul_i32 {T[9]}, {T[3]}, 640
    s_add_u32 {T[6]}, {T[6]}, {T[9]}
    v_mul_u32_u24 v4, 1280, v2
    v_lshl_add_u32 v4, v3, 4, v4
    v_add_u32 v11, {T[6]}, v4
    v_add_u32 v12, 10240, v11
    v_add_u32 v13, 20480, v11
    v_add_u32 v14, 30720, v11""")
    for rb4 in range(4):
        for ln in range(5):
            e(f"buffer_load_dwordx4 {v(16+20*rb4+4*ln,4)}, v{11+rb4}, {SA}, 0 offen offset:{128*ln}{NT_W}", tag=f"l{rb4}")
    e(f"""v_mul_u32_u24 v4, 656, v2
    v_lshl_add_u32 v4, v3, 4, v4
    v_add_u32 v4, {T[1]}, v4
    v_mul_u32_u24 v15, 656, v8
    v_add_u32 v15, {T[1]}, v15
    v_lshl_add_u32 v2, v10, 4, v15
    v_lshl_add_u32 v3, v10, 3, v15
    s_mul_i32 {T[6]}, {T[3]}, {4*WT}
    s_mul_i32 {T[7]}, {T[4]}, 71680
    s_add_u32 {T[6]}, {T[6]}, {T[7]}
    s_mul_i32 {T[7]}, {T[5]}, 5120
    s_add_u32 {T[6]}, {T[6]}, {T[7]}
    s_add_u32 {T[6]}, {T[6]}, {WDP}""")
    for rb4 in range(4):
        e.wait(vm=f"l{rb4}")
        for ln in range(5):
            e(f"ds_write_b128 v4, {v(16+20*rb4+4*ln,4)} offset:{rb4*8*656+128*ln}", tag="w")
    e.wait(lg="w")
    if not OPT["wd_early"] and not OPT["wdt"]: go_wait()
    for ct in range(4):
        for tau in range(5):
            base = 32 * (tau >> 1) + 4 * (tau & 1) if tau < 4 else 64
            for hh in range(2):
                e(f"ds_read_b64_tr_b16 {v(16+20*ct+4*tau+2*hh,2)}, v{2 if tau < 4 else 3} offset:{4*hh*656+2*(80*ct+base)}", tag=f"t{ct}")
        e.wait(lg=f"t{ct}")
        for tau in range(4):
            e(f"buffer_store_dwordx4 {v(16+20*ct+4*tau,4)}, v1, {WS}, {T[6]} offen offset:{1024*tau} sc1", tag="st")
        e(f"s_add_u32 {T[7]}, {T[6]}, 4096")
        e(f"buffer_store_dwordx4 {v(16+20*ct+16,4)}, v1, {WS}, {T[7]} offen sc1", tag="st")
        e(f"s_add_u32 {T[6]}, {T[6]}, {WT}")
    if OPT["wd_early"] or OPT["wdt"]:
        e.wait_all()
        e.raw("s_barrier")
        e(f"s_sub_u32 {T[6]}, {sCI}, 68\ns_lshl_b32 {T[6]}, {T[6]}, 3\ns_add_u32 {T[6]}, {T[6]}, {WDF}")
        wave0(lambda: e.raw(f"""s_mov_b64 exec, 0xff
        v_lshlrev_b32 v220, 8, v0
        v_add_u32 v220, {T[6]}, v220
        v_mov_b32 v222, {sTAG}
        v_mov_b32 v223, {sNTAG}
        global_store_dwordx2 v220, v[222:223], {WSP} sc1
        s_mov_b64 exec, -1"""))
        fstamp("wd_sig")
    e.label("L_shuf_go")
    go_wait()
    e.label("L_shuf_end")
    all_addr(216, 217)
    e(all_loads(216, 217, 208), tag="all")
    all_check()
    e.wait_all()
    e.raw("s_barrier")
    e(f"s_lshr_b32 {T[1]}, {sCI}, 4\ns_lshl_b32 {T[1]}, {T[1]}, 12\ns_add_u32 {T[1]}, {T[1]}, {CNT + 2048}")
    replica_add(T[1])
    fstamp("shuf_done")
    if OPT["wdt"]:
        L = e.uid("notouch")
        e(f"s_cmp_lt_u32 {sSLOT}, 29\ns_cbranch_scc1 {L}")
        wd_base()
        e(f"""s_sub_u32 {T[6]}, {sSLOT}, 29
        s_lshl_b32 {T[6]}, {T[6]}, 2
        s_add_u32 {T[6]}, {T[6]}, {sWV}
        s_lshl_b32 {T[6]}, {T[6]}, 13
        s_add_u32 {T[6]}, {T[6]}, {WDP}
        v_lshlrev_b32 v8, 7, v0""")
        spin_tag(WD_POLL + "\ns_sleep 2", 228, 1)
        for k in range(OPT["wdt_n"]):
            e(f"buffer_load_dword v254, v8, {WS}, {T[6]} offen sc1\ns_add_u32 {T[6]}, {T[6]}, {12*8192}", tag="touch")
            if k % OPT["wdt_p"] == OPT["wdt_p"] - 1: e.wait(vm="touch")
        e.wait_all()
        e.label(L)
    if OPT["wd_early"]:
        wd_base()
        e(WD_POLL, tag="wdf")
        wd_check()
        for it in wd_resident(OPT["wd_n"]): put(it)
    if OPT["pre_a1"] or OPT["wtouch"]:
        shuf_addr(7)
        wait_flag(7, WSP, 16)
    if OPT["wtouch"]:
        n = OPT["wtouch"]
        e(f"""s_sub_u32 {T[1]}, {sSLOT}, 20
        s_lshl_b32 {T[1]}, {T[1]}, 2
        s_add_u32 {T[1]}, {T[1]}, {sWV}
        s_and_b32 {T[3]}, {T[1]}, 7
        s_lshr_b32 {T[1]}, {T[1]}, 3
        s_mul_i32 {T[1]}, {T[1]}, {n*8192}
        s_lshl_b32 {T[2]}, {sHF}, 3
        s_add_u32 {T[2]}, {T[2]}, {T[3]}
        s_mul_i32 {T[2]}, {T[2]}, {WT}
        s_add_u32 {T[2]}, {T[2]}, {T[1]}
        s_add_u32 {T[2]}, {T[2]}, {WGU + 131072}
        v_lshlrev_b32 v8, 7, v0""")
        for k in range(n):
            e(f"buffer_load_dword v254, v8, {WS}, {T[2]} offen sc1\ns_add_u32 {T[2]}, {T[2]}, 8192", tag="touch")

class Bg:
    q = []; every = 8; n = 0
def ev(text, tag=None):
    for l in text.split("\n"):
        if not l.strip(): continue
        e(l, tag=tag)
        if l.strip().startswith("v_"):
            Bg.n += 1
            if Bg.q and Bg.n % Bg.every == 0:
                put(Bg.q.pop(0))
                while Bg.q and isinstance(Bg.q[0], str): put(Bg.q.pop(0))
def bg_flush():
    while Bg.q: put(Bg.q.pop(0))

XV, YV, RAW, NV = 16, 40, 64, 88
def unpack24(dst, src):
    for c in range(24):
        if c & 1: ev(f"v_and_b32 v{dst+c}, {sMASK}, v{src+(c>>1)}")
        else: ev(f"v_lshlrev_b32 v{dst+c}, 16, v{src+(c>>1)}")

def row_stats(x, area, scale=None):
    ev(f"v_pk_add_f32 v[112:113], {v(x,2)}, {v(x+2,2)}\nv_pk_mul_f32 v[114:115], {v(x,2)}, {v(x,2)}")
    ev(f"v_pk_fma_f32 v[114:115], {v(x+2,2)}, {v(x+2,2)}, v[114:115]")
    for p in range(2, 12):
        ev(f"v_pk_add_f32 v[112:113], v[112:113], {v(x+2*p,2)}")
        ev(f"v_pk_fma_f32 v[114:115], {v(x+2*p,2)}, {v(x+2*p,2)}, v[114:115]")
    ev("""v_add_f32 v112, v112, v113
    v_add_f32 v113, v114, v115
    v_add_f32_dpp v112, v112, v112 row_ror:8 row_mask:0xf bank_mask:0xf
    v_add_f32_dpp v113, v113, v113 row_ror:8 row_mask:0xf bank_mask:0xf""")
    for sw in ("v_permlane16_swap_b32", "v_permlane32_swap_b32"):
        ev(f"""v_mov_b32 v114, v112
        v_mov_b32 v115, v113
        {sw} v112, v114
        {sw} v113, v115
        v_add_f32 v112, v112, v114
        v_add_f32 v113, v113, v115""")
    e(f"s_mov_b64 exec, 0xff\nds_write_b64 v13, v[112:113] offset:{area}\ns_mov_b64 exec, -1", tag="w")
    e.wait_all(vm=False)
    e.raw("s_barrier")
    e(f"ds_read_b128 v[112:115], v14 offset:{area}\nds_read_b128 v[116:119], v14 offset:{area+16}", tag="r")
    e.wait(lg="r")
    ev(f"""v_pk_add_f32 v[112:113], v[112:113], v[114:115]
    v_pk_add_f32 v[116:117], v[116:117], v[118:119]
    v_pk_add_f32 v[112:113], v[112:113], v[116:117]
    v_mul_f32 v112, {f32(1/640)}, v112
    v_mul_f32 v113, {f32(1/640)}, v113
    v_fma_f32 v113, -v112, v112, v113
    v_max_f32 v113, 0, v113
    v_add_f32 v113, {f32(1e-5)}, v113
    v_rsq_f32 v120, v113""")
    if scale: ev(f"v_mul_f32 v120, {f32(scale)}, v120")
    ev("v_mul_f32_e64 v121, -v112, v120")

def normalise(dst, x):
    for p in range(12):
        ev(f"v_pk_fma_f32 {v(dst+2*p,2)}, {v(x+2*p,2)}, v[120:121], v[120:121] op_sel:[0,0,1] op_sel_hi:[1,0,1]")

def r_addr():
    e(f"""v_and_b32 v8, 7, v0
    v_lshrrev_b32 v9, 3, v0
    s_mul_i32 {T[0]}, {sWV}, 20
    v_add_u32 v9, {T[0]}, v9
    v_lshlrev_b32 v10, 8, v9
    v_lshl_add_u32 v10, v8, 4, v10
    v_add_u32 v11, 2048, v10
    v_add_u32 v12, 4096, v10
    v_mov_b32 v15, {BIG}
    v_cmp_gt_u32 vcc, 32, v0
    v_cndmask_b32 v12, v15, v12, vcc
    v_lshlrev_b32 v14, 5, v8
    v_add_u32 v14, {RED}, v14
    s_lshl_b32 {T[0]}, {sWV}, 3
    v_add_u32 v13, {T[0]}, v14
    s_lshr_b32 {T[1]}, {sRB}, 1
    s_mul_i32 {T[1]}, {T[1]}, 20480
    s_and_b32 {T[2]}, {sRB}, 1
    s_lshl_b32 {T[2]}, {T[2]}, 7
    s_add_u32 {T[1]}, {T[1]}, {T[2]}
    s_lshl_b32 {T[2]}, {sWV}, 10
    v_add_u32 v4, {T[2]}, v1""")

def r_finish(layer):
    row_stats(XV, 256, ALPHA)
    normalise(NV, XV)
    e(f"s_add_u32 {T[2]}, {T[1]}, {XN[layer]}")
    for it in range(3):
        for p in range(4 * it, 4 * it + 4):
            e(f"v_cvt_pk_bf16_f32 v{RAW+p}, v{NV+2*p}, v{NV+2*p+1}")
        e(f"buffer_store_dwordx4 {v(RAW+4*it,4)}, v{10+it}, {WS}, {T[2]} offen sc1", tag="st")
    for p in range(12):
        e(f"v_cvt_pk_bf16_f32 v{RAW+12+p}, v{XV+2*p}, v{XV+2*p+1}")
    if layer == 0:
        for it in range(3):
            e(f"ds_write_b128 v4, {v(RAW+12+4*it,4)} offset:{ST_X-131072+4096*it}", tag="w")
    else:
        e(f"s_add_u32 {T[2]}, {T[1]}, {X3}")
        for it in range(3):
            e(f"buffer_store_dwordx4 {v(RAW+12+4*it,4)}, v{10+it}, {WS}, {T[2]} offen sc1", tag="x3st")
    cnt_off(T[0], sG, 16 * layer)
    rstamp(f"r_st{layer}")
    e.wait(vm="st")
    rstamp(f"r_dr{layer}")
    e.raw("s_barrier")
    signal(T[0], WSP)
    e(f"v_mov_b32 v7, {T[0]}")
    bg_flush()
    rest = list(take(8))
    if OPT["late_pre"]:
        Pre.late = rest[-OPT["late_pre"]:]; rest = rest[:-OPT["late_pre"]]
    prefill(rest)
    if layer == 0:
        for it in wd_take(OPT["wd_s"]): put(it)
    Pre.done = 0

class Pre: done = 0; late = []; raw = []; wd = 0
def wd_take(n):
    L = []
    for fr in RES[Pre.wd:Pre.wd + n]:
        L.append(f"s_add_u32 {T[13]}, {sWD}, {fr*1024}")
        L.append((f"buffer_load_dwordx4 {wdreg(fr)}, v1, {WS}, {T[13]} offen sc1", "wdres"))
    Pre.wd += n
    return L
def take(n):
    n = min(n, 8 - Pre.done); r = range(Pre.done, Pre.done + n); Pre.done += n
    return r
def r_prefill(n, every):
    Bg.n = 0; Bg.every = every
    for sg in take(n): Bg.q += dma_stage(sg)
    while Bg.q and isinstance(Bg.q[0], str): put(Bg.q.pop(0))

def r1():
    e.label("L_r1")
    ffn_setup()
    r_addr()
    e.wait_all()
    e(f"""v_add_u32 v4, 131072, v4
    v_lshlrev_b32 v2, 8, v9
    v_lshl_add_u32 v2, v8, 3, v2
    v_add_u32 v3, 4096, v2
    v_cmp_gt_u32 vcc, 32, v0
    v_cndmask_b32 v3, v15, v3, vcc
    s_lshr_b32 {T[3]}, {sRB}, 1
    s_mul_i32 {T[3]}, {T[3]}, 20480
    s_and_b32 {T[4]}, {sRB}, 1
    s_lshl_b32 {T[4]}, {T[4]}, 6
    s_add_u32 {T[3]}, {T[3]}, {T[4]}
    s_add_u32 {T[3]}, {T[3]}, {YB}""")
    if OPT["sent_f"]:
        e(f"s_add_u32 {T[2]}, {T[1]}, {F1}\nv_mov_b32 v124, -1\nv_mov_b32 v125, -1\nv_mov_b32 v126, -1\nv_mov_b32 v127, -1")
        for it in range(3):
            e(f"buffer_store_dwordx4 v[124:127], v{10+it}, {WS}, {T[2]} offen sc1", tag="clr")
    if OPT["pre_a1"] and not OPT["a1w3"]:
        r_prefill(OPT["pre_a1"], 5 if not OPT["wd_a"] else 3)
        Bg.q += wd_take(OPT["wd_a"])
    for i in range(12):
        ev(f"v_accvgpr_read_b32 v{RAW+i}, a{240+i}")
    unpack24(XV, RAW)
    row_stats(XV, 0)
    normalise(NV, XV)
    bg_flush()
    e(f"""s_lshl_b32 {T[4]}, {sX}, 8
    s_add_u32 {T[4]}, {T[4]}, {CNT}
    v_and_b32 v7, 15, v0
    v_lshlrev_b32 v6, 12, v7
    v_subrev_u32 v122, {10*4096 - 2048}, v6
    v_cmp_gt_u32 vcc, 10, v7
    v_cndmask_b32 v7, v122, v6, vcc
    v_add_u32 v7, {T[4]}, v7""")
    if OPT["pre_a1"] and OPT["a1w3"]: prefill(take(OPT["pre_a1"]))
    if OPT["hier"]:
        e(f"s_lshl_b32 {T[4]}, {sX}, 8\ns_add_u32 {T[4]}, {T[4]}, {CNT + 6*4096 + 2048}\nv_mov_b32 v7, {T[4]}")
        wait_flag(7, WSP, 16 if OPT["hier"] == 1 else 16, OPT["nap"])
    else:
        wait_flag(7, WSP, 16, OPT["nap"])
    stamp("conv_flag")
    if OPT["x_skipr1"]:
        rest = list(take(8)); Pre.late = rest; Pre.done = 0
        return
    yl = []
    for it in range(3):
        for h in range(2):
            va, off = (2, 2048 * it + 128 * h) if it < 2 else (3, 128 * h)
            yl.append(f"buffer_load_dwordx2 {v(RAW+4*it+2*h,2)}, v{va}, {WS}, {T[3]} offen offset:{off} sc1")
    yl = "\n".join(yl)
    e(yl, tag="y")
    r_prefill(OPT["pre_r1"], OPT["pre_every"] if not OPT["wd_r"] else 4)
    Bg.q += wd_take(OPT["wd_r"])
    for _ in range(min(OPT["pre_now"], len(Bg.q))): put(Bg.q.pop(0))
    e.wait(vm="y")
    if OPT["sent_y"]: sentinel_loop(yl, RAW, 123)
    rstamp("y_arr")
    unpack24(YV, RAW)
    for p in range(12):
        ev(f"v_pk_fma_f32 {v(XV+2*p,2)}, {v(NV+2*p,2)}, {v(YV+2*p,2)}, {v(XV+2*p,2)}")
    for it in range(3):
        e(f"ds_write_b128 v4, {v(RAW+4*it,4)} offset:{ST_Y-131072+4096*it}", tag="w")
    r_finish(0)
    stamp("r1_done")

def r2_pre():
    r_addr()
    e("v_add_u32 v4, 131072, v4")
    for it in range(3):
        e(f"ds_read_b128 {v(RAW+4*it,4)}, v4 offset:{ST_X-131072+4096*it}", tag="x")
    for it in range(3):
        e(f"ds_read_b128 {v(RAW+12+4*it,4)}, v4 offset:{ST_Y-131072+4096*it}", tag="x")
    e.wait(lg="x")
    unpack24(XV, RAW)
    unpack24(YV, RAW + 12)
    e(f"s_add_u32 {T[2]}, {T[1]}, {F1}")

def r2():
    wait_flag(7, WSP, 8)
    stamp("f_flag")
    e(f"s_mov_b32 s96, {f32(INVA2)}")
    fl = "\n".join(f"buffer_load_dwordx4 {v(RAW+4*it,4)}, v{10+it}, {WS}, {T[2]} offen sc1" for it in range(3))
    e(fl, tag="f")
    r_prefill(OPT["pre_r2"], OPT["pre_every"])
    for _ in range(min(OPT["pre_now"], len(Bg.q))): put(Bg.q.pop(0))
    e.wait(vm="f")
    if OPT["sent_f"]: sentinel_loop(fl, RAW, 123)
    rstamp("f_arr")
    unpack24(NV, RAW)
    for p in range(12):
        ev(f"v_pk_fma_f32 {v(XV+2*p,2)}, {v(NV+2*p,2)}, s[96:97], {v(XV+2*p,2)} op_sel_hi:[1,0,1]")
    row_stats(XV, 0)
    normalise(NV, XV)
    for p in range(12):
        ev(f"v_pk_fma_f32 {v(XV+2*p,2)}, {v(NV+2*p,2)}, {v(YV+2*p,2)}, {v(XV+2*p,2)}")
    r_finish(1)
    stamp("r2_done")

XR = 16; ACC = (176, 208); WB0 = 220; NWB = 9; PD = OPT["pd"]; NRES = 11

class Lay: n = 0
def dma_stage(sg):
    ph = phys_stage(sg)
    out = [f"s_add_u32 {sWO}, {sWB}, {ph*16384}", f"s_add_u32 m0, {sM0}, {(sg & 7)*16384}"]
    out += [(f"buffer_load_dwordx4 v1, {WS}, {sWO} offen offset:{1024*d} sc1{WNT} lds", f"dma{sg}") for d in range(4)]
    return out

def put(item):
    if isinstance(item, tuple): e(item[0], tag=item[1])
    elif callable(item): item()
    else: e(item)

def phys_stage(sg): return 5 * (2 - sg // 5) + sg % 5 if OPT["rev"] and Lay.n == 1 and sg < 15 else sg
def prefill(stages):
    stages = list(stages)
    if OPT["w3"] and len(stages) == 3:
        L = e.uid("w3")
        ph = [phys_stage(k) for k in stages]
        e.raw(f"""s_cmp_eq_u32 {sWV}, 0
        s_cbranch_scc1 {L}
        s_sub_u32 {sWO}, {sWB}, {sM0}
        s_mov_b32 {T[14]}, {ph[0]*16384}
        s_cmp_eq_u32 {sWV}, 2
        s_cselect_b32 {T[14]}, {ph[1]*16384}, {T[14]}
        s_cmp_eq_u32 {sWV}, 3
        s_cselect_b32 {T[14]}, {ph[2]*16384}, {T[14]}
        s_add_u32 {sWO}, {sWO}, {T[14]}
        s_lshl_b32 {T[14]}, {sWV}, 14
        s_add_u32 m0, {T[14]}, {(stages[0] - 1) * 16384 & 0xffffffff}""")
        for q in range(4):
            if q: e.raw(f"s_add_u32 {sWO}, {sWO}, 4096\ns_add_u32 m0, m0, 4096")
            for d in range(4):
                e.raw(f"buffer_load_dwordx4 v1, {WS}, {sWO} offen offset:{1024*d} sc1{WNT} lds")
        e.raw(f"{L}:")
        Pre.raw = stages
        return
    for sg in stages:
        for it in dma_stage(sg): put(it)

def ffn_setup():
    e(f"""s_mul_i32 {sWB}, {sJT}, {WT}
    s_lshl_b32 {sM0}, {sWV}, 12
    s_add_u32 {sWB}, {sWB}, {sM0}
    s_add_u32 {sWB}, {sWB}, {WGU}
    s_mul_i32 {sWD}, {sMI}, {WT}
    s_mul_i32 {T[0]}, {sWV}, 71680
    s_add_u32 {sWD}, {sWD}, {T[0]}
    s_add_u32 {sWD}, {sWD}, {WDP}""")

def geglu(g, u, n, outq):
    L = []
    if OPT["x_nofill"]: return L
    for z in range(n):
        L += [f"v_fma_f32 v{8+(z&3)}, v{g+z}, v{g+z}, v4", f"v_mul_f32 v{u+z}, v{g+z}, v{u+z}",
              f"v_mul_f32_e64 v{g+z}, -v{g+z}, v{8+(z&3)}", f"v_exp_f32 v{g+z}, v{g+z}", f"v_add_f32 v{g+z}, 1.0, v{g+z}",
              f"v_rcp_f32 v{g+z}, v{g+z}", f"v_mul_f32 v{u+z}, v{u+z}, v{g+z}"]
        if z & 1: L.append(f"v_cvt_pk_bf16_f32 v{outq+(z>>1)}, v{u+z-1}, v{u+z}")
    return L

def text_of(item): return item[0] if isinstance(item, tuple) else item
def slots(item):
    t = text_of(item)
    if callable(t): return 9
    return 2 if t.startswith(("v_exp", "v_rcp")) else 1
def is_mem(item):
    t = text_of(item)
    return not callable(t) and t.startswith(("buffer_", "global_", "ds_"))

class Sched:
    def __init__(self):
        self.side = []; self.fill = []; self.seq = 0; self.over = 0; self.hook = None
    def at(self, slot, items):
        for it in items:
            self.seq += 1; self.side.append((slot, self.seq, it))
        self.side.sort(key=lambda x: x[:2])
    def add(self, slot, items):
        for it in items: self.fill.append((slot, it, Ins(text_of(it))))
    def pending(self, tag): return any(isinstance(it, tuple) and it[1] == tag for _, it, _ in self.fill)
    def gap(self, n, used, extra=0):
        room = 2 + extra - used; valu = False; m0 = False
        while self.side and self.side[0][0] <= n:
            slot, _, it = self.side[0]
            late = n - slot >= OPT["slack"]
            dma = is_mem(it) and text_of(it).endswith("lds")
            if not late and (slots(it) > room or (dma and m0)) and slots(it) < 9: break
            self.side.pop(0); put(it); room -= slots(it)
            m0 = not callable(it) and " m0," in text_of(it)
        k = 0
        while room > 0 and k < min(len(self.fill), 20):
            slot, it, ins = self.fill[k]
            ok = slot <= n and slots(it) <= room and not (is_mem(it) and valu)
            for _, _, o in self.fill[:k]:
                if (o.dst & (ins.src | ins.dst)) or (o.src & ins.dst) or (o.kind in ("vmem", "ds") and ins.kind in ("vmem", "ds", "salu")) or (o.kind == "salu"):
                    ok = False; break
            if ok and ins.op.startswith("v_permlane") and valu: ok = False
            if ok:
                self.fill.pop(k); put(it); room -= slots(it); valu = valu or ins.kind == "valu"
                if self.hook: self.hook(it, n)
                if ins.op.startswith(("v_exp", "v_rcp")): break
                k = 0
            else:
                k += 1
        if room < 0: self.over -= room

def check_or_spin(vt, vaddr, target):
    def fn():
        L = e.uid("rdy")
        e.wait(vm=f"poll{vt}")
        keep = list(e.vm)
        e.raw(f"v_cmp_gt_u32 vcc, {target}, v{vt}\ns_cbranch_vccz {L}")
        spin(vaddr, WSP, target, vt)
        e.raw(f"{L}:")
        e.vm = keep
    return fn

HF = 16
WNQ = list(range(224, 240, 4)) + list(range(160, 176, 4)) + list(range(176, 204, 4))
def acc2(tau, ri): return 80 + 4 * (ri * 5 + tau)
NONRES = [5 * ks + t for ks in (7, 12, 13) for t in range(5)]
RES = [fr for fr in range(70) if fr not in NONRES]
def wdreg(fr): return a(4 * RES.index(fr), 4) if fr in RES else v(WNQ[NONRES.index(fr)], 4)
sX0, sX1, sHC, sWDO, sTMP, sHT = T[10], T[11], T[12], T[13], T[14], T[15]
sHS1, sWNO = T[16], T[17]

def ffn(layer):
    H = HB[layer]
    e(f"""v_add_u32 v2, 0x10000, v1
    v_mov_b32 v4, {f32(KAPPA)}
    v_bfe_u32 v8, v0, 4, 1
    v_mul_u32_u24 v3, 57344, v8
    v_lshrrev_b32 v8, 5, v0
    v_lshl_add_u32 v3, v8, 8, v3
    v_and_b32 v8, 15, v0
    v_lshl_add_u32 v3, v8, 4, v3
    s_lshl_b32 {T[0]}, {sG}, 3
    s_lshl_b32 {T[1]}, {sWV}, 1
    s_add_u32 {T[1]}, {T[1]}, {T[0]}
    s_mul_i32 {sX0}, {T[1]}, 20480
    s_add_u32 {sX0}, {sX0}, {XN[layer]}
    s_add_u32 {sX1}, {sX0}, 20480
    s_mul_i32 {T[1]}, {T[1]}, 57344
    s_lshr_b32 {T[2]}, {sJT}, 2
    s_mul_i32 {T[2]}, {T[2]}, 14336
    s_add_u32 {T[1]}, {T[1]}, {T[2]}
    s_add_u32 {T[1]}, {T[1]}, {H}
    s_and_b32 {T[2]}, {sJT}, 3
    s_lshl_b32 {T[3]}, {T[2]}, 10
    s_add_u32 {sHS}, {T[1]}, {T[3]}
    s_add_u32 {sHS1}, {sHS}, 57344
    s_lshl_b32 {T[3]}, {T[2]}, 9
    s_add_u32 {sHS3}, {T[1]}, {T[3]}
    s_add_u32 {sHS3}, {sHS3}, 12288
    s_lshl_b32 {T[1]}, {sHF}, 2
    s_add_u32 {T[0]}, {T[0]}, {T[1]}
    s_mul_i32 {T[2]}, {sWV}, 14336
    s_add_u32 {T[2]}, {T[2]}, {H}""")
    for ri in range(4):
        e(f"""s_add_u32 {T[1]}, {sWV}, {ri}
        s_and_b32 {T[1]}, {T[1]}, 3
        s_add_u32 {T[1]}, {T[1]}, {T[0]}
        s_mul_i32 {T[1]}, {T[1]}, 57344
        s_add_u32 {sH[ri]}, {T[1]}, {T[2]}""")
    e(f"""s_and_b32 {T[1]}, {sMI}, 1
    s_lshl_b32 {T[1]}, {T[1]}, 1
    s_add_u32 {T[1]}, {T[1]}, {T[0]}
    s_lshr_b32 {T[2]}, {sWV}, 1
    s_add_u32 {T[1]}, {T[1]}, {T[2]}
    s_mul_i32 {sHT}, {T[1]}, 57344
    s_lshr_b32 {T[1]}, {sMI}, 1
    s_mul_i32 {T[1]}, {T[1]}, 14336
    s_add_u32 {sHT}, {sHT}, {T[1]}
    s_add_u32 {sHT}, {sHT}, {H}
    s_and_b32 {T[1]}, {sWV}, 1
    s_lshl_b32 {T[2]}, {T[1]}, 11
    v_lshlrev_b32 v250, 7, v8
    v_and_b32 v251, 0x380, v250
    v_add_u32 v250, {T[2]}, v250
    s_lshl_b32 {T[2]}, {T[1]}, 10
    v_add_u32 v251, {T[2]}, v251
    s_mul_i32 {sHC}, {sG}, 3""")
    cnt_off(sHC, sHC, 64 + 48 * layer)
    e(f"v_mov_b32 v244, {sHC}\nv_add_u32 v245, 64, v244\nv_add_u32 v246, 256, v244\nv_add_u32 v248, 512, v244")
    if not (OPT["x_skipr1"] and layer == 0): wait_flag(7, WSP, 16)
    stamp(f"xn_flag{layer}")

    def xload(i):
        s_, rt = i >> 1, i & 1
        L = [(f"buffer_load_dwordx4 {v(XR+4*i,4)}, v1, {WS}, {(sX0, sX1)[rt]} offen offset:{1024*(s_&3)} sc1", f"x{i}")]
        if s_ & 3 == 3 and s_ < 19: L.append(f"s_add_u32 {(sX0, sX1)[rt]}, {(sX0, sX1)[rt]}, 4096")
        return L
    def wread(fr):
        addr = (fr & 127) * 1024
        e(f"ds_read_b128 {a(WB0+4*(fr%NWB),4)}, v{1 if addr < 65536 else 2} offset:{addr & 65535}", tag=f"w{fr}")
    def hload(ks, ri):
        return (f"buffer_load_dwordx4 {v(HF+16*(ks&3)+4*ri,4)}, v1, {WS}, {sH[ri]} offen offset:{1024*(ks&3)} sc1", f"h{ks}_{ri}")
    wd_at = {}
    def wdload(fr):
        L = []
        so = sWDO if fr in RES else sWNO
        if wd_at.get(so) != fr & ~3:
            wd_at[so] = fr & ~3
            L.append(f"s_add_u32 {so}, {sWD}, {(fr & ~3)*1024}")
        L.append((f"buffer_load_dwordx4 {wdreg(fr)}, v1, {WS}, {so} offen offset:{1024*(fr&3)} sc1", f"wd{fr}"))
        return L
    rev = OPT["rev"] and layer == 1
    def phys(i): return 4 * (2 - i // 4) + i % 4 if rev and i < 12 else i
    def htouch(p):
        if not OPT["htouch"]: return []
        return [f"s_add_u32 {sTMP}, {sHT}, {4096*p}", (f"buffer_load_dword v249, v{250 if p < 3 else 251}, {WS}, {sTMP} offen sc1", "touch")]
    def sig_h(pi):
        e(f"s_add_u32 {sTMP}, {sHC}, {(0, 64, 256, 512)[pi]}")
        signal(sTMP, WSP)

    if rev:
        for r_ in [sHS, sHS1] + sH: e(f"s_add_u32 {r_}, {r_}, 8192")
    G2 = 560
    S = Sched(); at, add = S.at, S.add
    for p in range(3):
        s0 = 160 * (p + 1) + 4
        for rt in range(2):
            base = ACC[p & 1] + 16 * rt; q = (12, 240)[rt]
            add(s0, geglu(base, base + 8, 8, q))
            add(s0, [(f"buffer_store_dwordx4 {v(q,4)}, v1, {WS}, {(sHS, sHS1)[rt]} offen sc1", f"hs{p}")])
        op = "s_sub_u32" if rev else "s_add_u32"
        if p < 2: add(s0, [f"{op} {sHS}, {sHS}, 4096", f"{op} {sHS1}, {sHS1}, 4096"])
    add(G2 + 4, geglu(ACC[1], ACC[1] + 4, 4, 12) + geglu(ACC[1] + 8, ACC[1] + 12, 4, 14))
    add(G2 + 4, ["v_permlane16_swap_b32 v12, v14", "v_permlane16_swap_b32 v13, v15",
                 (f"buffer_store_dwordx4 v[12:15], v3, {WS}, {sHS3} offen sc1", "hs3")])
    add(G2 + 120, f"""v_lshrrev_b32 v8, 4, v0
    v_and_b32 v9, 15, v0
    v_lshrrev_b32 v11, 1, v8
    v_lshlrev_b32 v11, 8, v11
    v_lshl_add_u32 v11, v9, 4, v11
    v_add_u32 v11, 2048, v11
    v_mov_b32 v15, {BIG}
    v_and_b32 v12, 16, v0
    v_cmp_eq_u32 s[98:99], 0, v12
    s_lshl_b32 {T[8]}, {sG}, 3
    s_lshl_b32 {T[9]}, {sHF}, 2
    s_add_u32 {T[8]}, {T[8]}, {T[9]}
    s_add_u32 {T[8]}, {T[8]}, {sWV}
    v_cndmask_b32 v11, v15, v11, s[98:99]
    s_mul_i32 {T[7]}, {T[8]}, {16*1280}
    s_mul_i32 {T[8]}, {T[8]}, 20480
    s_mul_i32 {T[9]}, {sMI}, 2560
    s_add_u32 {T[8]}, {T[8]}, {T[9]}
    s_add_u32 {T[8]}, {T[8]}, {F1 if layer == 0 else X3}
    s_mul_i32 {T[0]}, {sWV}, 15360
    v_add_u32 v204, {T[0]}, v2""".replace("    ", "").split("\n"))
    for ri in range(1, 4):
        add(G2 + 120, [f"s_add_u32 {T[0]}, {sWV}, {ri}", f"s_and_b32 {T[0]}, {T[0]}, 3", f"s_mul_i32 {T[0]}, {T[0]}, 15360", f"v_add_u32 v{204+ri}, {T[0]}, v2"])
    if layer == 1:
        add(G2 + 120, f"""s_mul_i32 {T[9]}, {sMI}, 160
        s_add_u32 {T[7]}, {T[7]}, {T[9]}
        v_mul_u32_u24 v10, 1280, v9
        v_lshrrev_b32 v13, 1, v8
        v_lshl_add_u32 v13, v13, 4, v10
        v_lshl_add_u32 v10, v8, 4, v10
        v_cndmask_b32 v13, v15, v13, s[98:99]
        s_mov_b32 s12, s{P_OUT}
        s_mov_b32 s13, s{P_OUT+1}
        s_mov_b32 s14, {ACT}
        s_mov_b32 s15, 0x20000
        s_mov_b32 s96, {f32(INVA2)}""".replace("    ", "").split("\n"))
        add(G2 + 224, [(f"buffer_load_dwordx4 v[48:51], v1, {WS}, {T[8]} offen sc1", "x3"),
                       (f"buffer_load_dwordx4 v[52:55], v1, {WS}, {T[8]} offen offset:1024 sc1", "x3"),
                       (f"buffer_load_dwordx4 v[56:59], v11, {WS}, {T[8]} offen sc1", "x3")])
    else:
        add(G2 + 120, [f"s_lshl_b32 {T[7]}, {sG}, 1", f"s_add_u32 {T[7]}, {T[7]}, {sHF}", f"s_lshl_b32 {T[7]}, {T[7]}, 8",
                       f"s_add_u32 {T[7]}, {T[7]}, {CNT + 32 * 256 + 128}"])
    order = []
    for ks in range(14 - 2 * OPT["redo"]):
        for ri in ((0, 1, 2, 3) if ks < 13 else (1, 2, 3, 0)):
            for tau in range(5): order.append((ks, ri, tau))
    if OPT["redo"]:
        order += [(ks, ri, tau) for ri in (1, 2, 3, 0) for ks in (12, 13) for tau in range(5)]
    for ri in range(1, 4):
        for tau in range(5):
            add(G2 + order.index((13, ri, tau)) + 6, [(f"ds_write_b128 v{204+ri}, {v(acc2(tau,ri),4)} offset:{(ri-1)*5120+1024*tau}", "rw")])
    if layer == 0:
        for k, sg in enumerate(take(OPT["pre_g2"])):
            st = dma_stage(sg); t0 = G2 + OPT["pre_g2_at"] + 12 * k
            at(t0, st[:2])
            for d in range(4): at(t0 + 3 * d + 1, [st[2 + d]])
    for i in range(OPT["xup"]):
        for it in xload(i): put(it)
    for i in range(OPT["xup"], 40):
        at(4 * (i - OPT["xup"]) + 1, xload(i))
    if layer == 0 and not OPT["x_nowd"]:
        n0 = OPT["wd_n"] if OPT["wd_early"] else Pre.wd
        n = 5 * NRES - n0
        for fr in range(n):
            at(OPT["wd0"] + (fr * (OPT["wd1"] - OPT["wd0"])) // n, wdload(RES[n0 + fr]))
    chk = [OPT["chk0"], OPT["chk1"], OPT["chk2"], OPT["chk3"]]
    for p, va in enumerate((244, 245, 246, 248)):
        if OPT["x_nochk"]: continue
        at(chk[p] - OPT["poll_lead"], [(f"global_load_dword v247, v{va}, {WSP} sc1", "poll247")])
        at(chk[p], [check_or_spin(247, va, 16)] + htouch(p))
    need = {}
    for n_, (ks, ri, tau) in enumerate(order):
        need.setdefault(("h", ks, ri), G2 + n_); need.setdefault(("w", 5 * phys(ks) + tau), G2 + n_)
    last_use = {}
    for n_, (ks, ri, tau) in enumerate(order): last_use[(ks, ri)] = G2 + n_
    jobs = []
    for ks in range(14):
        for ri in range(4):
            free = 480 + 8 * ks + 4 * (ri >> 1) + 5 if ks < 4 else last_use[(ks - 4, ri)] + 1
            jobs.append((need[("h", ks, ri)], max(free, chk[ks >> 2] + 1 if not OPT["x_nochk"] else 0), ("h", ks, ri)))
    for k, fr in enumerate(NONRES):
        jobs.append((G2 + OPT["wn0"] + OPT["wn_gap"] * k, 485 if k < 4 else G2 + 8, ("w", fr)))
    jobs.sort()
    t = OPT["ld0"]; bumped = [0] * 4
    for dl, free, job in jobs:
        t = max(t, free, dl - OPT["maxlead"])
        if job[0] == "h":
            ks, ri = job[1:]
            pre = []
            if ks >> 2 > bumped[ri]:
                bumped[ri] = ks >> 2
                pre = [f"s_add_u32 {sH[ri]}, {sH[ri]}, {4096 if not rev else 12288}" if not rev or ks >= 12 else f"s_sub_u32 {sH[ri]}, {sH[ri]}, 4096"]
            if not OPT["x_nohload"] or ks < 4: at(t, pre + [hload(ks, ri)])
            lead = need[job] - t
        else:
            at(t, wdload(job[1])); lead = need[job] - t
        assert lead >= 12, (job, t)
        if lead < 40: print(f"layer {layer}: short lead {lead} for {job}", file=sys.stderr)
        t += OPT["ldgap"]
    sig_after = {"hs0": 0, "hs1": 1, "hs2": 2, "hs3": 3}
    issued = {}
    def hook(it, slot):
        if isinstance(it, tuple) and it[1] in sig_after and not S.pending(it[1]): issued[it[1]] = slot
    S.hook = hook
    dma_t = 4 * (40 - OPT["xup"]) + 3
    for k in Pre.late:
        st = dma_stage(k)
        at(dma_t, st[:2])
        for d in range(4): at(dma_t + 4 * d + 2, [st[2 + d]])
        dma_t += 16
    Pre.late = []
    for n in range(-2 * PD, G2 + 280):
        ready = [t for t in sig_after if t in issued and n - issued[t] >= OPT["lag"]]
        used = 0
        if n < G2 and n % 2 == 0:
            nxt = n // 2 + PD
            if nxt < 280 and nxt % 32 == 0:
                sg = nxt // 16
                e.wait(vm=[f"dma{sg}", f"dma{sg + 1}"] + ready + (["x0"] if sg in Pre.raw or sg + 1 in Pre.raw else []))
                if not OPT["x_nobar"] or ready: e.raw("s_barrier")
                for t in ready:
                    assert n < chk[sig_after[t]] - 20, (t, n)
                    sig_h(sig_after.pop(t))
                used += 2
                for k in (sg + 4, sg + 5):
                    if 8 <= k <= 17 and not OPT["x_nodma"]:
                        st = dma_stage(k)
                        dma_t = max(dma_t, n + 1)
                        at(dma_t, st[:2])
                        for d in range(4): at(dma_t + OPT["dma_gap"] * d + 2, [st[2 + d]])
                        dma_t += 4 * OPT["dma_gap"]
            if nxt < 280: wread(nxt); used += 1
        elif n >= OPT["pub_from"] and ready and OPT["x_nopub"]:
            for t in ready: sig_after.pop(t)
        elif n >= OPT["pub_from"] and ready:
            e.wait(vm=ready)
            e.raw("s_barrier")
            for t in ready:
                assert n < chk[sig_after[t]], (t, n)
                print(f"layer {layer}: {t} issued at {issued[t]} published at {n}", file=sys.stderr)
                sig_h(sig_after.pop(t))
            used += 2
        if n < 0: continue
        if n < G2:
            fr, rt = n >> 1, n & 1
            p = min(fr // 80, 3); fi = fr - 80 * p
            if p < 3: s_, acc = fi >> 2, ACC[p & 1] + 16 * rt + 8 * (fi & 1) + 4 * ((fi >> 1) & 1)
            else: s_, acc = fi >> 1, ACC[1] + 8 * rt + 4 * (fi & 1)
            if fi == 0 and p >= 2: assert f"hs{p-2}" in issued
            wv_, wl_ = [f"x{2*s_}", f"x{2*s_+1}"], [f"w{k}" for k in range(fr, fr - fr % OPT["lgw"] + OPT["lgw"])]
            mf = f"v_mfma_f32_16x16x32_bf16 {v(acc,4)}, {a(WB0+4*(fr%NWB),4)}, {v(XR+8*s_+4*rt,4)}, {v(acc,4) if s_ else 0}"
        else:
            ks, ri, tau = order[n - G2]
            fr = 5 * phys(ks) + tau
            wv_, wl_ = [f"h{ks}_{k}" for k in (range(4) if OPT["ksw"] else [ri])] + [f"wd{k}" for k in range(5 * phys(ks), 5 * phys(ks) + 5)], []
            acc = v(acc2(tau, ri), 4)
            mf = f"v_mfma_f32_16x16x32_bf16 {acc}, {wdreg(fr)}, {v(HF+16*(ks&3)+4*ri,4)}, {acc if ks else 0}"
        if e.would_wait(wv_, wl_): used += 1
        extra = OPT["x3"] if 484 <= n < G2 and n & 1 else OPT["x2"] if G2 <= n < G2 + 60 and n & 1 else 0
        S.gap(n, used, extra)
        if OPT["ksprof"] == layer + 1 and n >= G2 and (n - G2) % 20 == 0: lstamp(f"ks{(n-G2)//20}")
        if OPT["ksprof"] == layer + 1 and n == G2 + 268: lstamp(None)
        if n == G2 and not OPT["ksprof"]: stamp(f"g1_done{layer}")
        if OPT["passprof"] == 1 and n in (1, 160, 320, 480): stamp(f"L{layer}_at{n}")
        if OPT["passprof"] == 1 and n - G2 in (80, 160): stamp(f"L{layer}_g2at{n-G2}")
        e.wait(vm=wv_, lg=wl_)
        e(mf)
    while S.fill: put(S.fill.pop(0)[1])
    Lay.n = 1
    assert not S.side and not sig_after, (S.side, sig_after)
    print(f"layer {layer}: {S.over} issue slots over budget", file=sys.stderr)
    stamp(f"g2_mfma{layer}")
    e.wait_all(vm=False)
    e.raw("s_barrier")
    RD = 160
    for k in range(11):
        e(f"ds_read_b128 {v(RD+4*k,4)}, v204 offset:{1024*k}", tag=f"r{k}")
    for k in range(11, 15):
        e(f"ds_read_b128 {v(RD+4*k+4,4)}, v204 offset:{1024*k}", tag=f"r{k}")
    if layer == 1:
        e.wait(vm="x3")
        for i in range(24):
            e(f"v_and_b32 v{16+i}, {sMASK}, v{48+(i>>1)}" if i & 1 else f"v_lshlrev_b32 v{16+i}, 16, v{48+(i>>1)}")
    for k in range(15):
        e.wait(lg=f"r{k}")
        d = acc2(k % 5, 0); r = RD + 4 * k + (4 if k >= 11 else 0)
        for h in range(2):
            e(f"v_pk_add_f32 {v(d+2*h,2)}, {v(d+2*h,2)}, {v(r+2*h,2)}")
    d = acc2(4, 0)
    if layer == 0:
        for g in range(2):
            for i in range(4):
                dd = acc2(2 * g + (i >> 1), 0) + 2 * (i & 1)
                e(f"v_cvt_pk_bf16_f32 v{16+4*g+i}, v{dd}, v{dd+1}")
            e(f"buffer_store_dwordx4 {v(16+4*g,4)}, v1, {WS}, {T[8]} offen offset:{1024*g} sc1", tag="st")
        e(f"""v_cvt_pk_bf16_f32 v24, v{d}, v{d+1}
        v_cvt_pk_bf16_f32 v25, v{d+2}, v{d+3}
        v_mov_b32 v26, v24
        v_mov_b32 v27, v25
        v_permlane16_swap_b32 v24, v26
        v_permlane16_swap_b32 v25, v27
        buffer_store_dwordx4 v[24:27], v11, {WS}, {T[8]} offen sc1""", tag="st")
        if not OPT["sent_f"]:
            r2_pre()
            e.wait(vm="st")
        e.raw("s_barrier")
        signal(T[7], WSP)
        e(f"v_mov_b32 v7, {T[7]}")
        if OPT["sent_f"]:
            r_prefill(OPT["pre_a2"], 6)
            r2_pre()
            bg_flush()
        else:
            prefill(take(OPT["pre_a2"]))
    else:
        for g in range(2):
            for i in range(4):
                dd = acc2(2 * g + (i >> 1), 0) + 2 * (i & 1)
                e(f"v_pk_fma_f32 {v(dd,2)}, {v(dd,2)}, s[96:97], {v(16+8*g+2*i,2)} op_sel_hi:[1,0,1]")
            for i in range(4):
                dd = acc2(2 * g + (i >> 1), 0) + 2 * (i & 1)
                e(f"v_cvt_pk_bf16_f32 v{60+4*g+i}, v{dd}, v{dd+1}")
            e(f"buffer_store_dwordx4 {v(60+4*g,4)}, v10, {SA}, {T[7]} offen offset:{64*g}{OUTP}", tag="st")
        for i in range(4):
            e(f"v_mov_b32 v{44+i}, v{d+i}")
        for i in range(4):
            e(f"v_permlane16_swap_b32 v{d+i}, v{44+i}")
        for i in range(4):
            dd = d + 2 * i if i < 2 else 44 + 2 * (i - 2)
            e(f"v_pk_fma_f32 {v(dd,2)}, {v(dd,2)}, s[96:97], {v(32+2*i,2)} op_sel_hi:[1,0,1]")
        e(f"""v_cvt_pk_bf16_f32 v68, v{d}, v{d+1}
        v_cvt_pk_bf16_f32 v69, v{d+2}, v{d+3}
        v_cvt_pk_bf16_f32 v70, v44, v45
        v_cvt_pk_bf16_f32 v71, v46, v47
        buffer_store_dwordx4 v[68:71], v13, {SA}, {T[7]} offen offset:128{OUTP}""", tag="st")
        L = e.uid("epo")
        e.raw(f"""s_or_b32 {T[0]}, s2, {sWV}
        s_cmp_lg_u32 {T[0]}, 0
        s_cbranch_scc1 {L}
        s_mov_b64 exec, 1
        v_mov_b32 v6, {EPO}
        v_mov_b32 v7, {sTAG}
        global_store_dword v6, v7, {WSP} sc1
        s_mov_b64 exec, -1
        {L}:""")
    stamp(f"g2_done{layer}")

def finish():
    if OPT["prof"]:
        e.wait_all()
        stamp("end")
        e(f"""s_lshl_b32 {T[0]}, s2, 2
        s_add_u32 {T[0]}, {T[0]}, {sWV}
        s_lshl_b32 {T[0]}, {T[0]}, 8
        s_add_u32 {T[0]}, {T[0]}, {PROF}
        v_lshlrev_b32 v1, 2, v0
        buffer_store_dword v{VST}, v1, {WS}, {T[0]} offen""")
        if OPT["dbgout"]:
            e(f"""s_cmp_lg_u32 s2, {OPT["dbgout"] - 1}
            s_cbranch_scc1 L_exit
            s_cmp_lg_u32 {sWV}, 0
            s_cbranch_scc1 L_exit
            v_readlane_b32 {T[1]}, v{VST}, 0
            s_mov_b64 exec, 0xffff
            v_subrev_u32 v6, {T[1]}, v{VST}
            global_store_dword v1, v6, {DBG}""")
    e.label("L_exit")
    e("s_endpgm")

entry()
p0()
if OPT["stubs"]: e.raw("s_branch L_conv\n.p2align 12\nL_conv:")
conv()
e("s_branch L_r1")
e.vm = ["warm"] if OPT["warm"] == 2 else []; e.vmd = [{("v", 254)}] if OPT["warm"] == 2 else []; e.lg = []
shuffle()
r1()
ffn(0)
r2()
ffn(1)
finish()
nops = e.pad()

def insert_stubs():
    import subprocess, re, tempfile, os
    extra = "".join(f"L_page{p}:\n" for p in range(1, NPAGES))
    src = f'.amdgcn_target "amdgcn-amd-amdhsa--gfx950"\n.text\n{NAME}:\n' + e.text() + extra
    d = tempfile.mkdtemp()
    open(d + "/a.s", "w").write(src)
    subprocess.run(["clang", "-x", "assembler", "-target", "amdgcn-amd-amdhsa", "-mcpu=gfx950", "-c", d + "/a.s", "-o", d + "/a.o"], check=True)
    dis = subprocess.run(["llvm-objdump", "-d", "--mcpu=gfx950", d + "/a.o"], capture_output=True, text=True).stdout
    dis = dis[dis.index("<L_conv>:"):]
    sizes = [4 * len(m.group(1).split()) for m in re.finditer(r"// [0-9A-F]+: ([0-9A-F ]+)", dis)]
    start = next(n for n, i in enumerate(e.ins) if i.text == "L_conv:")
    real = [i for i in e.ins[start:] if i.states]
    assert len(sizes) == len(real), (len(sizes), len(real))
    out = e.ins[:start]; off = 0; page = 1; k = 0; prev = None
    for i in e.ins[start:]:
        if i.states:
            if off >= 4096 * page and page < NPAGES and not (prev and prev.op == "s_getpc_b64"):
                out += [Ins(f"s_branch L_past{page}"), Ins(f"L_page{page}:"), Ins("s_setpc_b64 s[98:99]"), Ins(f"L_past{page}:")]
                off += 8; page += 1
            off += sizes[k]; k += 1; prev = i
        out.append(i)
    for p in range(page, NPAGES):
        out += [Ins(f"L_page{p}:"), Ins("s_setpc_b64 s[98:99]")]
    e.ins = out
    print(f"{off} bytes of code, {page - 1} page stubs", file=sys.stderr)
if OPT["stubs"]: insert_stubs()

hdr = open("interleave_layers__ssm_conv_h3__glu_gated_geglu__prompt.s.ref").read().split("; Override launch")[0]
out = hdr + f"""; Single persistent launch: 256 workgroups, one per CU, phases chained by counters in d_debug / d_ws.
; @launch grid=(256,1,1) block=(256,1,1) lds={LDS_BYTES}
.amdgcn_target "amdgcn-amd-amdhsa--gfx950"
.text
.globl {NAME}
.p2align 8
.type {NAME},@function
{NAME}:
""" + e.text() + f""".section .rodata,"a"
.p2align 6
.amdhsa_kernel {NAME}
  .amdhsa_next_free_vgpr 512
  .amdhsa_next_free_sgpr 102
  .amdhsa_accum_offset 256
  .amdhsa_group_segment_fixed_size 0
  .amdhsa_kernarg_size 104
  .amdhsa_user_sgpr_count 2
  .amdhsa_user_sgpr_kernarg_segment_ptr 1
  .amdhsa_system_sgpr_workgroup_id_x 1
  .amdhsa_float_denorm_mode_32 3
.end_amdhsa_kernel
"""
open(sys.argv[1], "w").write(out)
import json
json.dump(dict(stamps=stamp_names, KVT=KVT, YB=YB, XN=XN, X3=X3, F1=F1, HB=HB, WGU=WGU, WDP=WDP, PROF=PROF, CNT=CNT), open(sys.argv[1] + ".json", "w"))
print(f"{len(e.ins)} lines, {nops} padded wait states", file=sys.stderr)
```

```python
import sys, math, struct
from emit import Emit, Ins

NAME = "interleave_layers__ssm_conv_h3__glu_gated_geglu__prompt_kernel"
OPT = dict(prof=0, nt_in=0, nt_w=0, stop=99, warm=2, shufwait=0, bud=7, bud3=12, bud2=12, lag=50, poll_lead=45, chk0=480, chk1=578, chk2=678, chk3=758, hd=2, wn0=20, wn_gap=14, ld0=485, ldgap=4, maxlead=80, x_nodma=0, x_nobar=0, x_nofill=0, passprof=0, ksprof=0, xup=10, wd0=10, wd1=600, htouch=0, dbgspin=0, pre_a1=3, pre_r1=2, pre_g2=0, pre_g2_at=238, pre_a2=3, pre_r2=1, pre_every=8, pre_now=4, bar2=1, dma_gap=7, pd=8, lgw=4, slack=3, x3=4, x2=2, pub_from=480, hd1=3, ksw=0, sig_q=2, wtouch=0, go=1, go_early=1, cx=1, stubs=1, redo=1, nap=0, map=4, wnt=0, x_plain=0, x_nown=0, late_pre=0, rev=1, w3=0, a1w3=0, hier=0, outpol=0, dbgout=0, sent_y=0, sent_f=0, pwave=0, x_nochk=0, x_nopub=0, x_nohload=0, x_nowd=0, wd_early=0, wd_chk=40, wd_gap=4, wd_n=55, xtouch=0)
for a in sys.argv[2:]:
    k, v = a.split("="); OPT[k] = int(v)

C1 = 2.0 * math.sqrt(2.0 / math.pi) * math.log2(math.e); C2 = C1 * 0.044715
ALPHA = C2 ** (1.0 / 3.0); KAPPA = C1 / ALPHA; INVA2 = 1.0 / (ALPHA * ALPHA)
ACT = 0x280000
CNT = 0; EPO = 0xA000; P0F = 0xA080; GOF = 0xA800; P0W = 0xB000; WDF = 0xD000; PROF = 0x10000
KVT = 0x100000; YB = KVT + ACT; XN = [YB + ACT, YB + 2 * ACT]; X3 = YB + 3 * ACT; F1 = YB + 4 * ACT
HB = [F1 + ACT, F1 + ACT + 0x700000]
WGU = HB[1] + 0x700000; WDP = WGU + 0x460000; WS_END = WDP + 0x230000
WT = 286720
RING = 0; ST_X = 131072; ST_Y = ST_X + 12288; RED = ST_Y + 12288
P0L = 0; F0 = 16384; FCH = 16640; FCP = 4160; U0 = F0 + 4 * FCH; UCH = 4640; YA = U0 + 4 * UCH; YCS = 4624
SHST = 20992
LDS_BYTES = 163840
SPIN_LIMIT = 400000
WS = "s[8:11]"; SA = "s[12:15]"; SB = "s[44:47]"; SC = "s[48:51]"
P_Q, P_K, P_V, P_SHK, P_SSM, P_D, P_WG, P_WU, P_WD, P_OUT, P_DBG, P_WS = 16, 18, 20, 22, 24, 26, 30, 32, 34, 36, 38, 40
sWV, sX, sSLOT, sG, sHF, sMI, sCI, sCGP, sMASK, sRB, sJT = "s52", "s53", "s54", "s55", "s56", "s57", "s58", "s59", "s60", "s61", "s62"
sDV = "s63"; sTAG = "s42"; sNTAG = "s43"
T = [f"s{i}" for i in range(64, 84)]
sSPIN = "s84"; sWB = "s85"; sWO = "s86"; sM0 = "s87"; sH = ["s88", "s89", "s90", "s91"]; sHS = "s92"; sHS3 = "s93"; sWD = "s94"
DBG = f"s[{P_DBG}:{P_DBG+1}]"; WSP = f"s[{P_WS}:{P_WS+1}]"
NT_IN = " nt" if OPT["nt_in"] else ""
NT_W = " nt" if OPT["nt_w"] else ""
BIG = "0x80000000"
WNT = " nt" if OPT["wnt"] else ""
OUTP = ("", " sc1", " nt", " sc0 sc1")[OPT["outpol"]]

e = Emit()
def v(i, n=1): return f"v{i}" if n == 1 else f"v[{i}:{i+n-1}]"
def a(i, n=1): return f"a{i}" if n == 1 else f"a[{i}:{i+n-1}]"
def f32(x): return "0x%08x" % struct.unpack("<I", struct.pack("<f", x))[0]

def srd(dst, ptr, nbytes, add=None):
    d = int(dst[2:dst.index(":")])
    if add is None:
        e(f"s_mov_b32 s{d}, s{ptr}\ns_mov_b32 s{d+1}, s{ptr+1}")
    else:
        e(f"s_add_u32 s{d}, s{ptr}, {add}\ns_addc_u32 s{d+1}, s{ptr+1}, 0")
    e(f"s_mov_b32 s{d+2}, {nbytes}\ns_mov_b32 s{d+3}, 0x20000")

VST = 5
stamp_names = []
def stamp(name):
    if not OPT["prof"]:
        return
    i = stamp_names.index(name) if name in stamp_names else len(stamp_names)
    if name not in stamp_names: stamp_names.append(name)
    e.raw("s_memrealtime s[4:5]\ns_memtime s[6:7]")
    e.wait_all(vm=False)
    e(f"v_writelane_b32 v{VST}, s4, {i}\nv_writelane_b32 v{VST}, s6, {32+i}")

light_prev = [None]
def lstamp(name):
    if light_prev[0] is not None:
        i, r = light_prev[0]
        e.raw(f"s_waitcnt lgkmcnt(0)\nv_writelane_b32 v{VST}, s{r}, {32+i}\nv_writelane_b32 v{VST}, 1, {i}")
        light_prev[0] = None
    if name:
        stamp_names.append(name); i = len(stamp_names) - 1
        e.raw("s_memtime s[6:7]"); light_prev[0] = (i, 6)

def rstamp(name):
    if OPT['passprof'] == 3: stamp(name)

def fstamp(name):
    if not OPT['passprof'] and not OPT['ksprof']: stamp(name)

spin_sites = []
def spin_report(vt):
    if not OPT["dbgspin"]:
        return
    site = len(spin_sites); spin_sites.append(site)
    L = e.uid("rep")
    e.raw(f"""s_cmp_lt_u32 {sSPIN}, 3000
    s_cbranch_scc1 {L}
    s_mov_b64 exec, 1
    v_mov_b32 v252, {128 + 4 * site}
    v_mov_b32 v253, 1
    global_atomic_add v252, v253, {DBG} sc1
    s_mov_b64 exec, -1
    s_waitcnt vmcnt(0)
    {L}:""")

def spin(vaddr, base, target, vt=6, nap=0):
    L = e.uid("spin"); D = e.uid("spun")
    e.raw(f"""s_mov_b32 {sSPIN}, 0
    {L}:
    global_load_dword v{vt}, v{vaddr}, {base} sc1
    {f"s_sleep {nap}" if nap else ""}
    s_add_u32 {sSPIN}, {sSPIN}, 1
    s_cmp_gt_u32 {sSPIN}, {SPIN_LIMIT}
    s_cbranch_scc1 {D}
    s_waitcnt vmcnt(0)
    v_cmp_gt_u32 vcc, {target}, v{vt}
    s_cbranch_vccnz {L}
    {D}:
    s_waitcnt vmcnt(0)""")
    spin_report(vt)

def tag_load():
    e(f"v_mov_b32 v255, {EPO}\nglobal_load_dword v255, v255, {WSP} sc1", tag="epo")

def tag_ready():
    e.wait(vm="epo")
    e(f"v_readfirstlane_b32 {sTAG}, v255")
    e.wait_all(vm=False)
    e(f"s_add_u32 {sTAG}, {sTAG}, 1\ns_not_b32 {sNTAG}, {sTAG}")

def tag_bad(r, n):
    e.raw(f"v_xor_b32 v{r}, {sTAG}, v{r}\nv_xor_b32 v{r+1}, {sNTAG}, v{r+1}\nv_or_b32 v{r}, v{r}, v{r+1}")
    for k in range(1, n):
        e.raw(f"v_xor_b32 v{r+2*k}, {sTAG}, v{r+2*k}\nv_xor_b32 v{r+2*k+1}, {sNTAG}, v{r+2*k+1}\nv_or3_b32 v{r}, v{r}, v{r+2*k}, v{r+2*k+1}")
    e.raw(f"v_cmp_ne_u32 vcc, 0, v{r}")

def spin_tag(loads, r, n):
    L = e.uid("spin"); D = e.uid("spun")
    e.raw(f"s_mov_b32 {sSPIN}, 0\n{L}:\n{loads}")
    e.raw(f"""s_add_u32 {sSPIN}, {sSPIN}, 1
    s_cmp_gt_u32 {sSPIN}, {SPIN_LIMIT}
    s_cbranch_scc1 {D}
    s_waitcnt vmcnt(0)""")
    tag_bad(r, n)
    e.raw(f"s_cbranch_vccnz {L}\n{D}:\ns_waitcnt vmcnt(0)")
    spin_report(r)

def all_loads(va, vb, r):
    return f"global_load_dwordx4 v[{r}:{r+3}], v{va}, {WSP} sc1\nglobal_load_dwordx4 v[{r+4}:{r+7}], v{vb}, {WSP} sc1"

def all_addr(va, vb):
    e(f"v_add_u32 v{va}, {P0F}, v1\nv_and_b32 v{vb}, 0xf0, v1\nv_add_u32 v{vb}, {P0F+1024}, v{vb}")

NPAGES = 12
def page_calls(waves):
    if not OPT["stubs"]: return
    D = e.uid("pg")
    for k, w in enumerate(waves):
        L = e.uid("pgw")
        e.raw(f"s_cmp_lg_u32 {sWV}, {w}\ns_cbranch_scc1 {L}")
        for p in range(1 + k, NPAGES, len(waves)):
            C = e.uid("pc")
            e.raw(f"""s_getpc_b64 s[96:97]
            {C}:
            s_add_u32 s96, s96, L_page{p}-{C}
            s_addc_u32 s97, s97, (L_page{p}-{C})>>32
            s_swappc_b64 s[98:99], s[96:97]""")
        e.raw(f"s_branch {D}\n{L}:")
    e.raw(f"{D}:")

def wave0(fn):
    L = e.uid("w0")
    e.raw(f"s_cmp_lg_u32 {sWV}, 0\ns_cbranch_scc1 {L}")
    fn()
    e.raw(f"{L}:")

def wait_flag(vaddr, base, target, nap=0):
    wave0(lambda: spin(vaddr, base, target, nap=nap))
    e.raw("s_barrier")

def signal(soff, base, vt=6):
    def fn():
        e.raw(f"""s_mov_b64 exec, 1
        v_mov_b32 v{vt}, {soff}
        v_mov_b32 v{vt+1}, 1
        global_atomic_add v{vt}, v{vt+1}, {base} sc1
        s_mov_b64 exec, -1""")
    wave0(fn)

def cnt_off(dst, idx_expr_s, const):
    e(f"s_lshl_b32 {dst}, {idx_expr_s}, 8\ns_add_u32 {dst}, {dst}, {CNT + const * 256 + 128}")

def entry():
    e(f"""s_cmp_ge_u32 s2, 256
    s_cbranch_scc1 L_exit
    s_load_dwordx16 s[16:31], s[0:1], 0
    s_load_dwordx8 s[32:39], s[0:1], 64
    s_load_dwordx2 s[40:41], s[0:1], 96""")
    if OPT["warm"] == 2: warm_code()
    e(f"""v_lshrrev_b32 v2, 6, v0
    v_and_b32 v0, 63, v0
    v_readfirstlane_b32 {sWV}, v2
    s_and_b32 {sX}, s2, 7
    s_lshr_b32 {sSLOT}, s2, 3
    s_mov_b32 {sMASK}, 0xffff0000
    v_lshlrev_b32 v1, 4, v0""")
    if OPT["prof"]:
        e(f"v_mov_b32 v{VST}, 0")
    e(f"s_cmp_ge_u32 {sSLOT}, 20\ns_cbranch_scc1 L_shuf")

def warm_code():
    e(f"""s_getpc_b64 s[96:97]
    L_pc:
    s_sub_u32 s96, s96, L_pc-{NAME}
    s_subb_u32 s97, s97, 0""")
    if OPT["warm"] == 1:
        e(f"""s_sub_u32 {T[1]}, {sSLOT}, 20
        s_lshl_b32 {T[1]}, {T[1]}, 2
        s_add_u32 {T[1]}, {T[1]}, {sWV}
        s_lshl_b32 {T[1]}, {T[1]}, 11
        v_and_b32 v254, 15, v0
        v_lshlrev_b32 v254, 7, v254""")
    else:
        e(f"""s_lshl_b32 {T[1]}, s2, 8
        s_and_b32 {T[1]}, {T[1]}, 0xf800
        v_lshlrev_b32 v254, 3, v0
        v_and_b32 v254, 0x780, v254""")
    e(f"""v_add_u32 v254, {T[1]}, v254
    v_min_u32 v254, L_exit-{NAME}, v254
    global_load_dword v254, v254, s[96:97]""", tag="warm")

def args_ready():
    e.wait_all(vm=False)
    stamp("start")

def ffn_ids():
    srd(WS, P_WS, WS_END)
    if OPT["map"] == 8:
        e(f"""s_lshl_b32 {T[0]}, {sX}, 1
        s_lshr_b32 {T[1]}, {sSLOT}, 4
        s_add_u32 {sG}, {T[0]}, {T[1]}
        s_bfe_u32 {sHF}, {sSLOT}, 0x10003""")
    else:
        e(f"""s_lshr_b32 {T[0]}, {sX}, 1
        s_lshl_b32 {T[0]}, {T[0]}, 2
        s_lshr_b32 {T[1]}, {sSLOT}, 3
        s_add_u32 {sG}, {T[0]}, {T[1]}
        s_and_b32 {sHF}, {sX}, 1""")
    e(f"""s_and_b32 {sMI}, {sSLOT}, 7
    s_lshl_b32 {T[0]}, {sHF}, 3
    s_add_u32 {sJT}, {T[0]}, {sMI}
    s_lshl_b32 {sRB}, {sG}, 4
    s_add_u32 {sRB}, {sRB}, {sJT}""")

def q_prefetch(t):
    srd(SC, P_Q, ACT)
    e(f"""v_and_b32 v{t}, 7, v0
    v_lshrrev_b32 v{t+1}, 3, v0
    v_mul_u32_u24 v{t}, 1280, v{t}
    v_lshl_add_u32 v{t}, v{t+1}, 4, v{t}
    s_mul_i32 {T[18]}, {sRB}, 10240
    s_mul_i32 {T[19]}, {sWV}, 320
    s_add_u32 {T[18]}, {T[18]}, {T[19]}
    v_mov_b32 v{t+1}, {BIG}
    v_cmp_gt_u32 vcc, 32, v0
    v_cndmask_b32 v{t+1}, v{t+1}, v{t}, vcc""")
    return [(f"buffer_load_dwordx4 a[240:243], v{t}, {SC}, {T[18]} offen{NT_IN}", "q"),
            (f"buffer_load_dwordx4 a[244:247], v{t}, {SC}, {T[18]} offen offset:128{NT_IN}", "q"),
            (f"buffer_load_dwordx4 a[248:251], v{t+1}, {SC}, {T[18]} offen offset:256{NT_IN}", "q")]

def replica_add(line0):
    def fn2():
        L = e.uid("notlast")
        e.raw(f"""s_mov_b64 exec, 1
        v_mov_b32 v6, {line0}
        v_mov_b32 v7, 1
        global_atomic_add v8, v6, v7, {WSP} sc0 sc1
        s_waitcnt vmcnt(0)
        v_cmp_eq_u32 vcc, 15, v8
        s_cbranch_vccz {L}
        s_mov_b64 exec, 0xff
        v_lshlrev_b32 v6, 8, v0
        v_add_u32 v6, {CNT + 6*4096 + 2048}, v6
        v_mov_b32 v7, 1
        global_atomic_add v6, v7, {WSP} sc1
        {L}:
        s_mov_b64 exec, -1""")
    if OPT["hier"]:
        wave0(fn2)
        return
    def fn():
        e.raw(f"""s_mov_b64 exec, 0xff
        v_lshlrev_b32 v6, 8, v0
        v_add_u32 v6, {line0}, v6
        v_mov_b32 v7, 1
        global_atomic_add v6, v7, {WSP} sc1
        s_mov_b64 exec, -1""")
    wave0(fn)

def shuf_addr(r):
    e(f"s_lshl_b32 {T[4]}, {sX}, 8\ns_add_u32 {T[4]}, {T[4]}, {CNT + 2048}\nv_min_u32 v{r}, 5, v0\nv_lshlrev_b32 v{r}, 12, v{r}\nv_add_u32 v{r}, {T[4]}, v{r}")

def wd_base():
    e(f"""s_mul_i32 {sWD}, {sMI}, {WT}
    s_mul_i32 {T[12]}, {sWV}, 71680
    s_add_u32 {sWD}, {sWD}, {T[12]}
    s_add_u32 {sWD}, {sWD}, {WDP}
    v_min_u32 v226, 27, v0
    v_lshlrev_b32 v226, 3, v226
    s_lshl_b32 {T[12]}, {sX}, 8
    s_add_u32 {T[12]}, {T[12]}, {WDF}
    v_add_u32 v226, {T[12]}, v226""")
WD_POLL = f"global_load_dwordx2 v[228:229], v226, {WSP} sc1"
def wd_check():
    L = e.uid("wdok")
    e.wait(vm="wdf")
    keep = list(e.vm)
    tag_bad(228, 1)
    e.raw(f"s_cbranch_vccz {L}")
    spin_tag(WD_POLL, 228, 1)
    e.raw(f"{L}:")
    e.vm = keep
    fstamp("wd_ok")
def wd_resident(n):
    L = []
    for fr in range(n):
        if fr & 3 == 0: L.append(f"s_add_u32 {T[13]}, {sWD}, {fr*1024}")
        L.append((f"buffer_load_dwordx4 {a(4*fr,4)}, v1, {WS}, {T[13]} offen offset:{1024*(fr&3)} sc1", "wdres"))
    return L

def all_check():
    L = e.uid("allok")
    e.wait(vm="all")
    keep = list(e.vm)
    tag_bad(208, 4)
    e.raw(f"s_cbranch_vccz {L}")
    spin_tag(all_loads(216, 217, 208), 208, 4)
    e.raw(f"{L}:")
    e.vm = keep

def p0():
    KR, VR, WR, WF, KF, AC, VF, PK, HR = 16, 44, 60, 76, 108, 164, 196, 200, 216
    e(f"""s_mul_i32 {sCI}, {sX}, 20
    s_add_u32 {sCI}, {sCI}, {sSLOT}
    s_lshr_b32 {sCGP}, {sCI}, 4
    s_and_b32 {T[0]}, {sCI}, 15
    s_lshl_b32 {T[0]}, {T[0]}, 7
    s_lshl_b32 {T[1]}, {sWV}, 5
    s_add_u32 {T[2]}, {T[0]}, {T[1]}
    s_mul_i32 {T[3]}, {T[2]}, 1280
    s_lshl_b32 {T[4]}, {sCGP}, 7
    s_add_u32 {T[3]}, {T[3]}, {T[4]}
    v_and_b32 v2, 7, v0
    v_lshrrev_b32 v3, 3, v0
    v_mul_u32_u24 v4, 5120, v3
    v_lshl_add_u32 v4, v2, 4, v4
    v_add_u32 v4, {T[3]}, v4
    v_subrev_u32 v8, 3840, v4
    v_mov_b32 v9, {BIG}
    v_cmp_gt_u32 vcc, 1280, v4
    s_lshl_b32 {T[4]}, {sCGP}, 9
    s_lshl_b32 {T[5]}, {sCI}, 2
    v_cndmask_b32 v8, v8, v9, vcc
    v_lshlrev_b32 v9, 6, v2
    s_add_u32 {T[5]}, {T[5]}, {sWV}
    s_lshl_b32 {T[6]}, {T[5]}, 12
    s_lshr_b32 {T[7]}, {T[5]}, 1
    s_lshl_b32 {T[7]}, {T[7]}, 2
    v_subrev_u32 v10, 32, v1
    v_subrev_u32 v11, 16, v1
    v_add_u32 v12, 992, v1""")
    args_ready()
    srd(SA, P_K, ACT)
    for i in range(3):
        e(f"buffer_load_dwordx4 {v(KR+4*i,4)}, v8, {SA}, 0 offen offset:{1280*i}{NT_IN}", tag=f"k{i}")
    for i in range(4):
        e(f"buffer_load_dwordx4 {v(KR+12+4*i,4)}, v4, {SA}, 0 offen offset:{1280*i}{NT_IN}", tag=f"k{i+3}")
    srd(SC, P_SHK, 5120)
    for i in range(4):
        e(f"buffer_load_dwordx4 {v(WR+4*i,4)}, v9, {SC}, {T[4]} offen offset:{16*i}", tag="shk")
    srd(SB, P_V, ACT)
    for i in range(4):
        e(f"buffer_load_dwordx4 {v(VR+4*i,4)}, v4, {SB}, 0 offen offset:{1280*i}{NT_IN}", tag=f"v{i}")
    tag_load()
    e.raw(f"s_load_dword {sDV}, s[{P_D}:{P_D+1}], {T[7]}")
    srd(SA, P_SSM, 4096, add=T[6])
    e(f"buffer_load_dwordx4 {v(HR,4)}, v10, {SA}, 0 offen{NT_IN}\nbuffer_load_dwordx2 {v(HR+4,2)}, v11, {SA}, 0 offen{NT_IN}", tag="h0")
    for q in range(1, 5):
        e(f"buffer_load_dwordx4 {v(HR+8*q,4)}, v12, {SA}, 0 offen offset:{1024*(q-1)}{NT_IN}", tag=f"h{q}")
        e(f"buffer_load_dwordx2 {v(HR+8*q+4,2)}, v12, {SA}, 0 offen offset:{1024*(q-1)+16}{NT_IN}", tag=f"h{q}")
    ffn_ids()
    def clr():
        e.raw(f"""s_lshl_b32 {T[8]}, {sCI}, 8
        s_mov_b64 exec, 0xffff
        v_mov_b32 v196, 0
        v_mov_b32 v197, 0
        v_mov_b32 v198, 0
        v_mov_b32 v199, 0
        buffer_store_dwordx4 v[196:199], v1, {WS}, {T[8]} offen sc1
        s_mov_b64 exec, -1""")
    wave0(clr)
    if OPT["sent_y"]:
        e(f"""v_mul_u32_u24 v12, 20480, v3
        v_lshl_add_u32 v12, v2, 4, v12
        s_mul_i32 {T[10]}, {sWV}, {32*20480}
        s_lshl_b32 {T[11]}, {sCI}, 7
        s_add_u32 {T[10]}, {T[10]}, {T[11]}
        s_add_u32 {T[10]}, {T[10]}, {YB}
        v_mov_b32 v196, -1
        v_mov_b32 v197, -1
        v_mov_b32 v198, -1
        v_mov_b32 v199, -1""")
        for m in range(4):
            e(f"buffer_store_dwordx4 v[196:199], v12, {WS}, {T[10]} offen sc1\ns_add_u32 {T[10]}, {T[10]}, {8*20480}", tag="clr")
    e(f"""s_lshl_b32 {T[8]}, {sWV}, 12
    v_lshlrev_b32 v13, 9, v3
    v_sub_u32 v13, {P0L + 28*128}, v13
    v_lshl_add_u32 v13, v2, 4, v13
    v_add_u32 v13, {T[8]}, v13
    v_bfe_u32 v14, v0, 2, 2
    v_lshlrev_b32 v14, 7, v14
    v_lshrrev_b32 v15, 4, v0
    v_lshl_add_u32 v14, v15, 5, v14
    v_and_b32 v15, 3, v0
    v_lshl_add_u32 v14, v15, 3, v14
    v_add_u32 v14, {T[8]}, v14
    s_sub_u32 {T[8]}, 2016, {T[2]}
    s_lshr_b32 {T[8]}, {T[8]}, 3
    s_mul_i32 {T[8]}, {T[8]}, 10240
    s_lshl_b32 {T[9]}, {sCGP}, 10
    s_add_u32 {T[8]}, {T[8]}, {T[9]}
    s_add_u32 {T[8]}, {T[8]}, {KVT}""")
    def unpack(dst, src, n):
        for c in range(n):
            if c & 1: e(f"v_and_b32 v{dst+c}, {sMASK}, v{src+(c>>1)}")
            else: e(f"v_lshlrev_b32 v{dst+c}, 16, v{src+(c>>1)}")
    for i in range(7):
        e.wait(vm=f"k{i}")
        unpack(KF + 8 * i, KR + 4 * i, 8)
    e.wait(vm="shk")
    for c in range(8):
        for tau in range(4):
            src = WR + 2 * c + (tau >> 1)
            if tau & 1: e(f"v_and_b32 v{WF+8*tau+c}, {sMASK}, v{src}")
            else: e(f"v_lshlrev_b32 v{WF+8*tau+c}, 16, v{src}")
    fstamp("k_done")
    for i in range(4):
        for p in range(4):
            d = v(AC + 8 * i + 2 * p, 2)
            e(f"v_pk_mul_f32 {d}, {v(KF+8*(i+3)+2*p,2)}, {v(WF+2*p,2)}")
        for tau in range(1, 4):
            for p in range(4):
                d = v(AC + 8 * i + 2 * p, 2)
                e(f"v_pk_fma_f32 {d}, {v(KF+8*(i+3-tau)+2*p,2)}, {v(WF+8*tau+2*p,2)}, {d}")
        e.wait(vm=f"v{i}")
        unpack(KF + 8 * i, VR + 4 * i, 8)
        for p in range(4):
            d = v(AC + 8 * i + 2 * p, 2)
            e(f"v_pk_mul_f32 {d}, {d}, {v(KF+8*i+2*p,2)}")
        for p in range(4):
            e(f"v_cvt_pk_bf16_f32 v{PK+4*i+p}, v{AC+8*i+2*p}, v{AC+8*i+2*p+1}")
        e(f"ds_write_b128 v13, {v(PK+4*i,4)} offset:{128*(3-i)}", tag="w")
    for m in range(4):
        for hh in range(2):
            e(f"ds_read_b64_tr_b16 {v(16+4*m+2*hh,2)}, v14 offset:{(8*m+4*hh)*128}", tag=f"t{m}")
    tag_ready()
    for m in range(4):
        e(f"buffer_store_dwordx4 {v(16+4*m,4)}, v1, {WS}, {T[8]} offen sc1", tag="st")
        if m < 3: e(f"s_add_u32 {T[8]}, {T[8]}, 10240")
    fstamp("p0_st")
    e(f"s_mul_i32 {T[9]}, {sWV}, {FCH}\ns_add_u32 {T[9]}, {T[9]}, {F0}\nv_add_u32 v13, {T[9]}, v1")
    for q in range(5):
        d = HR + 8 * q; t = 108 + 12 * q
        e.wait(vm=f"h{q}")
        for j in range(4):
            e(f"v_alignbit_b32 v{t+j}, v{d+j+1}, v{d+j}, 16")
            e(f"v_mov_b32 v{t+4+j}, v{d+j+1}")
            e(f"v_alignbit_b32 v{t+8+j}, v{d+j+2}, v{d+j+1}, 16")
        if q == 4: e("s_mov_b64 exec, 3")
        e(f"ds_write_b128 v13, {v(d,4)} offset:{1024*q}", tag="w")
        for sg in range(1, 4):
            e(f"ds_write_b128 v13, {v(t+4*sg-4,4)} offset:{sg*FCP+1024*q}", tag="w")
        if q == OPT["sig_q"]:
            e("s_mov_b64 exec, -1")
            p0_signal()
    e(f"""s_mul_i32 {T[9]}, {sWV}, {UCH}
    s_add_u32 {T[9]}, {T[9]}, {U0}
    s_mov_b64 exec, -1
    v_add_u32 v13, {T[9]}, v1
    v_mov_b32 v32, 0
    v_mov_b32 v33, 0
    v_mov_b32 v34, 0
    v_mov_b32 v35, 0
    s_mov_b32 exec_lo, -1
    s_mov_b32 exec_hi, 3
    ds_write_b128 v13, v[32:35] offset:4096
    s_mov_b64 exec, -1""", tag="w")
    e(f"""s_and_b32 {T[7]}, {T[5]}, 1
    s_lshl_b32 {T[6]}, {sDV}, 16
    s_and_b32 {sDV}, {sDV}, {sMASK}
    s_cmp_eq_u32 {T[7]}, 0
    s_cselect_b32 {sDV}, {T[6]}, {sDV}
    v_and_b32 v7, 15, v0
    v_lshlrev_b32 v7, 3, v7""")
    if OPT["pwave"]:
        e(f"s_lshl_b32 {T[8]}, {sCGP}, 2\ns_sub_u32 {T[8]}, {T[8]}, {sWV}\ns_lshl_b32 {T[8]}, {T[8]}, 7\ns_add_u32 {T[8]}, {T[8]}, {P0W + 384}")
    else:
        e(f"s_lshl_b32 {T[8]}, {sCGP}, 7\ns_add_u32 {T[8]}, {T[8]}, {P0F}")
    e(f"v_add_u32 v7, {T[8]}, v7")

def tag_store(soff, t):
    e.raw(f"""s_mov_b64 exec, 1
    v_mov_b32 v{t}, {soff}
    v_mov_b32 v{t+2}, {sTAG}
    v_mov_b32 v{t+3}, {sNTAG}
    global_store_dwordx2 v{t}, v[{t+2}:{t+3}], {WSP} sc1
    s_mov_b64 exec, -1""")

def wg_flag(t):
    e(f"s_lshl_b32 {T[8]}, {sCI}, 3\ns_add_u32 {T[8]}, {T[8]}, {P0F}")
    wave0(lambda: tag_store(T[8], t))

def p0_signal():
    if OPT["pwave"]:
        e(f"s_lshl_b32 {T[8]}, {sCI}, 5\ns_lshl_b32 {T[10]}, {sWV}, 3\ns_add_u32 {T[8]}, {T[8]}, {T[10]}\ns_add_u32 {T[8]}, {T[8]}, {P0W}")
    e.wait_all(lg=False)
    fstamp("p0_drain")
    if OPT["pwave"]:
        tag_store(T[8], 36)
    else:
        e.raw("s_barrier")
        wg_flag(36)

def sentinel_loop(loads, r, vt):
    L = e.uid("sent"); D = e.uid("sentok")
    def chk():
        e.raw("\n".join([f"v_max3_u32 v{vt}, v{r}, v{r+1}, v{r+2}"] + [f"v_max3_u32 v{vt}, v{vt}, v{r+k}, v{r+k+1}" for k in range(3, 11, 2)] +
                        [f"v_max_u32 v{vt}, v{vt}, v{r+11}", f"v_cmp_eq_u32 vcc, -1, v{vt}"]))
    keep = list(e.vm)
    chk()
    e.raw(f"s_cbranch_vccz {D}\ns_mov_b32 {sSPIN}, 0\n{L}:\n{loads}")
    e.raw(f"""s_add_u32 {sSPIN}, {sSPIN}, 1
    s_waitcnt vmcnt(0)
    s_cmp_gt_u32 {sSPIN}, {SPIN_LIMIT}
    s_cbranch_scc1 {D}""")
    chk()
    e.raw(f"s_cbranch_vccnz {L}\n{D}:")
    e.vm = keep

def go_raise():
    if True:
        L = e.uid("go")
        e.raw(f"""s_or_b32 {T[2]}, {sSLOT}, {sWV}
        s_cmp_lg_u32 {T[2]}, 0
        s_cbranch_scc1 {L}
        s_lshl_b32 {T[2]}, {sX}, 7
        s_add_u32 {T[2]}, {T[2]}, {GOF}
        s_mov_b64 exec, 1
        v_mov_b32 v220, {T[2]}
        v_mov_b32 v222, {sTAG}
        v_mov_b32 v223, {sNTAG}
        global_store_dwordx2 v220, v[222:223], {WSP} sc1
        s_mov_b64 exec, -1
        {L}:""")

def conv():
    AC, GB, FB, KV, KU, YP = 16, (48, 80), 112, 144, 160, 192
    e(f"""v_lshrrev_b32 v8, 2, v0
    v_and_b32 v9, 3, v0
    v_mul_u32_u24 v10, 10240, v8
    v_lshl_add_u32 v10, v9, 4, v10
    v_mul_u32_u24 v11, {UCH}, v9
    v_lshl_add_u32 v11, v8, 4, v11
    s_lshl_b32 {T[0]}, {sWV}, 10
    s_add_u32 {T[0]}, {T[0]}, {U0}
    v_add_u32 v11, {T[0]}, v11
    s_mul_i32 {T[0]}, {sWV}, {64*10240}
    s_lshl_b32 {T[1]}, {sCI}, 6
    s_add_u32 {T[0]}, {T[0]}, {T[1]}
    s_add_u32 {T[0]}, {T[0]}, {KVT}
    v_and_b32 v8, 15, v0
    v_lshrrev_b32 v9, 4, v0
    v_add_u32 v12, 1, v8
    v_and_b32 v13, 3, v12
    v_sub_u32 v12, v12, v13
    v_mul_u32_u24 v13, {FCP}, v13
    v_lshl_add_u32 v12, v12, 1, v13
    v_lshl_add_u32 v12, v9, 4, v12
    s_mul_i32 {T[1]}, {sWV}, {FCH}
    s_add_u32 {T[1]}, {T[1]}, {F0}
    v_add_u32 v2, {T[1]}, v12
    s_mul_i32 {T[1]}, {sWV}, {UCH}
    s_add_u32 {T[1]}, {T[1]}, {U0}
    v_lshlrev_b32 v12, 5, v8
    v_sub_u32 v12, {T[1]}, v12
    v_lshl_add_u32 v3, v9, 4, v12
    v_add_u32 v3, 480, v3
    v_lshlrev_b32 v13, 3, v9
    v_sub_u32 v4, v12, v13
    v_add_u32 v4, 504, v4""")
    if OPT["pwave"]:
        spin_tag(f"global_load_dwordx2 v[14:15], v7, {WSP} sc1", 14, 1)
    else:
        page_calls((1, 2, 3))
        wave0(lambda: spin_tag(f"global_load_dwordx2 v[14:15], v7, {WSP} sc1", 14, 1))
        e.raw("s_barrier")
    stamp("p0_flag")
    for m in range(4):
        e(f"buffer_load_dwordx4 {v(16+4*m,4)}, v10, {WS}, {T[0]} offen sc1", tag=f"u{m}")
        if m < 3: e(f"s_add_u32 {T[0]}, {T[0]}, {16*10240}")
    if OPT["go"] and OPT["go_early"]: go_raise()
    ql = q_prefetch(218)
    all_addr(216, 217)
    shuf_addr(224)
    if OPT["wd_early"]:
        wd_base()
    e(f"""v_lshrrev_b32 v10, 1, v8
    v_mul_u32_u24 v10, 72, v10
    v_and_b32 v12, 1, v8
    v_lshl_add_u32 v10, v12, 4, v10
    v_lshl_add_u32 v10, v9, 2, v10
    s_mul_i32 {T[1]}, {sWV}, {YCS}
    s_add_u32 {T[1]}, {T[1]}, {YA}
    v_add_u32 v10, {T[1]}, v10
    v_lshrrev_b32 v14, 2, v8
    v_mul_u32_u24 v14, {YCS}, v14
    v_mul_u32_u24 v12, 72, v9
    v_add_u32 v14, v14, v12
    v_and_b32 v12, 3, v8
    v_lshl_add_u32 v14, v12, 3, v14
    s_mul_i32 {T[1]}, {sWV}, {72*16}
    s_add_u32 {T[1]}, {T[1]}, {YA}
    v_add_u32 v14, {T[1]}, v14
    v_lshrrev_b32 v12, 3, v0
    v_mul_u32_u24 v12, 20480, v12
    v_and_b32 v13, 7, v0
    v_lshl_add_u32 v12, v13, 4, v12
    s_mul_i32 {T[0]}, {sWV}, {32*20480}
    s_lshl_b32 {T[1]}, {sCI}, 7
    s_add_u32 {T[0]}, {T[0]}, {T[1]}
    s_add_u32 {T[0]}, {T[0]}, {YB}
    s_lshl_b32 {T[1]}, {sCGP}, 12
    s_add_u32 {T[1]}, {T[1]}, {CNT}""")
    seq = []
    for r in range(8):
        for aa in range(8):
            for b in range(7 - aa, -1, -1):
                seq.append((r, aa, b))
    first = {}; last = {}; fin = {}
    for t, (r, aa, b) in enumerate(seq):
        fin[aa + b] = t
        for key in (("F", r, aa), ("G", r, b)):
            first.setdefault(key, t); last[key] = t
    reads = []
    for key, t in first.items():
        kind, r, i = key
        prev = (kind, r - (1 if kind == "F" else 2), i)
        earliest = last[prev] + 1 if prev in last else -99
        if kind == "F":
            for h in range(2):
                reads.append((t, earliest, f"ds_read_b64 {v(FB+4*i+2*h,2)}, v2 offset:{512*i+64*r+8*h}", key))
        else:
            reads.append((t, earliest, f"ds_read_b128 {v(GB[r&1]+4*i,4)}, v3 offset:{512*(7-i)+64*r}", key))
    reads.sort(key=lambda x: x[0])
    early = [x for x in reads if x[3][0] == "F" and x[3][1] == 0]
    for x in early:
        e(x[2], tag=x[3]); reads.remove(x)
    for m in range(4):
        e.wait(vm=f"u{m}")
        e(f"ds_write_b128 v11, {v(16+4*m,4)} offset:{256*m}", tag="w")
    e.wait_all(vm=False)
    e.raw("s_barrier")
    if OPT["pwave"]: wg_flag(220)
    if OPT["go"] and not OPT["go_early"]: go_raise()
    fstamp("u_ready")
    S = Sched()
    if OPT["wd_early"]:
        S.at(OPT["wd_chk"] - 40, [(WD_POLL, "wdf")])
        S.at(OPT["wd_chk"], [wd_check])
        t = OPT["wd_chk"] + 1
        for it in wd_resident(OPT["wd_n"]):
            S.at(t, [it])
            if isinstance(it, tuple): t += OPT["wd_gap"]
    S.at(20, ql)
    S.at(200, [(l, "all") for l in all_loads(216, 217, 208).split("\n")])
    for n in range(8):
        S.at(150 + 4 * n, [(f"ds_read_b64 {v(KV+2*n,2)}, v4 offset:{512*(7-n)}", f"kv{n}")])
        d0, d1 = KV + 2 * n, KV + 2 * n + 1
        S.add(205, [f"v_and_b32 v{KU+4*n}, {sMASK}, v{d1}", f"v_lshlrev_b32 v{KU+4*n+1}, 16, v{d1}",
                    f"v_and_b32 v{KU+4*n+2}, {sMASK}, v{d0}", f"v_lshlrev_b32 v{KU+4*n+3}, 16, v{d0}"])
    for n in range(8):
        S.add(fin[n] + 6, [f"v_fmac_f32 v{AC+4*n+k}, {sDV}, v{KU+4*n+k}" for k in range(4)] +
              [f"v_cvt_pk_bf16_f32 v{YP+2*n}, v{AC+4*n}, v{AC+4*n+2}", f"v_cvt_pk_bf16_f32 v{YP+2*n+1}, v{AC+4*n+1}, v{AC+4*n+3}",
               (f"ds_write_b32 v10, v{YP+2*n} offset:{576*n}", "w"), (f"ds_write_b32 v10, v{YP+2*n+1} offset:{576*n+32}", "w")])
    LOOK = 22; ri = 0
    done_acc = set()
    for t, (r, aa, b) in enumerate(seq):
        n = 0
        while ri < len(reads) and reads[ri][1] <= t and (reads[ri][0] - t <= 6 or (n < 1 and reads[ri][0] - t <= LOOK)):
            e(reads[ri][2], tag=reads[ri][3]); ri += 1; n += 1
        need = [("F", r, aa), ("G", r, b)]
        S.gap(t, n + (1 if e.would_wait(lg=need) else 0), OPT["cx"] if t >= 262 else 0)
        e.wait(lg=need)
        acc = v(AC + 4 * (aa + b), 4)
        c = acc if (aa + b) in done_acc else "0"
        done_acc.add(aa + b)
        e(f"v_mfma_f32_16x16x32_bf16 {acc}, {v(FB+4*aa,4)}, {v(GB[r&1]+4*b,4)}, {c}")
    assert ri == len(reads) and not S.side
    print(f"conv: {len(S.fill)} epilogue instructions left after the last MFMA", file=sys.stderr)
    fstamp("conv_mfma")
    while S.fill: put(S.fill.pop(0)[1])
    e.wait_all(vm=False)
    e.raw("s_barrier")
    for m in range(4):
        for par in range(2):
            e(f"ds_read_b64_tr_b16 {v(48+4*m+2*par,2)}, v14 offset:{288*m+32*par}", tag=f"t{m}")
    for m in range(4):
        e.wait(lg=f"t{m}")
        e(f"buffer_store_dwordx4 {v(48+4*m,4)}, v12, {WS}, {T[0]} offen sc1", tag="st")
        if m < 3: e(f"s_add_u32 {T[0]}, {T[0]}, {8*20480}")
    if not OPT["sent_y"]: e.wait(vm="st")
    e.raw("s_barrier")
    replica_add(T[1])
    all_check()
    e(f"global_load_dword v225, v224, {WSP} sc1", tag="shuf")
    if OPT["pre_a1"]:
        L = e.uid("shufok")
        e.wait_all()
        e.raw(f"v_cmp_gt_u32 vcc, 16, v225\ns_cbranch_vccz {L}")
        spin(224, WSP, 16, 225)
        e.raw(f"{L}:")
    stamp("conv_done")

def go_wait(early=False):
    if not OPT["go"] or (OPT["go"] == 2) != early: return
    e(f"s_lshl_b32 {T[10]}, {sX}, 7\ns_add_u32 {T[10]}, {T[10]}, {GOF}\nv_mov_b32 v220, {T[10]}")
    e.wait_all()
    spin_tag(f"global_load_dwordx2 v[222:223], v220, {WSP} sc1\ns_sleep 2", 222, 1)

def shuffle():
    e.label("L_shuf")
    e(f"s_sub_u32 {sCI}, s2, 160")
    args_ready()
    tag_load()
    ffn_ids()
    for it in q_prefetch(8): put(it)
    e(f"s_lshl_b32 {T[0]}, {sCI}, 2\ns_add_u32 {T[0]}, {T[0]}, {sWV}")
    if OPT["warm"] == 1: warm_code()
    L = e.uid("nz")
    e.raw(f"""s_cmp_ge_u32 {T[0]}, 160
    s_cbranch_scc1 {L}
    s_mul_i32 {T[1]}, {T[0]}, 1639
    s_lshr_b32 {T[1]}, {T[1]}, 16
    s_mul_i32 {T[2]}, {T[1]}, 40
    s_sub_u32 {T[2]}, {T[0]}, {T[2]}
    s_lshl_b32 {T[2]}, {T[2]}, 10
    s_mul_i32 {T[3]}, {T[1]}, {WT}
    s_add_u32 {T[3]}, {T[3]}, {T[2]}
    s_add_u32 {T[3]}, {T[3]}, {WGU + 12*WT + 240*1024}
    v_mov_b32 v16, 0
    v_mov_b32 v17, 0
    v_mov_b32 v18, 0
    v_mov_b32 v19, 0
    buffer_store_dwordx4 v[16:19], v1, {WS}, {T[3]} offen sc1
    {L}:""")
    tag_ready()
    e(f"""s_mul_i32 {T[1]}, {sWV}, {SHST}
    v_lshrrev_b32 v2, 3, v0
    v_and_b32 v3, 7, v0
    v_lshrrev_b32 v8, 4, v0
    v_bfe_u32 v9, v0, 2, 2
    v_and_b32 v10, 3, v0
    v_lshl_add_u32 v8, v8, 3, v9""")
    if OPT["shufwait"]:
        e.wait_all()
    if OPT["stubs"]:
        e.wait_all()
        page_calls((1, 2, 3))
    if OPT["go"] == 2: go_wait(True)
    fstamp("shuf_go")
    e(f"s_cmp_ge_u32 {T[0]}, 272\ns_cbranch_scc1 L_shuf_wd\ns_cmp_ge_u32 {T[0]}, 270\ns_cbranch_scc1 L_shuf_go")
    srd(SA, P_WG, 640 * 3456); srd(SB, P_WU, 640 * 3456)
    e(f"""s_mul_i32 {T[2]}, {T[0]}, 6554
    s_lshr_b32 {T[2]}, {T[2]}, 16
    s_mul_i32 {T[3]}, {T[2]}, 10
    s_sub_u32 {T[3]}, {T[0]}, {T[3]}
    s_mul_i32 {T[4]}, {T[3]}, {64*3456}
    s_lshl_b32 {T[5]}, {T[2]}, 7
    s_add_u32 {T[4]}, {T[4]}, {T[5]}
    v_mul_u32_u24 v4, 3456, v2
    v_lshl_add_u32 v4, v3, 4, v4""")
    for m in range(8):
        e(f"buffer_load_dwordx4 {v(16+8*m,4)}, v4, {SA}, {T[4]} offen{NT_W}", tag=f"l{m}")
        e(f"buffer_load_dwordx4 {v(20+8*m,4)}, v4, {SB}, {T[4]} offen{NT_W}", tag=f"l{m}")
        if m < 7: e(f"s_add_u32 {T[4]}, {T[4]}, {8*3456}")
    e(f"""v_mul_u32_u24 v11, 272, v2
    v_lshl_add_u32 v11, v3, 4, v11
    v_add_u32 v11, {T[1]}, v11
    v_mul_u32_u24 v12, 272, v8
    v_add_u32 v12, {T[1]}, v12
    s_cmp_lt_u32 {T[2]}, 24
    s_cselect_b32 {T[4]}, 4, 3
    v_lshlrev_b32 v10, {T[4]}, v10
    v_add_u32 v12, v12, v10
    s_cselect_b32 {T[4]}, 8, 32
    v_add_u32 v13, {T[4]}, v12
    v_add_u32 v14, 64, v12
    v_add_u32 v15, 64, v13
    s_cselect_b32 {T[8]}, 4, 2
    s_lshl_b32 {T[8]}, {T[8]}, 10""")
    for m in range(8):
        e.wait(vm=f"l{m}")
        e(f"ds_write_b128 v11, {v(16+8*m,4)} offset:{m*2176}\nds_write_b128 v11, {v(20+8*m,4)} offset:{m*2176+128}", tag="w")
    e.wait(lg="w")
    fstamp("sh_ld")
    go_wait()
    fstamp("sh_go")
    for fi in range(4):
        for ss in range(2):
            for mat in range(2):
                for hh in range(2):
                    e(f"ds_read_b64_tr_b16 {v(16+16*fi+8*ss+4*mat+2*hh,2)}, v{12+fi} offset:{(32*ss+4*hh)*272+128*mat}", tag=f"t{fi}")
        e(f"""s_lshl_b32 {T[4]}, {T[2]}, 1
        s_add_u32 {T[4]}, {T[4]}, {fi >> 1}
        s_mul_i32 {T[5]}, {T[4]}, 21846
        s_lshr_b32 {T[5]}, {T[5]}, 16
        s_mul_i32 {T[6]}, {T[5]}, 3
        s_sub_u32 {T[6]}, {T[4]}, {T[6]}
        s_mul_i32 {T[6]}, {T[6]}, 80
        s_add_u32 {T[6]}, {T[6]}, {2 * (fi & 1)}
        s_lshl_b32 {T[4]}, {T[2]}, 2
        s_sub_u32 {T[4]}, {T[4]}, {96 - fi}
        s_cmp_lt_u32 {T[2]}, 24
        s_cselect_b32 {T[5]}, {T[5]}, {T[4]}
        s_cselect_b32 {T[6]}, {T[6]}, 240
        s_mul_i32 {T[5]}, {T[5]}, {WT}
        s_lshl_b32 {T[6]}, {T[6]}, 10
        s_add_u32 {T[7]}, {T[5]}, {T[6]}
        s_lshl_b32 {T[9]}, {T[3]}, 1
        s_mul_i32 {T[9]}, {T[9]}, {T[8]}
        s_add_u32 {T[7]}, {T[7]}, {T[9]}
        s_add_u32 {T[7]}, {T[7]}, {WGU}""")
        e.wait(lg=f"t{fi}")
        for ss in range(2):
            for mat in range(2):
                e(f"buffer_store_dwordx4 {v(16+16*fi+8*ss+4*mat,4)}, v1, {WS}, {T[7]} offen offset:{1024*mat} sc1", tag="st")
            if ss == 0: e(f"s_add_u32 {T[7]}, {T[7]}, {T[8]}")
    e("s_branch L_shuf_end")
    e.vm = []; e.lg = []
    e.label("L_shuf_wd")
    srd(SA, P_WD, 1728 * 1280)
    e(f"""s_sub_u32 {T[2]}, {T[0]}, 272
    s_and_b32 {T[3]}, {T[2]}, 1
    s_lshr_b32 {T[2]}, {T[2]}, 1
    s_mul_i32 {T[4]}, {T[2]}, 4682
    s_lshr_b32 {T[4]}, {T[4]}, 16
    s_mul_i32 {T[5]}, {T[4]}, 14
    s_sub_u32 {T[5]}, {T[2]}, {T[5]}
    s_and_b32 {T[6]}, {T[5]}, 3
    s_lshl_b32 {T[9]}, {T[4]}, 2
    s_add_u32 {T[7]}, {T[9]}, {T[6]}
    s_mul_i32 {T[7]}, {T[7]}, 3
    s_lshr_b32 {T[8]}, {T[5]}, 2
    s_add_u32 {T[7]}, {T[7]}, {T[8]}
    s_lshl_b32 {T[8]}, {T[4]}, 1
    s_add_u32 {T[8]}, {T[8]}, {T[6]}
    s_add_u32 {T[8]}, {T[8]}, 48
    s_cmp_ge_u32 {T[5]}, 12
    s_cselect_b32 {T[7]}, {T[8]}, {T[7]}
    s_mul_i32 {T[6]}, {T[7]}, {32*1280}
    s_mul_i32 {T[9]}, {T[3]}, 640
    s_add_u32 {T[6]}, {T[6]}, {T[9]}
    v_mul_u32_u24 v4, 1280, v2
    v_lshl_add_u32 v4, v3, 4, v4
    v_add_u32 v11, {T[6]}, v4
    v_add_u32 v12, 10240, v11
    v_add_u32 v13, 20480, v11
    v_add_u32 v14, 30720, v11""")
    for rb4 in range(4):
        for ln in range(5):
            e(f"buffer_load_dwordx4 {v(16+20*rb4+4*ln,4)}, v{11+rb4}, {SA}, 0 offen offset:{128*ln}{NT_W}", tag=f"l{rb4}")
    e(f"""v_mul_u32_u24 v4, 656, v2
    v_lshl_add_u32 v4, v3, 4, v4
    v_add_u32 v4, {T[1]}, v4
    v_mul_u32_u24 v15, 656, v8
    v_add_u32 v15, {T[1]}, v15
    v_lshl_add_u32 v2, v10, 4, v15
    v_lshl_add_u32 v3, v10, 3, v15
    s_mul_i32 {T[6]}, {T[3]}, {4*WT}
    s_mul_i32 {T[7]}, {T[4]}, 71680
    s_add_u32 {T[6]}, {T[6]}, {T[7]}
    s_mul_i32 {T[7]}, {T[5]}, 5120
    s_add_u32 {T[6]}, {T[6]}, {T[7]}
    s_add_u32 {T[6]}, {T[6]}, {WDP}""")
    for rb4 in range(4):
        e.wait(vm=f"l{rb4}")
        for ln in range(5):
            e(f"ds_write_b128 v4, {v(16+20*rb4+4*ln,4)} offset:{rb4*8*656+128*ln}", tag="w")
    e.wait(lg="w")
    if not OPT["wd_early"]: go_wait()
    for ct in range(4):
        for tau in range(5):
            base = 32 * (tau >> 1) + 4 * (tau & 1) if tau < 4 else 64
            for hh in range(2):
                e(f"ds_read_b64_tr_b16 {v(16+20*ct+4*tau+2*hh,2)}, v{2 if tau < 4 else 3} offset:{4*hh*656+2*(80*ct+base)}", tag=f"t{ct}")
        e.wait(lg=f"t{ct}")
        for tau in range(4):
            e(f"buffer_store_dwordx4 {v(16+20*ct+4*tau,4)}, v1, {WS}, {T[6]} offen offset:{1024*tau} sc1", tag="st")
        e(f"s_add_u32 {T[7]}, {T[6]}, 4096")
        e(f"buffer_store_dwordx4 {v(16+20*ct+16,4)}, v1, {WS}, {T[7]} offen sc1", tag="st")
        e(f"s_add_u32 {T[6]}, {T[6]}, {WT}")
    if OPT["wd_early"]:
        e.wait_all()
        e.raw("s_barrier")
        e(f"s_sub_u32 {T[6]}, {sCI}, 68\ns_lshl_b32 {T[6]}, {T[6]}, 3\ns_add_u32 {T[6]}, {T[6]}, {WDF}")
        wave0(lambda: e.raw(f"""s_mov_b64 exec, 0xff
        v_lshlrev_b32 v220, 8, v0
        v_add_u32 v220, {T[6]}, v220
        v_mov_b32 v222, {sTAG}
        v_mov_b32 v223, {sNTAG}
        global_store_dwordx2 v220, v[222:223], {WSP} sc1
        s_mov_b64 exec, -1"""))
        fstamp("wd_sig")
    e.label("L_shuf_go")
    go_wait()
    e.label("L_shuf_end")
    all_addr(216, 217)
    e(all_loads(216, 217, 208), tag="all")
    all_check()
    e.wait_all()
    e.raw("s_barrier")
    e(f"s_lshr_b32 {T[1]}, {sCI}, 4\ns_lshl_b32 {T[1]}, {T[1]}, 12\ns_add_u32 {T[1]}, {T[1]}, {CNT + 2048}")
    replica_add(T[1])
    fstamp("shuf_done")
    if OPT["wd_early"]:
        wd_base()
        e(WD_POLL, tag="wdf")
        wd_check()
        for it in wd_resident(OPT["wd_n"]): put(it)
    if OPT["pre_a1"] or OPT["wtouch"]:
        shuf_addr(7)
        wait_flag(7, WSP, 16)
    if OPT["wtouch"]:
        n = OPT["wtouch"]
        e(f"""s_sub_u32 {T[1]}, {sSLOT}, 20
        s_lshl_b32 {T[1]}, {T[1]}, 2
        s_add_u32 {T[1]}, {T[1]}, {sWV}
        s_and_b32 {T[3]}, {T[1]}, 7
        s_lshr_b32 {T[1]}, {T[1]}, 3
        s_mul_i32 {T[1]}, {T[1]}, {n*8192}
        s_lshl_b32 {T[2]}, {sHF}, 3
        s_add_u32 {T[2]}, {T[2]}, {T[3]}
        s_mul_i32 {T[2]}, {T[2]}, {WT}
        s_add_u32 {T[2]}, {T[2]}, {T[1]}
        s_add_u32 {T[2]}, {T[2]}, {WGU + 131072}
        v_lshlrev_b32 v8, 7, v0""")
        for k in range(n):
            e(f"buffer_load_dword v254, v8, {WS}, {T[2]} offen sc1\ns_add_u32 {T[2]}, {T[2]}, 8192", tag="touch")

class Bg:
    q = []; every = 8; n = 0
def ev(text, tag=None):
    for l in text.split("\n"):
        if not l.strip(): continue
        e(l, tag=tag)
        if l.strip().startswith("v_"):
            Bg.n += 1
            if Bg.q and Bg.n % Bg.every == 0:
                put(Bg.q.pop(0))
                while Bg.q and isinstance(Bg.q[0], str): put(Bg.q.pop(0))
def bg_flush():
    while Bg.q: put(Bg.q.pop(0))

XV, YV, RAW, NV = 16, 40, 64, 88
def unpack24(dst, src):
    for c in range(24):
        if c & 1: ev(f"v_and_b32 v{dst+c}, {sMASK}, v{src+(c>>1)}")
        else: ev(f"v_lshlrev_b32 v{dst+c}, 16, v{src+(c>>1)}")

def row_stats(x, area, scale=None):
    ev(f"v_pk_add_f32 v[112:113], {v(x,2)}, {v(x+2,2)}\nv_pk_mul_f32 v[114:115], {v(x,2)}, {v(x,2)}")
    ev(f"v_pk_fma_f32 v[114:115], {v(x+2,2)}, {v(x+2,2)}, v[114:115]")
    for p in range(2, 12):
        ev(f"v_pk_add_f32 v[112:113], v[112:113], {v(x+2*p,2)}")
        ev(f"v_pk_fma_f32 v[114:115], {v(x+2*p,2)}, {v(x+2*p,2)}, v[114:115]")
    ev("""v_add_f32 v112, v112, v113
    v_add_f32 v113, v114, v115
    v_add_f32_dpp v112, v112, v112 row_ror:8 row_mask:0xf bank_mask:0xf
    v_add_f32_dpp v113, v113, v113 row_ror:8 row_mask:0xf bank_mask:0xf""")
    for sw in ("v_permlane16_swap_b32", "v_permlane32_swap_b32"):
        ev(f"""v_mov_b32 v114, v112
        v_mov_b32 v115, v113
        {sw} v112, v114
        {sw} v113, v115
        v_add_f32 v112, v112, v114
        v_add_f32 v113, v113, v115""")
    e(f"s_mov_b64 exec, 0xff\nds_write_b64 v13, v[112:113] offset:{area}\ns_mov_b64 exec, -1", tag="w")
    e.wait_all(vm=False)
    e.raw("s_barrier")
    e(f"ds_read_b128 v[112:115], v14 offset:{area}\nds_read_b128 v[116:119], v14 offset:{area+16}", tag="r")
    e.wait(lg="r")
    ev(f"""v_pk_add_f32 v[112:113], v[112:113], v[114:115]
    v_pk_add_f32 v[116:117], v[116:117], v[118:119]
    v_pk_add_f32 v[112:113], v[112:113], v[116:117]
    v_mul_f32 v112, {f32(1/640)}, v112
    v_mul_f32 v113, {f32(1/640)}, v113
    v_fma_f32 v113, -v112, v112, v113
    v_max_f32 v113, 0, v113
    v_add_f32 v113, {f32(1e-5)}, v113
    v_rsq_f32 v120, v113""")
    if scale: ev(f"v_mul_f32 v120, {f32(scale)}, v120")
    ev("v_mul_f32_e64 v121, -v112, v120")

def normalise(dst, x):
    for p in range(12):
        ev(f"v_pk_fma_f32 {v(dst+2*p,2)}, {v(x+2*p,2)}, v[120:121], v[120:121] op_sel:[0,0,1] op_sel_hi:[1,0,1]")

def r_addr():
    e(f"""v_and_b32 v8, 7, v0
    v_lshrrev_b32 v9, 3, v0
    s_mul_i32 {T[0]}, {sWV}, 20
    v_add_u32 v9, {T[0]}, v9
    v_lshlrev_b32 v10, 8, v9
    v_lshl_add_u32 v10, v8, 4, v10
    v_add_u32 v11, 2048, v10
    v_add_u32 v12, 4096, v10
    v_mov_b32 v15, {BIG}
    v_cmp_gt_u32 vcc, 32, v0
    v_cndmask_b32 v12, v15, v12, vcc
    v_lshlrev_b32 v14, 5, v8
    v_add_u32 v14, {RED}, v14
    s_lshl_b32 {T[0]}, {sWV}, 3
    v_add_u32 v13, {T[0]}, v14
    s_lshr_b32 {T[1]}, {sRB}, 1
    s_mul_i32 {T[1]}, {T[1]}, 20480
    s_and_b32 {T[2]}, {sRB}, 1
    s_lshl_b32 {T[2]}, {T[2]}, 7
    s_add_u32 {T[1]}, {T[1]}, {T[2]}
    s_lshl_b32 {T[2]}, {sWV}, 10
    v_add_u32 v4, {T[2]}, v1""")

def r_finish(layer):
    row_stats(XV, 256, ALPHA)
    normalise(NV, XV)
    e(f"s_add_u32 {T[2]}, {T[1]}, {XN[layer]}")
    for it in range(3):
        for p in range(4 * it, 4 * it + 4):
            e(f"v_cvt_pk_bf16_f32 v{RAW+p}, v{NV+2*p}, v{NV+2*p+1}")
        e(f"buffer_store_dwordx4 {v(RAW+4*it,4)}, v{10+it}, {WS}, {T[2]} offen sc1", tag="st")
    for p in range(12):
        e(f"v_cvt_pk_bf16_f32 v{RAW+12+p}, v{XV+2*p}, v{XV+2*p+1}")
    if layer == 0:
        for it in range(3):
            e(f"ds_write_b128 v4, {v(RAW+12+4*it,4)} offset:{ST_X-131072+4096*it}", tag="w")
    else:
        e(f"s_add_u32 {T[2]}, {T[1]}, {X3}")
        for it in range(3):
            e(f"buffer_store_dwordx4 {v(RAW+12+4*it,4)}, v{10+it}, {WS}, {T[2]} offen sc1", tag="x3st")
    cnt_off(T[0], sG, 16 * layer)
    rstamp(f"r_st{layer}")
    e.wait(vm="st")
    rstamp(f"r_dr{layer}")
    e.raw("s_barrier")
    signal(T[0], WSP)
    e(f"v_mov_b32 v7, {T[0]}")
    bg_flush()
    rest = list(take(8))
    if OPT["late_pre"]:
        Pre.late = rest[-OPT["late_pre"]:]; rest = rest[:-OPT["late_pre"]]
    prefill(rest)
    Pre.done = 0

class Pre: done = 0; late = []; raw = []
def take(n):
    n = min(n, 8 - Pre.done); r = range(Pre.done, Pre.done + n); Pre.done += n
    return r
def r_prefill(n, every):
    Bg.n = 0; Bg.every = every
    for sg in take(n): Bg.q += dma_stage(sg)
    while Bg.q and isinstance(Bg.q[0], str): put(Bg.q.pop(0))

def r1():
    e.label("L_r1")
    ffn_setup()
    r_addr()
    e.wait_all()
    e(f"""v_add_u32 v4, 131072, v4
    v_lshlrev_b32 v2, 8, v9
    v_lshl_add_u32 v2, v8, 3, v2
    v_add_u32 v3, 4096, v2
    v_cmp_gt_u32 vcc, 32, v0
    v_cndmask_b32 v3, v15, v3, vcc
    s_lshr_b32 {T[3]}, {sRB}, 1
    s_mul_i32 {T[3]}, {T[3]}, 20480
    s_and_b32 {T[4]}, {sRB}, 1
    s_lshl_b32 {T[4]}, {T[4]}, 6
    s_add_u32 {T[3]}, {T[3]}, {T[4]}
    s_add_u32 {T[3]}, {T[3]}, {YB}""")
    if OPT["sent_f"]:
        e(f"s_add_u32 {T[2]}, {T[1]}, {F1}\nv_mov_b32 v124, -1\nv_mov_b32 v125, -1\nv_mov_b32 v126, -1\nv_mov_b32 v127, -1")
        for it in range(3):
            e(f"buffer_store_dwordx4 v[124:127], v{10+it}, {WS}, {T[2]} offen sc1", tag="clr")
    if OPT["pre_a1"] and not OPT["a1w3"]: r_prefill(OPT["pre_a1"], 5)
    for i in range(12):
        ev(f"v_accvgpr_read_b32 v{RAW+i}, a{240+i}")
    unpack24(XV, RAW)
    row_stats(XV, 0)
    normalise(NV, XV)
    bg_flush()
    e(f"""s_lshl_b32 {T[4]}, {sX}, 8
    s_add_u32 {T[4]}, {T[4]}, {CNT}
    v_and_b32 v7, 15, v0
    v_lshlrev_b32 v6, 12, v7
    v_subrev_u32 v122, {10*4096 - 2048}, v6
    v_cmp_gt_u32 vcc, 10, v7
    v_cndmask_b32 v7, v122, v6, vcc
    v_add_u32 v7, {T[4]}, v7""")
    if OPT["pre_a1"] and OPT["a1w3"]: prefill(take(OPT["pre_a1"]))
    if OPT["hier"]:
        e(f"s_lshl_b32 {T[4]}, {sX}, 8\ns_add_u32 {T[4]}, {T[4]}, {CNT + 6*4096 + 2048}\nv_mov_b32 v7, {T[4]}")
        wait_flag(7, WSP, 16 if OPT["hier"] == 1 else 16, OPT["nap"])
    else:
        wait_flag(7, WSP, 16, OPT["nap"])
    stamp("conv_flag")
    yl = []
    for it in range(3):
        for h in range(2):
            va, off = (2, 2048 * it + 128 * h) if it < 2 else (3, 128 * h)
            yl.append(f"buffer_load_dwordx2 {v(RAW+4*it+2*h,2)}, v{va}, {WS}, {T[3]} offen offset:{off} sc1")
    yl = "\n".join(yl)
    e(yl, tag="y")
    r_prefill(OPT["pre_r1"], OPT["pre_every"])
    for _ in range(min(OPT["pre_now"], len(Bg.q))): put(Bg.q.pop(0))
    e.wait(vm="y")
    if OPT["sent_y"]: sentinel_loop(yl, RAW, 123)
    rstamp("y_arr")
    unpack24(YV, RAW)
    for p in range(12):
        ev(f"v_pk_fma_f32 {v(XV+2*p,2)}, {v(NV+2*p,2)}, {v(YV+2*p,2)}, {v(XV+2*p,2)}")
    for it in range(3):
        e(f"ds_write_b128 v4, {v(RAW+4*it,4)} offset:{ST_Y-131072+4096*it}", tag="w")
    r_finish(0)
    stamp("r1_done")

def r2_pre():
    r_addr()
    e("v_add_u32 v4, 131072, v4")
    for it in range(3):
        e(f"ds_read_b128 {v(RAW+4*it,4)}, v4 offset:{ST_X-131072+4096*it}", tag="x")
    for it in range(3):
        e(f"ds_read_b128 {v(RAW+12+4*it,4)}, v4 offset:{ST_Y-131072+4096*it}", tag="x")
    e.wait(lg="x")
    unpack24(XV, RAW)
    unpack24(YV, RAW + 12)
    e(f"s_add_u32 {T[2]}, {T[1]}, {F1}")

def r2():
    wait_flag(7, WSP, 8)
    stamp("f_flag")
    e(f"s_mov_b32 s96, {f32(INVA2)}")
    fl = "\n".join(f"buffer_load_dwordx4 {v(RAW+4*it,4)}, v{10+it}, {WS}, {T[2]} offen sc1" for it in range(3))
    e(fl, tag="f")
    r_prefill(OPT["pre_r2"], OPT["pre_every"])
    for _ in range(min(OPT["pre_now"], len(Bg.q))): put(Bg.q.pop(0))
    e.wait(vm="f")
    if OPT["sent_f"]: sentinel_loop(fl, RAW, 123)
    rstamp("f_arr")
    unpack24(NV, RAW)
    for p in range(12):
        ev(f"v_pk_fma_f32 {v(XV+2*p,2)}, {v(NV+2*p,2)}, s[96:97], {v(XV+2*p,2)} op_sel_hi:[1,0,1]")
    row_stats(XV, 0)
    normalise(NV, XV)
    for p in range(12):
        ev(f"v_pk_fma_f32 {v(XV+2*p,2)}, {v(NV+2*p,2)}, {v(YV+2*p,2)}, {v(XV+2*p,2)}")
    r_finish(1)
    stamp("r2_done")

XR = 16; ACC = (176, 208); WB0 = 220; NWB = 9; PD = OPT["pd"]; NRES = 11

class Lay: n = 0
def dma_stage(sg):
    ph = phys_stage(sg)
    out = [f"s_add_u32 {sWO}, {sWB}, {ph*16384}", f"s_add_u32 m0, {sM0}, {(sg & 7)*16384}"]
    out += [(f"buffer_load_dwordx4 v1, {WS}, {sWO} offen offset:{1024*d} sc1{WNT} lds", f"dma{sg}") for d in range(4)]
    return out

def put(item):
    if isinstance(item, tuple): e(item[0], tag=item[1])
    elif callable(item): item()
    else: e(item)

def phys_stage(sg): return 5 * (2 - sg // 5) + sg % 5 if OPT["rev"] and Lay.n == 1 and sg < 15 else sg
def prefill(stages):
    stages = list(stages)
    if OPT["w3"] and len(stages) == 3:
        L = e.uid("w3")
        ph = [phys_stage(k) for k in stages]
        e.raw(f"""s_cmp_eq_u32 {sWV}, 0
        s_cbranch_scc1 {L}
        s_sub_u32 {sWO}, {sWB}, {sM0}
        s_mov_b32 {T[14]}, {ph[0]*16384}
        s_cmp_eq_u32 {sWV}, 2
        s_cselect_b32 {T[14]}, {ph[1]*16384}, {T[14]}
        s_cmp_eq_u32 {sWV}, 3
        s_cselect_b32 {T[14]}, {ph[2]*16384}, {T[14]}
        s_add_u32 {sWO}, {sWO}, {T[14]}
        s_lshl_b32 {T[14]}, {sWV}, 14
        s_add_u32 m0, {T[14]}, {(stages[0] - 1) * 16384 & 0xffffffff}""")
        for q in range(4):
            if q: e.raw(f"s_add_u32 {sWO}, {sWO}, 4096\ns_add_u32 m0, m0, 4096")
            for d in range(4):
                e.raw(f"buffer_load_dwordx4 v1, {WS}, {sWO} offen offset:{1024*d} sc1{WNT} lds")
        e.raw(f"{L}:")
        Pre.raw = stages
        return
    for sg in stages:
        for it in dma_stage(sg): put(it)

def ffn_setup():
    e(f"""s_mul_i32 {sWB}, {sJT}, {WT}
    s_lshl_b32 {sM0}, {sWV}, 12
    s_add_u32 {sWB}, {sWB}, {sM0}
    s_add_u32 {sWB}, {sWB}, {WGU}
    s_mul_i32 {sWD}, {sMI}, {WT}
    s_mul_i32 {T[0]}, {sWV}, 71680
    s_add_u32 {sWD}, {sWD}, {T[0]}
    s_add_u32 {sWD}, {sWD}, {WDP}""")

def geglu(g, u, n, outq):
    L = []
    if OPT["x_nofill"]: return L
    for z in range(n):
        L += [f"v_fma_f32 v{8+(z&3)}, v{g+z}, v{g+z}, v4", f"v_mul_f32 v{u+z}, v{g+z}, v{u+z}",
              f"v_mul_f32_e64 v{g+z}, -v{g+z}, v{8+(z&3)}", f"v_exp_f32 v{g+z}, v{g+z}", f"v_add_f32 v{g+z}, 1.0, v{g+z}",
              f"v_rcp_f32 v{g+z}, v{g+z}", f"v_mul_f32 v{u+z}, v{u+z}, v{g+z}"]
        if z & 1: L.append(f"v_cvt_pk_bf16_f32 v{outq+(z>>1)}, v{u+z-1}, v{u+z}")
    return L

def text_of(item): return item[0] if isinstance(item, tuple) else item
def slots(item):
    t = text_of(item)
    if callable(t): return 9
    return 2 if t.startswith(("v_exp", "v_rcp")) else 1
def is_mem(item):
    t = text_of(item)
    return not callable(t) and t.startswith(("buffer_", "global_", "ds_"))

class Sched:
    def __init__(self):
        self.side = []; self.fill = []; self.seq = 0; self.over = 0; self.hook = None
    def at(self, slot, items):
        for it in items:
            self.seq += 1; self.side.append((slot, self.seq, it))
        self.side.sort(key=lambda x: x[:2])
    def add(self, slot, items):
        for it in items: self.fill.append((slot, it, Ins(text_of(it))))
    def pending(self, tag): return any(isinstance(it, tuple) and it[1] == tag for _, it, _ in self.fill)
    def gap(self, n, used, extra=0):
        room = 2 + extra - used; valu = False; m0 = False
        while self.side and self.side[0][0] <= n:
            slot, _, it = self.side[0]
            late = n - slot >= OPT["slack"]
            dma = is_mem(it) and text_of(it).endswith("lds")
            if not late and (slots(it) > room or (dma and m0)) and slots(it) < 9: break
            self.side.pop(0); put(it); room -= slots(it)
            m0 = not callable(it) and " m0," in text_of(it)
        k = 0
        while room > 0 and k < min(len(self.fill), 20):
            slot, it, ins = self.fill[k]
            ok = slot <= n and slots(it) <= room and not (is_mem(it) and valu)
            for _, _, o in self.fill[:k]:
                if (o.dst & (ins.src | ins.dst)) or (o.src & ins.dst) or (o.kind in ("vmem", "ds") and ins.kind in ("vmem", "ds", "salu")) or (o.kind == "salu"):
                    ok = False; break
            if ok and ins.op.startswith("v_permlane") and valu: ok = False
            if ok:
                self.fill.pop(k); put(it); room -= slots(it); valu = valu or ins.kind == "valu"
                if self.hook: self.hook(it, n)
                if ins.op.startswith(("v_exp", "v_rcp")): break
                k = 0
            else:
                k += 1
        if room < 0: self.over -= room

def check_or_spin(vt, vaddr, target):
    def fn():
        L = e.uid("rdy")
        e.wait(vm=f"poll{vt}")
        keep = list(e.vm)
        e.raw(f"v_cmp_gt_u32 vcc, {target}, v{vt}\ns_cbranch_vccz {L}")
        spin(vaddr, WSP, target, vt)
        e.raw(f"{L}:")
        e.vm = keep
    return fn

HF = 16
WNQ = list(range(224, 240, 4)) + list(range(160, 176, 4)) + list(range(176, 204, 4))
def acc2(tau, ri): return 80 + 4 * (ri * 5 + tau)
NONRES = [5 * ks + t for ks in (7, 12, 13) for t in range(5)]
RES = [fr for fr in range(70) if fr not in NONRES]
def wdreg(fr): return a(4 * RES.index(fr), 4) if fr in RES else v(WNQ[NONRES.index(fr)], 4)
sX0, sX1, sHC, sWDO, sTMP, sHT = T[10], T[11], T[12], T[13], T[14], T[15]
sHS1, sWNO = T[16], T[17]

def ffn(layer):
    H = HB[layer]
    e(f"""v_add_u32 v2, 0x10000, v1
    v_mov_b32 v4, {f32(KAPPA)}
    v_bfe_u32 v8, v0, 4, 1
    v_mul_u32_u24 v3, 57344, v8
    v_lshrrev_b32 v8, 5, v0
    v_lshl_add_u32 v3, v8, 8, v3
    v_and_b32 v8, 15, v0
    v_lshl_add_u32 v3, v8, 4, v3
    s_lshl_b32 {T[0]}, {sG}, 3
    s_lshl_b32 {T[1]}, {sWV}, 1
    s_add_u32 {T[1]}, {T[1]}, {T[0]}
    s_mul_i32 {sX0}, {T[1]}, 20480
    s_add_u32 {sX0}, {sX0}, {XN[layer]}
    s_add_u32 {sX1}, {sX0}, 20480
    s_mul_i32 {T[1]}, {T[1]}, 57344
    s_lshr_b32 {T[2]}, {sJT}, 2
    s_mul_i32 {T[2]}, {T[2]}, 14336
    s_add_u32 {T[1]}, {T[1]}, {T[2]}
    s_add_u32 {T[1]}, {T[1]}, {H}
    s_and_b32 {T[2]}, {sJT}, 3
    s_lshl_b32 {T[3]}, {T[2]}, 10
    s_add_u32 {sHS}, {T[1]}, {T[3]}
    s_add_u32 {sHS1}, {sHS}, 57344
    s_lshl_b32 {T[3]}, {T[2]}, 9
    s_add_u32 {sHS3}, {T[1]}, {T[3]}
    s_add_u32 {sHS3}, {sHS3}, 12288
    s_lshl_b32 {T[1]}, {sHF}, 2
    s_add_u32 {T[0]}, {T[0]}, {T[1]}
    s_mul_i32 {T[2]}, {sWV}, 14336
    s_add_u32 {T[2]}, {T[2]}, {H}""")
    for ri in range(4):
        e(f"""s_add_u32 {T[1]}, {sWV}, {ri}
        s_and_b32 {T[1]}, {T[1]}, 3
        s_add_u32 {T[1]}, {T[1]}, {T[0]}
        s_mul_i32 {T[1]}, {T[1]}, 57344
        s_add_u32 {sH[ri]}, {T[1]}, {T[2]}""")
    e(f"""s_and_b32 {T[1]}, {sMI}, 1
    s_lshl_b32 {T[1]}, {T[1]}, 1
    s_add_u32 {T[1]}, {T[1]}, {T[0]}
    s_lshr_b32 {T[2]}, {sWV}, 1
    s_add_u32 {T[1]}, {T[1]}, {T[2]}
    s_mul_i32 {sHT}, {T[1]}, 57344
    s_lshr_b32 {T[1]}, {sMI}, 1
    s_mul_i32 {T[1]}, {T[1]}, 14336
    s_add_u32 {sHT}, {sHT}, {T[1]}
    s_add_u32 {sHT}, {sHT}, {H}
    s_and_b32 {T[1]}, {sWV}, 1
    s_lshl_b32 {T[2]}, {T[1]}, 11
    v_lshlrev_b32 v250, 7, v8
    v_and_b32 v251, 0x380, v250
    v_add_u32 v250, {T[2]}, v250
    s_lshl_b32 {T[2]}, {T[1]}, 10
    v_add_u32 v251, {T[2]}, v251
    s_mul_i32 {sHC}, {sG}, 3""")
    cnt_off(sHC, sHC, 64 + 48 * layer)
    e(f"v_mov_b32 v244, {sHC}\nv_add_u32 v245, 64, v244\nv_add_u32 v246, 256, v244\nv_add_u32 v248, 512, v244")
    wait_flag(7, WSP, 16)
    stamp(f"xn_flag{layer}")

    def xload(i):
        s_, rt = i >> 1, i & 1
        L = [(f"buffer_load_dwordx4 {v(XR+4*i,4)}, v1, {WS}, {(sX0, sX1)[rt]} offen offset:{1024*(s_&3)} sc1", f"x{i}")]
        if s_ & 3 == 3 and s_ < 19: L.append(f"s_add_u32 {(sX0, sX1)[rt]}, {(sX0, sX1)[rt]}, 4096")
        return L
    def wread(fr):
        addr = (fr & 127) * 1024
        e(f"ds_read_b128 {a(WB0+4*(fr%NWB),4)}, v{1 if addr < 65536 else 2} offset:{addr & 65535}", tag=f"w{fr}")
    def hload(ks, ri):
        return (f"buffer_load_dwordx4 {v(HF+16*(ks&3)+4*ri,4)}, v1, {WS}, {sH[ri]} offen offset:{1024*(ks&3)} sc1", f"h{ks}_{ri}")
    wd_at = {}
    def wdload(fr):
        L = []
        so = sWDO if fr in RES else sWNO
        if wd_at.get(so) != fr & ~3:
            wd_at[so] = fr & ~3
            L.append(f"s_add_u32 {so}, {sWD}, {(fr & ~3)*1024}")
        L.append((f"buffer_load_dwordx4 {wdreg(fr)}, v1, {WS}, {so} offen offset:{1024*(fr&3)} sc1", f"wd{fr}"))
        return L
    rev = OPT["rev"] and layer == 1
    def phys(i): return 4 * (2 - i // 4) + i % 4 if rev and i < 12 else i
    def htouch(p):
        if not OPT["htouch"]: return []
        return [f"s_add_u32 {sTMP}, {sHT}, {4096*p}", (f"buffer_load_dword v249, v{250 if p < 3 else 251}, {WS}, {sTMP} offen sc1", "touch")]
    def sig_h(pi):
        e(f"s_add_u32 {sTMP}, {sHC}, {(0, 64, 256, 512)[pi]}")
        signal(sTMP, WSP)

    if rev:
        for r_ in [sHS, sHS1] + sH: e(f"s_add_u32 {r_}, {r_}, 8192")
    G2 = 560
    S = Sched(); at, add = S.at, S.add
    for p in range(3):
        s0 = 160 * (p + 1) + 4
        for rt in range(2):
            base = ACC[p & 1] + 16 * rt; q = (12, 240)[rt]
            add(s0, geglu(base, base + 8, 8, q))
            add(s0, [(f"buffer_store_dwordx4 {v(q,4)}, v1, {WS}, {(sHS, sHS1)[rt]} offen sc1", f"hs{p}")])
        op = "s_sub_u32" if rev else "s_add_u32"
        if p < 2: add(s0, [f"{op} {sHS}, {sHS}, 4096", f"{op} {sHS1}, {sHS1}, 4096"])
    add(G2 + 4, geglu(ACC[1], ACC[1] + 4, 4, 12) + geglu(ACC[1] + 8, ACC[1] + 12, 4, 14))
    add(G2 + 4, ["v_permlane16_swap_b32 v12, v14", "v_permlane16_swap_b32 v13, v15",
                 (f"buffer_store_dwordx4 v[12:15], v3, {WS}, {sHS3} offen sc1", "hs3")])
    add(G2 + 120, f"""v_lshrrev_b32 v8, 4, v0
    v_and_b32 v9, 15, v0
    v_lshrrev_b32 v11, 1, v8
    v_lshlrev_b32 v11, 8, v11
    v_lshl_add_u32 v11, v9, 4, v11
    v_add_u32 v11, 2048, v11
    v_mov_b32 v15, {BIG}
    v_and_b32 v12, 16, v0
    v_cmp_eq_u32 s[98:99], 0, v12
    s_lshl_b32 {T[8]}, {sG}, 3
    s_lshl_b32 {T[9]}, {sHF}, 2
    s_add_u32 {T[8]}, {T[8]}, {T[9]}
    s_add_u32 {T[8]}, {T[8]}, {sWV}
    v_cndmask_b32 v11, v15, v11, s[98:99]
    s_mul_i32 {T[7]}, {T[8]}, {16*1280}
    s_mul_i32 {T[8]}, {T[8]}, 20480
    s_mul_i32 {T[9]}, {sMI}, 2560
    s_add_u32 {T[8]}, {T[8]}, {T[9]}
    s_add_u32 {T[8]}, {T[8]}, {F1 if layer == 0 else X3}
    s_mul_i32 {T[0]}, {sWV}, 15360
    v_add_u32 v204, {T[0]}, v2""".replace("    ", "").split("\n"))
    for ri in range(1, 4):
        add(G2 + 120, [f"s_add_u32 {T[0]}, {sWV}, {ri}", f"s_and_b32 {T[0]}, {T[0]}, 3", f"s_mul_i32 {T[0]}, {T[0]}, 15360", f"v_add_u32 v{204+ri}, {T[0]}, v2"])
    if layer == 1:
        add(G2 + 120, f"""s_mul_i32 {T[9]}, {sMI}, 160
        s_add_u32 {T[7]}, {T[7]}, {T[9]}
        v_mul_u32_u24 v10, 1280, v9
        v_lshrrev_b32 v13, 1, v8
        v_lshl_add_u32 v13, v13, 4, v10
        v_lshl_add_u32 v10, v8, 4, v10
        v_cndmask_b32 v13, v15, v13, s[98:99]
        s_mov_b32 s12, s{P_OUT}
        s_mov_b32 s13, s{P_OUT+1}
        s_mov_b32 s14, {ACT}
        s_mov_b32 s15, 0x20000
        s_mov_b32 s96, {f32(INVA2)}""".replace("    ", "").split("\n"))
        add(G2 + 224, [(f"buffer_load_dwordx4 v[48:51], v1, {WS}, {T[8]} offen sc1", "x3"),
                       (f"buffer_load_dwordx4 v[52:55], v1, {WS}, {T[8]} offen offset:1024 sc1", "x3"),
                       (f"buffer_load_dwordx4 v[56:59], v11, {WS}, {T[8]} offen sc1", "x3")])
    else:
        add(G2 + 120, [f"s_lshl_b32 {T[7]}, {sG}, 1", f"s_add_u32 {T[7]}, {T[7]}, {sHF}", f"s_lshl_b32 {T[7]}, {T[7]}, 8",
                       f"s_add_u32 {T[7]}, {T[7]}, {CNT + 32 * 256 + 128}"])
    order = []
    for ks in range(14 - 2 * OPT["redo"]):
        for ri in ((0, 1, 2, 3) if ks < 13 else (1, 2, 3, 0)):
            for tau in range(5): order.append((ks, ri, tau))
    if OPT["redo"]:
        order += [(ks, ri, tau) for ri in (1, 2, 3, 0) for ks in (12, 13) for tau in range(5)]
    for ri in range(1, 4):
        for tau in range(5):
            add(G2 + order.index((13, ri, tau)) + 6, [(f"ds_write_b128 v{204+ri}, {v(acc2(tau,ri),4)} offset:{(ri-1)*5120+1024*tau}", "rw")])
    if layer == 0:
        for k, sg in enumerate(take(OPT["pre_g2"])):
            st = dma_stage(sg); t0 = G2 + OPT["pre_g2_at"] + 12 * k
            at(t0, st[:2])
            for d in range(4): at(t0 + 3 * d + 1, [st[2 + d]])
    for i in range(OPT["xup"]):
        for it in xload(i): put(it)
    for i in range(OPT["xup"], 40):
        at(4 * (i - OPT["xup"]) + 1, xload(i))
    if layer == 0 and not OPT["x_nowd"]:
        n0 = OPT["wd_n"] if OPT["wd_early"] else 0
        n = 5 * NRES - n0
        for fr in range(n):
            at(OPT["wd0"] + (fr * (OPT["wd1"] - OPT["wd0"])) // n, wdload(RES[n0 + fr]))
    chk = [OPT["chk0"], OPT["chk1"], OPT["chk2"], OPT["chk3"]]
    for p, va in enumerate((244, 245, 246, 248)):
        if OPT["x_nochk"]: continue
        at(chk[p] - OPT["poll_lead"], [(f"global_load_dword v247, v{va}, {WSP} sc1", "poll247")])
        at(chk[p], [check_or_spin(247, va, 16)] + htouch(p))
    need = {}
    for n_, (ks, ri, tau) in enumerate(order):
        need.setdefault(("h", ks, ri), G2 + n_); need.setdefault(("w", 5 * phys(ks) + tau), G2 + n_)
    last_use = {}
    for n_, (ks, ri, tau) in enumerate(order): last_use[(ks, ri)] = G2 + n_
    jobs = []
    for ks in range(14):
        for ri in range(4):
            free = 480 + 8 * ks + 4 * (ri >> 1) + 5 if ks < 4 else last_use[(ks - 4, ri)] + 1
            jobs.append((need[("h", ks, ri)], max(free, chk[ks >> 2] + 1 if not OPT["x_nochk"] else 0), ("h", ks, ri)))
    for k, fr in enumerate(NONRES):
        jobs.append((G2 + OPT["wn0"] + OPT["wn_gap"] * k, 485 if k < 4 else G2 + 8, ("w", fr)))
    jobs.sort()
    t = OPT["ld0"]; bumped = [0] * 4
    for dl, free, job in jobs:
        t = max(t, free, dl - OPT["maxlead"])
        if job[0] == "h":
            ks, ri = job[1:]
            pre = []
            if ks >> 2 > bumped[ri]:
                bumped[ri] = ks >> 2
                pre = [f"s_add_u32 {sH[ri]}, {sH[ri]}, {4096 if not rev else 12288}" if not rev or ks >= 12 else f"s_sub_u32 {sH[ri]}, {sH[ri]}, 4096"]
            if not OPT["x_nohload"] or ks < 4: at(t, pre + [hload(ks, ri)])
            lead = need[job] - t
        else:
            at(t, wdload(job[1])); lead = need[job] - t
        assert lead >= 12, (job, t)
        if lead < 40: print(f"layer {layer}: short lead {lead} for {job}", file=sys.stderr)
        t += OPT["ldgap"]
    sig_after = {"hs0": 0, "hs1": 1, "hs2": 2, "hs3": 3}
    issued = {}
    def hook(it, slot):
        if isinstance(it, tuple) and it[1] in sig_after and not S.pending(it[1]): issued[it[1]] = slot
    S.hook = hook
    dma_t = 4 * (40 - OPT["xup"]) + 3
    for k in Pre.late:
        st = dma_stage(k)
        at(dma_t, st[:2])
        for d in range(4): at(dma_t + 4 * d + 2, [st[2 + d]])
        dma_t += 16
    Pre.late = []
    for n in range(-2 * PD, G2 + 280):
        ready = [t for t in sig_after if t in issued and n - issued[t] >= OPT["lag"]]
        used = 0
        if n < G2 and n % 2 == 0:
            nxt = n // 2 + PD
            if nxt < 280 and nxt % 32 == 0:
                sg = nxt // 16
                e.wait(vm=[f"dma{sg}", f"dma{sg + 1}"] + ready + (["x0"] if sg in Pre.raw or sg + 1 in Pre.raw else []))
                if not OPT["x_nobar"] or ready: e.raw("s_barrier")
                for t in ready:
                    assert n < chk[sig_after[t]] - 20, (t, n)
                    sig_h(sig_after.pop(t))
                used += 2
                for k in (sg + 4, sg + 5):
                    if 8 <= k <= 17 and not OPT["x_nodma"]:
                        st = dma_stage(k)
                        dma_t = max(dma_t, n + 1)
                        at(dma_t, st[:2])
                        for d in range(4): at(dma_t + OPT["dma_gap"] * d + 2, [st[2 + d]])
                        dma_t += 4 * OPT["dma_gap"]
            if nxt < 280: wread(nxt); used += 1
        elif n >= OPT["pub_from"] and ready and OPT["x_nopub"]:
            for t in ready: sig_after.pop(t)
        elif n >= OPT["pub_from"] and ready:
            e.wait(vm=ready)
            e.raw("s_barrier")
            for t in ready:
                assert n < chk[sig_after[t]], (t, n)
                print(f"layer {layer}: {t} issued at {issued[t]} published at {n}", file=sys.stderr)
                sig_h(sig_after.pop(t))
            used += 2
        if n < 0: continue
        if n < G2:
            fr, rt = n >> 1, n & 1
            p = min(fr // 80, 3); fi = fr - 80 * p
            if p < 3: s_, acc = fi >> 2, ACC[p & 1] + 16 * rt + 8 * (fi & 1) + 4 * ((fi >> 1) & 1)
            else: s_, acc = fi >> 1, ACC[1] + 8 * rt + 4 * (fi & 1)
            if fi == 0 and p >= 2: assert f"hs{p-2}" in issued
            wv_, wl_ = [f"x{2*s_}", f"x{2*s_+1}"], [f"w{k}" for k in range(fr, fr - fr % OPT["lgw"] + OPT["lgw"])]
            mf = f"v_mfma_f32_16x16x32_bf16 {v(acc,4)}, {a(WB0+4*(fr%NWB),4)}, {v(XR+8*s_+4*rt,4)}, {v(acc,4) if s_ else 0}"
        else:
            ks, ri, tau = order[n - G2]
            fr = 5 * phys(ks) + tau
            wv_, wl_ = [f"h{ks}_{k}" for k in (range(4) if OPT["ksw"] else [ri])] + [f"wd{k}" for k in range(5 * phys(ks), 5 * phys(ks) + 5)], []
            acc = v(acc2(tau, ri), 4)
            mf = f"v_mfma_f32_16x16x32_bf16 {acc}, {wdreg(fr)}, {v(HF+16*(ks&3)+4*ri,4)}, {acc if ks else 0}"
        if e.would_wait(wv_, wl_): used += 1
        extra = OPT["x3"] if 484 <= n < G2 and n & 1 else OPT["x2"] if G2 <= n < G2 + 60 and n & 1 else 0
        S.gap(n, used, extra)
        if OPT["ksprof"] == layer + 1 and n >= G2 and (n - G2) % 20 == 0: lstamp(f"ks{(n-G2)//20}")
        if OPT["ksprof"] == layer + 1 and n == G2 + 268: lstamp(None)
        if n == G2 and not OPT["ksprof"]: stamp(f"g1_done{layer}")
        if OPT["passprof"] == 1 and n in (1, 160, 320, 480): stamp(f"L{layer}_at{n}")
        if OPT["passprof"] == 1 and n - G2 in (80, 160): stamp(f"L{layer}_g2at{n-G2}")
        e.wait(vm=wv_, lg=wl_)
        e(mf)
    while S.fill: put(S.fill.pop(0)[1])
    Lay.n = 1
    assert not S.side and not sig_after, (S.side, sig_after)
    print(f"layer {layer}: {S.over} issue slots over budget", file=sys.stderr)
    stamp(f"g2_mfma{layer}")
    e.wait_all(vm=False)
    e.raw("s_barrier")
    RD = 160
    for k in range(11):
        e(f"ds_read_b128 {v(RD+4*k,4)}, v204 offset:{1024*k}", tag=f"r{k}")
    for k in range(11, 15):
        e(f"ds_read_b128 {v(RD+4*k+4,4)}, v204 offset:{1024*k}", tag=f"r{k}")
    if layer == 1:
        e.wait(vm="x3")
        for i in range(24):
            e(f"v_and_b32 v{16+i}, {sMASK}, v{48+(i>>1)}" if i & 1 else f"v_lshlrev_b32 v{16+i}, 16, v{48+(i>>1)}")
    for k in range(15):
        e.wait(lg=f"r{k}")
        d = acc2(k % 5, 0); r = RD + 4 * k + (4 if k >= 11 else 0)
        for h in range(2):
            e(f"v_pk_add_f32 {v(d+2*h,2)}, {v(d+2*h,2)}, {v(r+2*h,2)}")
    d = acc2(4, 0)
    if layer == 0:
        for g in range(2):
            for i in range(4):
                dd = acc2(2 * g + (i >> 1), 0) + 2 * (i & 1)
                e(f"v_cvt_pk_bf16_f32 v{16+4*g+i}, v{dd}, v{dd+1}")
            e(f"buffer_store_dwordx4 {v(16+4*g,4)}, v1, {WS}, {T[8]} offen offset:{1024*g} sc1", tag="st")
        e(f"""v_cvt_pk_bf16_f32 v24, v{d}, v{d+1}
        v_cvt_pk_bf16_f32 v25, v{d+2}, v{d+3}
        v_mov_b32 v26, v24
        v_mov_b32 v27, v25
        v_permlane16_swap_b32 v24, v26
        v_permlane16_swap_b32 v25, v27
        buffer_store_dwordx4 v[24:27], v11, {WS}, {T[8]} offen sc1""", tag="st")
        if not OPT["sent_f"]:
            r2_pre()
            e.wait(vm="st")
        e.raw("s_barrier")
        signal(T[7], WSP)
        e(f"v_mov_b32 v7, {T[7]}")
        if OPT["sent_f"]:
            r_prefill(OPT["pre_a2"], 6)
            r2_pre()
            bg_flush()
        else:
            prefill(take(OPT["pre_a2"]))
    else:
        for g in range(2):
            for i in range(4):
                dd = acc2(2 * g + (i >> 1), 0) + 2 * (i & 1)
                e(f"v_pk_fma_f32 {v(dd,2)}, {v(dd,2)}, s[96:97], {v(16+8*g+2*i,2)} op_sel_hi:[1,0,1]")
            for i in range(4):
                dd = acc2(2 * g + (i >> 1), 0) + 2 * (i & 1)
                e(f"v_cvt_pk_bf16_f32 v{60+4*g+i}, v{dd}, v{dd+1}")
            e(f"buffer_store_dwordx4 {v(60+4*g,4)}, v10, {SA}, {T[7]} offen offset:{64*g}{OUTP}", tag="st")
        for i in range(4):
            e(f"v_mov_b32 v{44+i}, v{d+i}")
        for i in range(4):
            e(f"v_permlane16_swap_b32 v{d+i}, v{44+i}")
        for i in range(4):
            dd = d + 2 * i if i < 2 else 44 + 2 * (i - 2)
            e(f"v_pk_fma_f32 {v(dd,2)}, {v(dd,2)}, s[96:97], {v(32+2*i,2)} op_sel_hi:[1,0,1]")
        e(f"""v_cvt_pk_bf16_f32 v68, v{d}, v{d+1}
        v_cvt_pk_bf16_f32 v69, v{d+2}, v{d+3}
        v_cvt_pk_bf16_f32 v70, v44, v45
        v_cvt_pk_bf16_f32 v71, v46, v47
        buffer_store_dwordx4 v[68:71], v13, {SA}, {T[7]} offen offset:128{OUTP}""", tag="st")
        L = e.uid("epo")
        e.raw(f"""s_or_b32 {T[0]}, s2, {sWV}
        s_cmp_lg_u32 {T[0]}, 0
        s_cbranch_scc1 {L}
        s_mov_b64 exec, 1
        v_mov_b32 v6, {EPO}
        v_mov_b32 v7, {sTAG}
        global_store_dword v6, v7, {WSP} sc1
        s_mov_b64 exec, -1
        {L}:""")
    stamp(f"g2_done{layer}")

def finish():
    if OPT["prof"]:
        e.wait_all()
        stamp("end")
        e(f"""s_lshl_b32 {T[0]}, s2, 2
        s_add_u32 {T[0]}, {T[0]}, {sWV}
        s_lshl_b32 {T[0]}, {T[0]}, 8
        s_add_u32 {T[0]}, {T[0]}, {PROF}
        v_lshlrev_b32 v1, 2, v0
        buffer_store_dword v{VST}, v1, {WS}, {T[0]} offen""")
        if OPT["dbgout"]:
            e(f"""s_cmp_lg_u32 s2, {OPT["dbgout"] - 1}
            s_cbranch_scc1 L_exit
            s_cmp_lg_u32 {sWV}, 0
            s_cbranch_scc1 L_exit
            v_readlane_b32 {T[1]}, v{VST}, 0
            s_mov_b64 exec, 0xffff
            v_subrev_u32 v6, {T[1]}, v{VST}
            global_store_dword v1, v6, {DBG}""")
    e.label("L_exit")
    e("s_endpgm")

entry()
p0()
if OPT["stubs"]: e.raw("s_branch L_conv\n.p2align 12\nL_conv:")
conv()
e("s_branch L_r1")
e.vm = ["warm"] if OPT["warm"] == 2 else []; e.vmd = [{("v", 254)}] if OPT["warm"] == 2 else []; e.lg = []
shuffle()
r1()
ffn(0)
r2()
ffn(1)
finish()
nops = e.pad()

def insert_stubs():
    import subprocess, re, tempfile, os
    extra = "".join(f"L_page{p}:\n" for p in range(1, NPAGES))
    src = f'.amdgcn_target "amdgcn-amd-amdhsa--gfx950"\n.text\n{NAME}:\n' + e.text() + extra
    d = tempfile.mkdtemp()
    open(d + "/a.s", "w").write(src)
    subprocess.run(["clang", "-x", "assembler", "-target", "amdgcn-amd-amdhsa", "-mcpu=gfx950", "-c", d + "/a.s", "-o", d + "/a.o"], check=True)
    dis = subprocess.run(["llvm-objdump", "-d", "--mcpu=gfx950", d + "/a.o"], capture_output=True, text=True).stdout
    dis = dis[dis.index("<L_conv>:"):]
    sizes = [4 * len(m.group(1).split()) for m in re.finditer(r"// [0-9A-F]+: ([0-9A-F ]+)", dis)]
    start = next(n for n, i in enumerate(e.ins) if i.text == "L_conv:")
    real = [i for i in e.ins[start:] if i.states]
    assert len(sizes) == len(real), (len(sizes), len(real))
    out = e.ins[:start]; off = 0; page = 1; k = 0; prev = None
    for i in e.ins[start:]:
        if i.states:
            if off >= 4096 * page and page < NPAGES and not (prev and prev.op == "s_getpc_b64"):
                out += [Ins(f"s_branch L_past{page}"), Ins(f"L_page{page}:"), Ins("s_setpc_b64 s[98:99]"), Ins(f"L_past{page}:")]
                off += 8; page += 1
            off += sizes[k]; k += 1; prev = i
        out.append(i)
    for p in range(page, NPAGES):
        out += [Ins(f"L_page{p}:"), Ins("s_setpc_b64 s[98:99]")]
    e.ins = out
    print(f"{off} bytes of code, {page - 1} page stubs", file=sys.stderr)
if OPT["stubs"]: insert_stubs()

hdr = open("interleave_layers__ssm_conv_h3__glu_gated_geglu__prompt.s.ref").read().split("; Override launch")[0]
out = hdr + f"""; Single persistent launch: 256 workgroups, one per CU, phases chained by counters in d_debug / d_ws.
; @launch grid=(256,1,1) block=(256,1,1) lds={LDS_BYTES}
.amdgcn_target "amdgcn-amd-amdhsa--gfx950"
.text
.globl {NAME}
.p2align 8
.type {NAME},@function
{NAME}:
""" + e.text() + f""".section .rodata,"a"
.p2align 6
.amdhsa_kernel {NAME}
  .amdhsa_next_free_vgpr 512
  .amdhsa_next_free_sgpr 102
  .amdhsa_accum_offset 256
  .amdhsa_group_segment_fixed_size 0
  .amdhsa_kernarg_size 104
  .amdhsa_user_sgpr_count 2
  .amdhsa_user_sgpr_kernarg_segment_ptr 1
  .amdhsa_system_sgpr_workgroup_id_x 1
  .amdhsa_float_denorm_mode_32 3
.end_amdhsa_kernel
"""
open(sys.argv[1], "w").write(out)
import json
json.dump(dict(stamps=stamp_names, KVT=KVT, YB=YB, XN=XN, X3=X3, F1=F1, HB=HB, WGU=WGU, WDP=WDP, PROF=PROF, CNT=CNT), open(sys.argv[1] + ".json", "w"))
print(f"{len(e.ins)} lines, {nops} padded wait states", file=sys.stderr)
```
